```python
import torch

def _softmax(x, axis=-1):
    return torch.softmax(x, dim=axis)

def _gelu(x):
    return torch.nn.functional.gelu(x, approximate='tanh')

def _silu(x):
    return torch.nn.functional.silu(x)

def _sigmoid(x):
    return torch.sigmoid(x)

def _layernorm(x, axis=-1, eps=1e-05):
    m = x.mean(dim=axis, keepdim=True)
    v = x.var(dim=axis, keepdim=True, unbiased=False)
    return (x - m) / torch.sqrt(v + eps)

def _scatter_add(tgt, idx, src, axis=0):
    return tgt.clone().index_add_(axis, idx, src)

def _segment_sum(src, seg, n):
    out = torch.zeros((n,) + src.shape[1:], dtype=src.dtype)
    return out.index_add_(0, seg, src)

def _pad(x, pw):
    flat = tuple((v for pair in reversed(pw) for v in pair))
    return torch.nn.functional.pad(x, flat)
kernel_name = 'standalone__conformer_family_branchformer__speech'

def setup_inputs():

    _w = lambda a: (lambda t: t.to(torch.bfloat16) if t.is_floating_point() else t)(torch.as_tensor(a))
    B, T, D, K = (2, 1000, 512, 31)
    s = float(D) ** (-0.5)
    return {'x': _w((lambda *s: torch.randn(*s, dtype=torch.bfloat16) * 0.05)(B, T, D)), 'w_q': _w((lambda *s: torch.randn(*s, dtype=torch.bfloat16) * 1.6)(D, D) * s), 'w_k': _w((lambda *s: torch.randn(*s, dtype=torch.bfloat16) * 1.6)(D, D) * s), 'w_v': _w((lambda *s: torch.randn(*s, dtype=torch.bfloat16) * 0.8)(D, D) * s), 'w_ao': _w((lambda *s: torch.randn(*s, dtype=torch.bfloat16) * 0.8)(D, D) * s), 'w_up': _w((lambda *s: torch.randn(*s, dtype=torch.bfloat16) * 1.6)(D, 2 * D) * s), 'dw': _w((lambda *s: torch.randn(*s, dtype=torch.bfloat16) * 1.6)(K, D) * (1.0 / K)), 'w_dn': _w((lambda *s: torch.randn(*s, dtype=torch.bfloat16) * 0.8)(D, D) * s), 'w_merge': _w((lambda *s: torch.randn(*s, dtype=torch.bfloat16) * 0.8)(2 * D, D) * s)}

def reference(x, w_q, w_k, w_v, w_ao, w_up, dw, w_dn, w_merge):
    B, T, D = x.shape
    K = dw.shape[0]
    xa = _layernorm(x, axis=-1)
    q = torch.einsum('btd,de->bte', xa, w_q)
    k = torch.einsum('btd,de->bte', xa, w_k)
    v = torch.einsum('btd,de->bte', xa, w_v)
    logits = torch.einsum('btd,bsd->bts', q, k) * float(D) ** (-0.5)
    attn = _softmax(logits, axis=-1)
    ya = torch.einsum('bts,bsd->btd', attn, v)
    ya = torch.einsum('btd,de->bte', ya, w_ao)
    xc = _layernorm(x, axis=-1)
    h = _gelu(torch.einsum('btd,de->bte', xc, w_up))
    u = h[..., :D].clone()
    g = _layernorm(h[..., D:], axis=-1)
    pad = K // 2
    gp = _pad(g, ((0, 0), (pad, pad), (0, 0)))
    conv = torch.zeros_like(g)
    for i in range(K):
        conv = conv + gp[:, i:i + T, :] * dw[i][None, None, :]
    yc = torch.einsum('btd,de->bte', u * conv, w_dn)
    merged = torch.concatenate([ya, yc], axis=-1)
    out = torch.einsum('btf,fd->btd', merged, w_merge)
    return x + out
```

```python
import re

def v(i): return f"v{i}"
def a(i): return f"a{i}"
def s(i): return f"s{i}"
def vr(i, n): return f"v[{i}:{i+n-1}]" if n > 1 else f"v{i}"
def ar(i, n): return f"a[{i}:{i+n-1}]" if n > 1 else f"a{i}"
def sr(i, n): return f"s[{i}:{i+n-1}]" if n > 1 else f"s{i}"

class R:
    def __init__(self, kind, idx, n=1): self.kind, self.idx, self.n = kind, idx, n
    def __str__(self): return f"{self.kind}[{self.idx}:{self.idx+self.n-1}]" if self.n > 1 else f"{self.kind}{self.idx}"
    def __getitem__(self, k):
        if isinstance(k, slice):
            st = k.start or 0; en = self.n if k.stop is None else k.stop
            assert 0 <= st < en <= self.n
            return R(self.kind, self.idx + st, en - st)
        assert 0 <= k < self.n, (k, self.n)
        return R(self.kind, self.idx + k, 1)
    def sub(self, st, n): return self[st:st + n]

class Alloc:
    def __init__(self, kind, start, limit): self.kind, self.next, self.limit, self.hi = kind, start, limit, start
    def __call__(self, n=1, align=None):
        if align is None: align = 1 if n == 1 else (2 if self.kind != 's' else (4 if n >= 4 else 2))
        self.next = (self.next + align - 1) // align * align
        r = R(self.kind, self.next, n); self.next += n
        assert self.next <= self.limit, f"out of {self.kind} registers: {self.next} > {self.limit}"
        self.hi = max(self.hi, self.next)
        return r
    def mark(self): return self.next
    def reset(self, m): self.next = m

_REG = re.compile(r"^(-|abs\()?(v|a|s)(?:(\d+)|\[(\d+):(\d+)\])\)?$")
def regs_of(tok):
    tok = tok.strip()
    if tok in ('vcc',): return {('s', 'vcc_lo'), ('s', 'vcc_hi')}
    if tok in ('vcc_lo', 'vcc_hi', 'm0', 'exec_lo', 'exec_hi'): return {('s', tok)}
    if tok == 'exec': return {('s', 'exec_lo'), ('s', 'exec_hi')}
    m = _REG.match(tok)
    if not m: return set()
    k = m.group(2)
    if m.group(3) is not None: return {(k, int(m.group(3)))}
    return {(k, i) for i in range(int(m.group(4)), int(m.group(5)) + 1)}

TRANS = ('v_exp_f32', 'v_log_f32', 'v_rcp_f32', 'v_rsq_f32', 'v_sqrt_f32', 'v_sin_f32', 'v_cos_f32')
def split_ops(rest):
    out, depth, cur = [], 0, ''
    for ch in rest:
        if ch == '[': depth += 1
        if ch == ']': depth -= 1
        if ch == ',' and depth == 0: out.append(cur.strip()); cur = ''
        else: cur += ch
    if cur.strip(): out.append(cur.strip())
    return out

class I:
    def __init__(self, text):
        self.text = text
        t = text.split(';')[0].strip()
        self.mn, _, rest = t.partition(' ')
        ops = split_ops(rest)
        mods = ''
        if ops:
            last = ops[-1].split()
            ops[-1] = last[0] if last else ''
            mods = ' '.join(last[1:])
        self.ops, self.mods = ops, mods
        mn = self.mn
        self.cls = 'other'; self.w = set(); self.r = set(); self.passes = 0
        rg = [regs_of(o) for o in ops]
        if mn.startswith('v_mfma'):
            self.cls = 'mfma'; self.w = rg[0]; self.srcab = rg[1] | rg[2]; self.srcc = rg[3]; self.r = self.srcab | self.srcc
            self.passes = 8 if '32x32x16' in mn else (4 if '16x16x32' in mn else 16)
        elif mn.startswith('v_'):
            self.cls = 'valu'
            if mn.startswith('v_cmp'):
                self.w = rg[0]; self.r = set().union(*rg[1:])
            elif mn.startswith('v_permlane') and 'swap' in mn:
                self.w = rg[0] | rg[1]; self.r = rg[0] | rg[1]
            elif mn.startswith(('v_add_co', 'v_sub_co', 'v_addc_co', 'v_subb_co')):
                self.w = rg[0] | rg[1]; self.r = set().union(*rg[2:])
            else:
                self.w = rg[0]; self.r = set().union(*rg[1:]) if len(rg) > 1 else set()
                if mn.startswith(('v_fmac', 'v_dot2c', 'v_pk_fmac', 'v_writelane')): self.r |= rg[0]
                if mn.startswith('v_cndmask') and len(ops) == 3: self.r |= regs_of('vcc')
            self.trans = mn.replace('_e32', '').replace('_e64', '') in TRANS
            self.dpp = 'dpp' in mn or 'row_' in text or 'quad_perm' in text
        elif mn.startswith(('buffer_', 'global_')):
            self.cls = 'vmem'
            alltoks = ops
            lds = ' lds' in (' ' + mods) or 'load_lds' in mn
            if 'store' in mn or 'atomic' in mn:
                self.r = set().union(*rg)
                self.store = True
                self.data = rg[0] if mn.startswith('buffer_') else rg[1]
                self.wide = 'x4' in mn or 'x3' in mn
                if 'atomic' in mn and 'sc0' in mods: self.w = rg[0]
            else:
                self.store = False
                if lds: self.r = set().union(*rg) | {('s', 'm0')}
                else: self.w = rg[0]; self.r = set().union(*rg[1:])
            self.lds = lds
        elif mn.startswith('ds_'):
            self.cls = 'ds'
            if mn.startswith(('ds_read', 'ds_bpermute', 'ds_permute', 'ds_swizzle')):
                self.w = rg[0]; self.r = set().union(*rg[1:])
            else: self.r = set().union(*rg)
        elif mn.startswith('s_'):
            self.cls = 'salu'
            if mn in ('s_nop', 's_waitcnt', 's_barrier', 's_endpgm', 's_setprio', 's_sleep') or mn.startswith(('s_cbranch', 's_branch', 's_cmp', 's_bitcmp')):
                self.r = set().union(*rg) if rg else set()
            else:
                self.w = rg[0] if rg else set(); self.r = set().union(*rg[1:]) if len(rg) > 1 else set()
                if 'saveexec' in mn: self.w |= regs_of('exec')
    def states(self):
        if self.mn == 's_nop': return int(self.ops[0], 0) + 1
        return 1

def isvec(rs): return {x for x in rs if x[0] in 'va'}
def issg(rs): return {x for x in rs if x[0] == 's'}

def need(p, c):
    n = 0
    if p.cls == 'valu':
        wv = isvec(p.w); ws = issg(p.w)
        if p.mn.startswith('v_dot'):
            if c.mn == p.mn:
                if wv & (c.r - (regs_of(c.ops[3]) if len(c.ops) > 3 else set())): n = max(n, 3)
            elif wv & (c.r | c.w): n = max(n, 3)
        if c.cls == 'mfma' and wv & c.r: n = max(n, 2)
        if c.cls == 'valu':
            if wv & c.r:
                if c.mn.startswith(('v_readlane', 'v_readfirstlane')): n = max(n, 1)
                if c.dpp: n = max(n, 2)
                if c.mn.startswith('v_permlane'): n = max(n, 2)
                if p.trans and not c.trans: n = max(n, 1)
            if ws & c.r:
                n = max(n, 2)
                if c.mn.startswith(('v_readlane', 'v_writelane')): n = max(n, 4)
            if ws & {('s', 'exec_lo'), ('s', 'exec_hi')}: n = max(n, 5 if c.dpp else 4)
        if c.cls == 'vmem' and ws & c.r: n = max(n, 5)
        if c.cls == 'mfma' and ws & {('s', 'exec_lo'), ('s', 'exec_hi')}: n = max(n, 4)
        if c.cls == 'salu' and ws & c.r: n = max(n, 4)
    if p.cls == 'mfma':
        ps = p.passes
        big = {4: 8, 8: 12, 16: 20}[ps]
        if c.cls == 'mfma':
            if p.w & c.srcab: n = max(n, big)
            if p.w & c.srcc and not (p.w == c.srcc and p.passes == c.passes): n = max(n, {4: 6, 8: 10, 16: 18}[ps])
            if p.w & c.w and not (p.w == c.w): n = max(n, {4: 6, 8: 10, 16: 18}[ps])
        elif c.cls in ('valu', 'vmem', 'ds'):
            if p.w & (c.r | c.w): n = max(n, big)
            if c.cls == 'valu' and p.srcc & c.w: n = max(n, {4: 3, 8: 7, 16: 15}[ps])
    if p.cls == 'vmem' and p.store and p.wide:
        if c.cls == 'valu' and p.data & c.w: n = max(n, 2)
        elif p.data & c.w: n = max(n, 1)
    if p.cls == 'salu' and ('s', 'm0') in p.w and c.cls == 'vmem' and getattr(c, 'lds', False): n = max(n, 1)
    return n

def fix_hazards(lines, window=24):
    out = []; hist = []; added = 0
    for ln in lines:
        t = ln.strip()
        if not t or t.startswith((';', '.', '//')) or t.endswith(':'):
            out.append(ln); continue
        c = I(t)
        dist = 0; pad = 0
        for p in reversed(hist):
            nd = need(p, c)
            if nd > dist: pad = max(pad, nd - dist)
            dist += p.states()
            if dist >= window: break
        while pad > 0:
            k = min(pad, 16)
            out.append(f"s_nop {k-1}"); hist.append(I(f"s_nop {k-1}")); pad -= k; added += 1
        out.append(ln); hist.append(c)
        if len(hist) > 64: hist = hist[-40:]
    return out, added

class Asm:
    def __init__(self): self.L = []
    def __call__(self, *lines):
        for ln in lines:
            for x in str(ln).split('\n'):
                self.L.append(x)
    def ext(self, lines):
        for x in lines: self(x)

def interleave(main, fill, start=0, per=None):
    out = []; n = len(main) - start; k = 0
    for i, m in enumerate(main):
        out.append(m)
        if i >= start and n > 0:
            tgt = (len(fill) * (i - start + 1) + n - 1) // n if per is None else min(len(fill), per * (i - start + 1))
            while k < tgt: out.append(fill[k]); k += 1
    out += fill[k:]
    return out

def kd(name, vgpr, accum, sgpr=102):
    total = vgpr
    return f""".section .rodata,"a"
.p2align 6
.amdhsa_kernel {name}
  .amdhsa_next_free_vgpr {total}
  .amdhsa_next_free_sgpr {sgpr}
  .amdhsa_accum_offset {accum}
  .amdhsa_group_segment_fixed_size 0
  .amdhsa_kernarg_size 96
  .amdhsa_user_sgpr_count 2
  .amdhsa_user_sgpr_kernarg_segment_ptr 1
  .amdhsa_system_sgpr_workgroup_id_x 1
  .amdhsa_float_denorm_mode_32 3
.end_amdhsa_kernel
.text
"""
```

```python
import sys, importlib
from common import *
import p1

def finish(A, name, hi, accum=None, agprs=0):
    lines, added = fix_hazards(A.L)
    vg = (hi + 7) // 8 * 8
    if agprs:
        acc = (hi + 3) // 4 * 4; total = acc + agprs
    else:
        acc = min(256, (hi + 3) // 4 * 4); total = hi
    head = f".globl {name}\n.p2align 8\n.type {name},@function\n{name}:\n"
    return head + "\n".join(lines) + "\n" + kd(name, total, acc), added

def build(parts, header):
    out = header + '.amdgcn_target "amdgcn-amd-amdhsa--gfx950"\n.text\n'
    for name, (A, hi, ag) in parts:
        txt, added = finish(A, name, hi, agprs=ag)
        n = sum(1 for l in A.L if l.strip() and not l.strip().endswith(':') and not l.strip().startswith(';'))
        print(f"{name}: {n} instructions, {added} hazard nops added, vgpr hi {hi}, agpr {ag}", file=sys.stderr)
        out += txt
    return out

if __name__ == '__main__':
    A, hi = p1.build()
    src = build([('p1_kernel', (A, hi, 0))], "; @launch kernel=p1_kernel grid=(256,1,1) block=(256,1,1) lds=163840\n")
    open('p1_only.s', 'w').write(src)
```

```python
from asmlib import *

KA = dict(x=0, wq=8, wk=16, wv=24, wao=32, wup=40, dw=48, wdn=56, wm=64, out=72, dbg=80, ws=88)
SP = dict(x=4, wq=6, wk=8, wv=10, wao=12, wup=14, dw=16, wdn=18, wm=20, out=22, dbg=24, ws=26)

QF   = 0x000000
KF   = 0x200000
VF   = 0x400000
UB   = 0x600000
GB   = UB + 2000 * 1024
WAMF = GB + 2000 * 1024
WDMF = WAMF + 0x80000
XST  = 0xB00000
PF   = 0xC00000
V2F  = 0x1000000
UCF  = 0x1200000
SM   = 0x1400000
WS_END = 0x1440000
OOB  = 0x7ff00000

XBYTES = 2000 * 1024
LOG2E = 1.4426950408889634
QSCALE = 512 ** -0.5 * LOG2E

import struct
def f2u(x): return struct.unpack('<I', struct.pack('<f', x))[0]
def hexf(x): return hex(f2u(x))

def prologue(A, nwg):
    A(f"s_cmp_ge_u32 s2, {nwg}")
    A("s_cbranch_scc1 L_EXIT_%s" % A.tag)
    A("s_load_dwordx16 s[4:19], s[0:1], 0")
    A("s_load_dwordx8 s[20:27], s[0:1], 64")

def srd(A, dst, ptr, size, off_sgpr=None, off_imm=0):
    p = SP[ptr] if isinstance(ptr, str) else ptr
    if off_sgpr is None and off_imm == 0:
        A(f"s_mov_b32 s{dst}, s{p}")
        A(f"s_and_b32 s{dst+1}, s{p+1}, 0xffff")
    else:
        if off_sgpr is not None:
            A(f"s_add_u32 s{dst}, s{p}, {off_sgpr}")
            A(f"s_addc_u32 s{dst+1}, s{p+1}, 0")
            if off_imm:
                A(f"s_add_u32 s{dst}, s{dst}, {hex(off_imm)}")
                A(f"s_addc_u32 s{dst+1}, s{dst+1}, 0")
        else:
            A(f"s_add_u32 s{dst}, s{p}, {hex(off_imm)}")
            A(f"s_addc_u32 s{dst+1}, s{p+1}, 0")
        A(f"s_and_b32 s{dst+1}, s{dst+1}, 0xffff")
    A(f"s_mov_b32 s{dst+2}, {hex(size) if isinstance(size, int) else size}")
    A(f"s_mov_b32 s{dst+3}, 0x20000")

def mfma(d, a_, b_, c=None):
    return f"v_mfma_f32_32x32x16_bf16 {d}, {a_}, {b_}, {d if c is None else c}"

class KAsm(Asm):
    def __init__(self, tag): super().__init__(); self.tag = tag; self._n = 0
    def label(self, base):
        self._n += 1
        return f"L_{self.tag}_{base}_{self._n}"
```

```python
from common import *

S_W, S_WT, S_WF, S_T0 = 28, 29, 30, 31
SRD_X = 32; SRD_W = [36, 40, 44]; SRD_WS = 48; SRD_DBG = 52
S_KW = [56, 57, 58]; S_KSTEP = [59, 60, 61]; S_KX = 62; S_M0X = 63; S_M0W = 64
S_XM = 66
S_I = 68; S_CT = 69
S_DSTA = 70; S_DSTB = 71; S_SCA = 72
S_SH = [73, 74, 75]
S_T = 80
S_C2 = 90
S_SAVE = 92
S_CNT = 94

XREG, WREG = 0, 65536
XST_B, WST_B = 16384, 24576

def lane_setup(A, V, r):
    A(f"v_and_b32 {r['lane']}, 63, v0")
    A(f"v_lshrrev_b32 {r['t0']}, 6, v0")
    A("s_nop 0")
    A(f"v_readfirstlane_b32 s{S_W}, {r['t0']}")
    A(f"s_lshr_b32 s{S_WT}, s{S_W}, 1")
    A(f"s_and_b32 s{S_WF}, s{S_W}, 1")

def dma_addr_setup(A, r, nslots):
    l = r['lane']; t0, t1, t2, t3 = r['t0'], r['t1'], r['t2'], r['t3']
    A(f"v_lshrrev_b32 {t0}, 3, {l}")
    A(f"v_lshrrev_b32 {t1}, 4, {l}")
    A(f"v_and_b32 {t2}, 7, {l}")
    A(f"v_xor_b32 {t3}, {t2}, {t1}")
    A(f"s_lshl_b32 s{S_T}, s{S_W}, 5")
    A(f"v_add_u32 {t0}, s{S_T}, {t0}")
    for j in range(4):
        d = r['vx_dma'][j]
        A(f"v_add_u32 {d}, {8*j}, {t0}")
        A(f"v_lshlrev_b32 {d}, 10, {d}")
        if j % 2 == 0: A(f"v_lshl_add_u32 {d}, {t3}, 4, {d}")
        else:
            A(f"v_xor_b32 {t1}, 4, {t3}")
            A(f"v_lshl_add_u32 {d}, {t1}, 4, {d}")
    A(f"v_lshrrev_b32 {t0}, 3, {l}")
    A(f"s_lshl_b32 s{S_T}, s{S_W}, 4")
    A(f"v_add_u32 {t0}, s{S_T}, {t0}")
    A(f"v_lshrrev_b32 {t1}, 4, {l}")
    A(f"v_and_b32 {t1}, 1, {t1}")
    A(f"v_lshlrev_b32 {t1}, 2, {t1}")
    A(f"v_xor_b32 {t1}, {t1}, {t2}")
    A(f"v_lshlrev_b32 {t1}, 4, {t1}")
    for p in range(nslots):
        for j in range(2):
            d = r['vw_dma'][2*p+j]
            A(f"v_add_u32 {d}, {8*j}, {t0}")
            A(f"v_lshlrev_b32 {d}, s{S_SH[p]}, {d}")
            A(f"v_add_u32 {d}, {d}, {t1}")
    A(f"s_lshl_b32 s{S_M0X}, s{S_W}, 12")
    A(f"s_lshl_b32 s{S_M0W}, s{S_W}, 11")
    A(f"s_add_u32 s{S_M0W}, s{S_M0W}, {WREG}")
    for p in range(nslots):
        A(f"s_mov_b32 s{S_KW[p]}, 0")
        A(f"s_lshl_b32 s{S_KSTEP[p]}, 64, s{S_SH[p]}")

def read_addr_setup(A, r, frs):
    l = r['lane']; t0, t1, t2, t3 = r['t0'], r['t1'], r['t2'], r['t3']
    A(f"v_and_b32 {t0}, 31, {l}")
    A(f"v_lshrrev_b32 {t1}, 1, {t0}")
    A(f"v_and_b32 {t1}, 7, {t1}")
    A(f"v_lshrrev_b32 {t2}, 5, {l}")
    A(f"s_lshl_b32 s{S_T}, s{S_WT}, 6")
    A(f"v_add_u32 {t0}, s{S_T}, {t0}")
    A(f"v_lshlrev_b32 {t0}, 7, {t0}")
    for s_ in range(4):
        d = r['vx_rd'][s_]
        A(f"v_or_b32 {t3}, {2*s_}, {t2}")
        A(f"v_xor_b32 {t3}, {t3}, {t1}")
        A(f"v_lshl_add_u32 {d}, {t3}, 4, {t0}")
    A(f"v_and_b32 {t0}, 15, {l}")
    A(f"v_lshrrev_b32 {t1}, 2, {t0}")
    A(f"v_lshl_add_u32 {t1}, {t2}, 3, {t1}")
    A(f"v_lshlrev_b32 {t1}, 7, {t1}")
    A(f"v_and_b32 {t3}, 1, {t0}")
    A(f"v_lshl_add_u32 {t1}, {t3}, 3, {t1}")
    A(f"v_bfe_u32 {t3}, {l}, 4, 1")
    A(f"v_lshlrev_b32 {t3}, 1, {t3}")
    A(f"v_bfe_u32 {t2}, {t0}, 1, 1")
    A(f"v_or_b32 {t3}, {t3}, {t2}")
    A(f"v_bfe_u32 {t2}, {t0}, 3, 1")
    A(f"v_lshlrev_b32 {t2}, 2, {t2}")
    A(f"v_xor_b32 {t3}, {t3}, {t2}")
    for k, (slot, e) in enumerate(frs):
        for half in range(2):
            d = r['vw_rd'][2*k+half]
            if e == 'wf':
                A(f"s_lshl_b32 s{S_T}, s{S_WF}, 2")
                A(f"v_xor_b32 {d}, s{S_T}, {t3}")
            else:
                A(f"v_xor_b32 {d}, {4*e}, {t3}")
            A(f"v_lshl_add_u32 {d}, {d}, 4, {t1}")
            if slot == 'wf':
                A(f"s_lshl_b32 s{S_T}, s{S_WF}, 13")
                A(f"s_add_u32 s{S_T}, s{S_T}, {WREG + half * 2 * WST_B}")
                A(f"v_add_u32 {d}, s{S_T}, {d}")
            else:
                A(f"v_add_u32 {d}, {WREG + half * 2 * WST_B + slot * 8192}, {d}")

def dma_chunk(r, c, nslots, masked):
    st = c & 3; G = []
    G.append([f"s_mov_b32 s{S_KX}, {c*128}"])
    for j in range(4):
        g = [f"s_add_u32 m0, s{S_M0X}, {st*XST_B + j*1024}"]
        if j == 3 and masked: g.append(f"s_mov_b64 exec, s[{S_XM}:{S_XM+1}]")
        else: g.append("s_nop 0")
        g.append(f"buffer_load_dwordx4 {r['vx_dma'][j]}, s[{SRD_X}:{SRD_X+3}], s{S_KX} offen lds")
        if j == 3 and masked: g.append("s_mov_b64 exec, -1")
        G.append(g)
    for p in range(nslots):
        for j in range(2):
            G.append([f"s_add_u32 m0, s{S_M0W}, {st*WST_B + p*8192 + j*1024}", "s_nop 0",
                      f"buffer_load_dwordx4 {r['vw_dma'][2*p+j]}, s[{SRD_W[p]}:{SRD_W[p]+3}], s{S_KW[p]} offen lds"])
        G.append([f"s_add_u32 s{S_KW[p]}, s{S_KW[p]}, s{S_KSTEP[p]}"])
    return G

def frag_reads(r, g, nf):
    c, s_ = g >> 2, g & 3; st = c & 3; b = g & 1
    L = [f"ds_read_b128 {r['fx'][b][0]}, {r['vx_rd'][s_]} offset:{st*XST_B}"]
    for k in range(nf):
        for u in range(2):
            off = (st & 1) * WST_B + (16*s_ + 4*u) * 128
            L.append(f"ds_read_b64_tr_b16 {r['fw'][b][k].sub(2*u, 2)}, {r['vw_rd'][2*k + (st >> 1)]} offset:{off}")
        if k == 0:
            L.append(f"ds_read_b128 {r['fx'][b][1]}, {r['vx_rd'][s_]} offset:{st*XST_B + 4096}")
    return L

def main_loop(A, r, nf, nslots, masked, w_is_a, after_barrier):
    ndma = 4 + 2 * nslots
    for c in range(4):
        for g in dma_chunk(r, c, nslots, masked): A.ext(g)
        if c == 1 and 'mid' in after_barrier: A.ext(after_barrier['mid'])
    if 'pre' in after_barrier: A.ext(after_barrier['pre'])
    A(f"s_waitcnt vmcnt({3*ndma}) lgkmcnt(0)")
    A("s_barrier")
    A.ext(frag_reads(r, 0, nf))
    for g in range(32):
        c, s_ = g >> 2, g & 3; b = g & 1
        M = []
        for k in range(nf):
            for tb in range(2):
                acc = r['acc'][k][tb]
                x, w = r['fx'][b][tb], r['fw'][b][k]
                M.append(mfma(acc, w if w_is_a else x, x if w_is_a else w, '0' if g == 0 else None))
        if ('step', g) in after_barrier: A.ext(after_barrier[('step', g)])
        A("s_waitcnt lgkmcnt(0)")
        rd = frag_reads(r, g + 1, nf) if g + 1 < 32 else []
        if s_ == 3 and c < 7:
            A(M[0]); A(M[1])
            nb = c + 1
            out = {1: 2, 2: 1}.get(nb, 1 if nb < 7 else 0)
            extra = after_barrier.get(('vm', nb), 0)
            A(f"s_waitcnt vmcnt({out*ndma + extra})")
            A("s_barrier")
            fill = list(rd)
            tail = []
            if 1 <= c <= 4:
                for grp in dma_chunk(r, c + 3, nslots, masked): tail.append(grp)
            A.ext(interleave(M[2:], fill))
            r['_pending'] = tail
            if nb in after_barrier: r['_pending'] = tail + [[x] for x in after_barrier[nb]]
        else:
            pend = r.get('_pending', [])
            take = pend[:] if s_ == 1 or len(pend) <= 6 else pend[:(len(pend) + 1) // 2]
            r['_pending'] = pend[len(take):]
            seq = []
            nm = len(M)
            rdq = list(rd); gq = list(take)
            for i, m in enumerate(M):
                seq.append(m)
                k = (len(rd) * (i + 1) + nm - 2) // (nm - 1) - (len(rd) - len(rdq)) if i < nm - 1 else len(rdq)
                for _ in range(min(k, len(rdq))): seq.append(rdq.pop(0))
                k2 = (len(take) * (i + 1) + nm - 1) // nm - (len(take) - len(gq))
                for _ in range(k2): seq += gq.pop(0)
            A.ext(seq)
    assert not r.get('_pending')

def gelu_block(A, r, y):
    t = r['tmp']; one = r['one2']; c1 = r['c1']
    P = range(8)
    for i in P: A(f"v_pk_mul_f32 {t.sub(2*i,2)}, {y.sub(2*i,2)}, {y.sub(2*i,2)}")
    for i in P: A(f"v_pk_fma_f32 {t.sub(2*i,2)}, {t.sub(2*i,2)}, s[{S_C2}:{S_C2+1}], {c1}")
    for i in P: A(f"v_pk_mul_f32 {t.sub(2*i,2)}, {t.sub(2*i,2)}, {y.sub(2*i,2)}")
    for i in range(16): A(f"v_exp_f32 {t[i]}, {t[i]}")
    for i in P: A(f"v_pk_add_f32 {t.sub(2*i,2)}, {t.sub(2*i,2)}, {one}")
    for i in range(16): A(f"v_rcp_f32 {t[i]}, {t[i]}")
    for i in P: A(f"v_pk_mul_f32 {y.sub(2*i,2)}, {y.sub(2*i,2)}, {t.sub(2*i,2)}")

def correct_block(A, r, acc, ab):
    cs = r['cs']
    for i in range(8):
        A(f"v_pk_mul_f32 {acc.sub(2*i,2)}, {acc.sub(2*i,2)}, {ab} op_sel:[0,0] op_sel_hi:[1,0]")
    for i in range(8):
        A(f"v_pk_fma_f32 {acc.sub(2*i,2)}, {cs.sub(2*i,2)}, {ab}, {acc.sub(2*i,2)} op_sel:[0,1,0] op_sel_hi:[1,1,1]")

def pack_block(A, r, acc, dst):
    for i in range(8): A(f"v_cvt_pk_bf16_f32 {dst[i]}, {acc[2*i]}, {acc[2*i+1]}")

def read_cs(A, r, k):
    base = r['vcsA'] if k < 2 else r['vcsB']
    for q in range(4):
        A(f"ds_read_b128 {r['cs'].sub(4*q,4)}, {base} offset:{(128*k if k < 2 else 0) + 32*q}")
    A("s_waitcnt lgkmcnt(0)")

def epi_lin(A, r, k, pk):
    read_cs(A, r, k)
    for tb in range(2):
        acc = r['acc'][k][tb]; ab = r['abs'][tb]; d = pk[tb]
        correct_block(A, r, acc, ab)
        pack_block(A, r, acc, d)
        A(f"s_add_u32 s{S_T}, s{S_DSTA}, {k*2048 + tb*32768}")
        for hf in range(2):
            A(f"buffer_store_dwordx4 {d.sub(4*hf,4)}, {r['vlin']}, s[{SRD_WS}:{SRD_WS+3}], s{S_T} offen offset:{hf*1024}")

def epi_gel(A, r, k, pk, sdst, extra):
    read_cs(A, r, k)
    for tb in range(2):
        acc = r['acc'][k][tb]; ab = r['ab'][tb]; d = pk[tb]
        correct_block(A, r, acc, ab)
        gelu_block(A, r, acc)
        pack_block(A, r, acc, d)
        for q in range(2):
            A(f"v_permlane32_swap_b32 {d[4*q]}, {d[4*q+2]}")
            A(f"v_permlane32_swap_b32 {d[4*q+1]}, {d[4*q+3]}")
        A(f"s_add_u32 s{S_T}, s{sdst}, {extra}")
        for q in range(2):
            A(f"buffer_store_dwordx4 {d.sub(4*q,4)}, {r['vgel'][tb]}, s[{SRD_WS}:{SRD_WS+3}], s{S_T} offen offset:{q*32}")

def build(name='p1_kernel'):
    A = KAsm('p1')
    V = Alloc('v', 1, 256)
    r = {}
    for n in ['lane', 't0', 't1', 't2', 't3', 'vlin', 'vcsA', 'vcsB', 'vpoll', 'vz']: r[n] = V(1)
    r['vx_dma'] = V(4, 1); r['vw_dma'] = V(6, 1); r['vx_rd'] = V(4, 1); r['vw_rd'] = V(6, 1)
    r['vgel'] = V(2, 1)
    r['ab'] = [V(2), V(2)]; r['abs'] = [V(2), V(2)]
    r['one2'] = V(2); r['c1'] = V(2)
    r['acc'] = [[V(16, 4), V(16, 4)] for _ in range(3)]
    r['fx'] = [[V(4), V(4)] for _ in range(2)]
    r['fw'] = [[V(4) for _ in range(3)] for _ in range(2)]
    r['cs'] = V(16, 4); r['tmp'] = V(16, 4)
    pk = [V(8, 4), V(8, 4)]
    st64 = V(0 + 16, 4)
    prologue(A, 256)
    lane_setup(A, V, r)
    A("s_and_b32 s80, s2, 7")
    A("s_lshr_b32 s81, s2, 3")
    A("s_waitcnt lgkmcnt(0)")
    srd(A, SRD_WS, 'ws', WS_END)
    srd(A, SRD_DBG, 'dbg', 256)
    A("s_cmp_ge_u32 s81, 28")
    A("s_cbranch_scc1 L_p1_weights")
    A("s_and_b32 s82, s80, 3", "s_lshl_b32 s82, s82, 2", "s_and_b32 s83, s81, 3", f"s_add_u32 s{S_I}, s82, s83")
    A("s_lshr_b32 s82, s80, 2", "s_mul_i32 s82, s82, 7", "s_lshr_b32 s83, s81, 2", f"s_add_u32 s{S_CT}, s82, s83")
    A(f"s_mul_i32 s82, s{S_I}, {125*1024}")
    srd(A, SRD_X, 'x', 125*1024, off_sgpr='s82')
    A(f"s_cmp_ge_u32 s{S_CT}, 12")
    A("s_cbranch_scc1 L_p1_setup_g")
    for p in range(2):
        A(f"s_lshl_b32 s82, s{S_CT}, 1", f"s_add_u32 s82, s82, {p}")
        A("s_cmp_lt_u32 s82, 16", f"s_cselect_b64 s[84:85], s[{SP['wk']}:{SP['wk']+1}], s[{SP['wv']}:{SP['wv']+1}]")
        A("s_cmp_lt_u32 s82, 8", f"s_cselect_b64 s[84:85], s[{SP['wq']}:{SP['wq']+1}], s[84:85]")
        A("s_and_b32 s83, s82, 7", "s_lshl_b32 s83, s83, 7")
        A("s_sub_u32 s86, 0x80000, s83")
        srd(A, SRD_W[p], 84, 's86', off_sgpr='s83')
        A(f"s_mov_b32 s{S_SH[p]}, 10")
    A(f"s_lshl_b32 s83, s{S_CT}, 7", "s_sub_u32 s86, 0x100000, s83")
    srd(A, SRD_W[2], 'wup', 's86', off_sgpr='s83')
    A(f"s_mov_b32 s{S_SH[2]}, 11")
    A(f"s_lshl_b32 s82, s{S_CT}, 1", f"s_add_u32 s82, s82, s{S_WF}")
    A("s_lshr_b32 s83, s82, 3", "s_lshl_b32 s83, s83, 21", "s_and_b32 s84, s82, 7", "s_lshl_b32 s84, s84, 12")
    A(f"s_add_u32 s{S_DSTA}, s83, s84")
    A("s_cmp_lt_u32 s82, 8", f"s_cselect_b32 s{S_SCA}, {hexf(QSCALE)}, 1.0")
    A(f"s_lshr_b32 s83, s{S_CT}, 3", f"s_mul_i32 s83, s83, {GB - UB}", f"s_and_b32 s84, s{S_CT}, 7", "s_lshl_b32 s84, s84, 7")
    A("s_add_u32 s83, s83, s84", f"s_lshl_b32 s84, s{S_WF}, 6", "s_add_u32 s83, s83, s84", f"s_add_u32 s{S_DSTB}, s83, {hex(UB)}")
    A("s_branch L_p1_setup_done")
    A("L_p1_setup_g:")
    for p in range(3):
        pp = p if p < 2 else 0
        A(f"s_sub_u32 s82, s{S_CT}, 12", "s_lshl_b32 s82, s82, 1", f"s_add_u32 s82, s82, {12 + pp}", "s_lshl_b32 s83, s82, 7")
        A("s_sub_u32 s86, 0x100000, s83")
        srd(A, SRD_W[p], 'wup', 's86', off_sgpr='s83')
        A(f"s_mov_b32 s{S_SH[p]}, 11")
    A(f"s_sub_u32 s82, s{S_CT}, 12", "s_lshl_b32 s82, s82, 1", f"s_add_u32 s82, s82, s{S_WF}", "s_add_u32 s82, s82, 12")
    A("s_and_b32 s84, s82, 7", "s_lshl_b32 s84, s84, 7", f"s_add_u32 s{S_DSTA}, s84, {hex(GB)}")
    A(f"s_mov_b32 s{S_DSTB}, 0", f"s_mov_b32 s{S_SCA}, 1.0")
    A("L_p1_setup_done:")
    dma_addr_setup(A, r, 3)
    A(f"s_mov_b32 s{S_XM}, -1", f"s_cmp_eq_u32 s{S_W}, 3", f"s_cselect_b32 s{S_XM+1}, 0xff, -1")
    l = r['lane']; t0, t1 = r['t0'], r['t1']
    A(f"v_lshrrev_b32 {t0}, 3, {l}", f"v_add_u32 {t0}, 125, {t0}", f"v_lshlrev_b32 {t0}, 7, {t0}")
    A(f"v_and_b32 {t1}, 7, {l}", f"v_lshl_add_u32 {t0}, {t1}, 4, {t0}")
    A(f"s_lshl_b32 s{S_T}, s{S_W}, 14", f"v_add_u32 {t0}, s{S_T}, {t0}")
    ones = r['tmp'].sub(0, 4)
    for q in range(4): A(f"v_mov_b32 {ones[q]}, 0x3f803f80")
    pre = [f"v_cmp_gt_u32 vcc, 24, {l}", "s_and_saveexec_b64 s[92:93], vcc", f"ds_write_b128 {t0}, {ones}", "s_mov_b64 exec, s[92:93]"]
    A.ext(pre)
    read_addr_setup(A, r, [('wf', 0), ('wf', 1), (2, 'wf')])
    t2, t3 = r['t2'], r['t3']
    A(f"s_lshl_b32 s82, s{S_I}, 2", f"s_lshl_b32 s83, s{S_WT}, 1", "s_add_u32 s82, s82, s83", "s_lshl_b32 s82, s82, 15")
    A(f"v_lshlrev_b32 {r['vlin']}, 4, {l}", f"v_add_u32 {r['vlin']}, s82, {r['vlin']}")
    A(f"v_lshrrev_b32 {t2}, 5, {l}", f"v_lshlrev_b32 {t2}, 4, {t2}")
    A(f"s_lshl_b32 s82, s{S_WF}, 8", f"v_add_u32 {r['vcsA']}, s82, {t2}")
    A(f"s_lshl_b32 s82, s{S_WF}, 7", "s_add_u32 s82, s82, 512", f"v_add_u32 {r['vcsB']}, s82, {t2}")
    A(f"v_and_b32 {t0}, 31, {l}", f"s_lshl_b32 s82, s{S_WT}, 6", f"v_add_u32 {t0}, s82, {t0}")
    A(f"s_mul_i32 s83, s{S_I}, 125")
    for tb in range(2):
        A(f"v_add_u32 {t1}, {32*tb}, {t0}")
        A(f"v_add_u32 {t3}, s83, {t1}", f"v_lshlrev_b32 {t3}, 10, {t3}", f"v_add_u32 {t3}, {t3}, {t2}")
        A(f"v_cmp_gt_u32 vcc, 125, {t1}", f"v_mov_b32 {r['vgel'][tb]}, {hex(OOB)}", f"v_cndmask_b32 {r['vgel'][tb]}, {r['vgel'][tb]}, {t3}, vcc")
    A(f"s_lshl_b32 s82, s{S_I}, 10", f"s_add_u32 s82, s82, {hex(XST)}", f"v_lshlrev_b32 {r['vz']}, 3, {t0}", f"v_add_u32 {r['vz']}, s82, {r['vz']}")
    A(f"s_lshl_b32 s82, s{S_I}, 2", f"v_mov_b32 {r['vpoll']}, s82")
    A(f"v_mov_b32 {r['one2'][0]}, 1.0", f"v_mov_b32 {r['one2'][1]}, 1.0")
    c1 = -2.0 * LOG2E * 0.7978845608028654
    A(f"v_mov_b32 {r['c1'][0]}, {hexf(c1)}", f"v_mov_b32 {r['c1'][1]}, {hexf(c1)}")
    A(f"s_mov_b32 s{S_C2}, {hexf(c1*0.044715)}", f"s_mov_b32 s{S_C2+1}, {hexf(c1*0.044715)}")
    pollv = r['t0']
    poll = [f"buffer_load_dword {pollv}, {r['vpoll']}, s[{SRD_DBG}:{SRD_DBG+3}], 0 offen sc1"]
    lp, lq = A.label('poll'), A.label('pollok')
    check = ["s_waitcnt vmcnt(0)", f"v_readfirstlane_b32 s{S_T+1}, {pollv}", "s_nop 3", f"s_cmp_ge_u32 s{S_T+1}, 2", f"s_cbranch_scc1 {lq}",
             f"s_mov_b32 s{S_CNT}, 0x40000", f"{lp}:", "s_sleep 4",
             f"buffer_load_dword {pollv}, {r['vpoll']}, s[{SRD_DBG}:{SRD_DBG+3}], 0 offen sc1", "s_waitcnt vmcnt(0)",
             f"v_readfirstlane_b32 s{S_T+1}, {pollv}", f"s_sub_u32 s{S_CNT}, s{S_CNT}, 1", "s_nop 2", f"s_cmp_eq_u32 s{S_CNT}, 0", f"s_cbranch_scc1 {lq}",
             f"s_cmp_ge_u32 s{S_T+1}, 2", f"s_cbranch_scc0 {lp}", f"{lq}:",
             f"buffer_load_dwordx2 {r['ab'][0]}, {r['vz']}, s[{SRD_WS}:{SRD_WS+3}], 0 offen sc1",
             f"buffer_load_dwordx2 {r['ab'][1]}, {r['vz']}, s[{SRD_WS}:{SRD_WS+3}], 0 offen offset:256 sc1"]
    main_loop(A, r, 3, 3, True, True, {6: poll, ('vm', 7): 1, ('step', 29): check})
    A(f"s_cmp_eq_u32 s{S_WT}, 0", "s_cbranch_scc1 L_p1_nocs")
    A("s_mov_b32 exec_lo, 0x20000000", "s_mov_b32 exec_hi, 0x20000000", "s_nop 7")
    for k in range(3):
        base = r['vcsA'] if k < 2 else r['vcsB']
        for q in range(4):
            A(f"ds_write_b128 {base}, {r['acc'][k][1].sub(4*q,4)} offset:{(128*k if k < 2 else 0) + 32*q}")
    A("s_mov_b64 exec, -1")
    A("L_p1_nocs:")
    A("s_waitcnt lgkmcnt(0)", "s_barrier", "s_waitcnt vmcnt(0)")
    for tb in range(2):
        A(f"v_pk_mul_f32 {r['abs'][tb]}, {r['ab'][tb]}, s[{S_SCA}:{S_SCA+1}] op_sel_hi:[1,0]")
    A(f"s_cmp_ge_u32 s{S_CT}, 12", "s_cbranch_scc1 L_p1_epi_g")
    epi_lin(A, r, 0, pk); epi_lin(A, r, 1, pk); epi_gel(A, r, 2, pk, S_DSTB, 0)
    A("s_endpgm")
    A("L_p1_epi_g:")
    epi_gel(A, r, 0, pk, S_DSTA, 0); epi_gel(A, r, 1, pk, S_DSTA, 64)
    A("s_endpgm")
    A("L_p1_weights:")
    A("s_sub_u32 s81, s81, 28", "s_lshl_b32 s81, s81, 3", "s_add_u32 s81, s81, s80")
    J = 95
    A(f"s_mov_b32 s{J}, s81")
    A(f"s_lshr_b32 s82, s{J}, 1", f"s_mov_b32 s{S_I}, s82", f"s_mul_i32 s82, s82, {125*1024}")
    srd(A, SRD_W[2], 'x', 125*1024, off_sgpr='s82')
    stv = [r['cs'], r['tmp'], R('v', pk[0].idx, 16), st64]
    assert pk[1].idx == pk[0].idx + 8
    A(f"s_and_b32 s83, s{J}, 1", "s_lshl_b32 s83, s83, 6", f"s_lshl_b32 s84, s{S_W}, 4", "s_add_u32 s83, s83, s84")
    rowv = r['vgel']
    for g2 in range(2):
        A(f"v_lshrrev_b32 {rowv[g2]}, 3, {l}", f"v_add_u32 {rowv[g2]}, s83, {rowv[g2]}")
        if g2: A(f"v_add_u32 {rowv[g2]}, 8, {rowv[g2]}")
    for g2 in range(2):
        A(f"v_lshlrev_b32 {t0}, 10, {rowv[g2]}", f"v_and_b32 {t1}, 7, {l}", f"v_lshl_add_u32 {t0}, {t1}, 4, {t0}")
        for jj in range(8):
            q = g2 * 8 + jj
            A(f"buffer_load_dwordx4 {stv[q//4].sub(4*(q%4),4)}, {t0}, s[{SRD_W[2]}:{SRD_W[2]+3}], 0 offen offset:{jj*128}")
        A("s_nop 0")
    A(f"s_lshr_b32 s82, s{J}, 4")
    A("s_cmp_eq_u32 s82, 0", f"s_cselect_b64 s[84:85], s[{SP['wao']}:{SP['wao']+1}], s[{SP['wdn']}:{SP['wdn']+1}]")
    A(f"s_lshr_b32 s83, s{J}, 2", "s_and_b32 s83, s83, 3", "s_lshl_b32 s83, s83, 17")
    srd(A, SRD_X, 84, 131072, off_sgpr='s83')
    for p in range(2):
        A(f"s_lshr_b32 s82, s{J}, 4", "s_lshl_b32 s82, s82, 19", f"s_and_b32 s83, s{J}, 3", "s_lshl_b32 s83, s83, 8")
        A(f"s_add_u32 s83, s83, {128*p}", "s_sub_u32 s86, 0x80000, s83", "s_add_u32 s83, s83, s82")
        srd(A, SRD_W[p], 'wm', 's86', off_sgpr='s83')
        A(f"s_mov_b32 s{S_SH[p]}, 10")
    dma_addr_setup(A, r, 2)
    read_addr_setup(A, r, [('wf', 0), ('wf', 1)])
    st = []
    a1, a2 = r['ab'][0], r['ab'][1]
    onesb = r['one2'][0]
    st.append(f"v_mov_b32 {onesb}, 0x3f803f80")
    st.append("s_waitcnt vmcnt(16)")
    for g2 in range(2):
        sm, sq = (a1[0], a1[1]) if g2 == 0 else (a2[0], a2[1])
        first = True
        for jj in range(8):
            q = g2 * 8 + jj
            for d in range(4):
                x = stv[q//4][4*(q%4) + d]
                st.append(f"v_dot2_f32_bf16 {sm}, {x}, {onesb}, {'0' if first else sm}")
                st.append(f"v_dot2_f32_bf16 {sq}, {x}, {x}, {'0' if first else sq}")
                first = False
    for mod in ["quad_perm:[1,0,3,2]", "quad_perm:[2,3,0,1]", "row_half_mirror"]:
        for x in (a1[0], a1[1], a2[0], a2[1]):
            st.append(f"v_add_f32_dpp {x}, {x}, {x} {mod} row_mask:0xf bank_mask:0xf")
    for g2, ab in enumerate((a1, a2)):
        st += [f"v_mul_f32 {ab[0]}, {hexf(1/512)}, {ab[0]}",
               f"v_mul_f32 {ab[1]}, {hexf(1/512)}, {ab[1]}",
               f"v_fma_f32 {ab[1]}, -{ab[0]}, {ab[0]}, {ab[1]}",
               f"v_max_f32 {ab[1]}, 0, {ab[1]}",
               f"v_add_f32 {ab[1]}, {hexf(1e-5)}, {ab[1]}",
               f"v_rsq_f32 {ab[1]}, {ab[1]}",
               f"v_mul_f32 {t1}, -{ab[0]}, {ab[1]}" if False else f"v_mul_f32 {t1}, {ab[0]}, {ab[1]}",
               f"v_sub_f32 {t1}, 0, {t1}",
               f"v_cmp_gt_u32 vcc, 125, {rowv[g2]}",
               f"v_cndmask_b32 {ab[0]}, 0, {ab[1]}, vcc",
               f"v_cndmask_b32 {ab[1]}, 0, {t1}, vcc",
               f"s_lshl_b32 s82, s{S_I}, 10", f"s_add_u32 s82, s82, {hex(XST)}",
               f"v_lshlrev_b32 {t0}, 3, {rowv[g2]}", f"v_add_u32 {t0}, s82, {t0}",
               f"v_and_b32 {t1}, 7, {l}", f"v_cmp_eq_u32 vcc, 0, {t1}", f"v_mov_b32 {t1}, {hex(OOB)}",
               f"v_cndmask_b32 {t0}, {t1}, {t0}, vcc",
               f"buffer_store_dwordx2 {ab}, {t0}, s[{SRD_WS}:{SRD_WS+3}], 0 offen sc1", "s_nop 1"]
    pub = [f"s_lshl_b32 s82, s{S_I}, 2", f"v_mov_b32 {t0}, s82", f"v_mov_b32 {t1}, 1",
           f"s_cmp_lg_u32 s{S_W}, 0", "s_cbranch_scc1 L_p1_nopub", "s_mov_b64 exec, 1",
           f"buffer_atomic_add {t1}, {t0}, s[{SRD_DBG}:{SRD_DBG+3}], 0 offen", "s_mov_b64 exec, -1", "L_p1_nopub:"]
    weights_loop(A, r, st, pub)
    A(f"s_lshr_b32 s82, s{J}, 4", "s_lshl_b32 s82, s82, 19", f"s_add_u32 s82, s82, {hex(WAMF)}")
    A(f"s_and_b32 s83, s{J}, 3", "s_lshl_b32 s83, s83, 2", f"s_lshl_b32 s84, s{S_WF}, 1", "s_add_u32 s83, s83, s84", "s_lshl_b32 s83, s83, 15")
    A("s_add_u32 s82, s82, s83")
    A(f"s_lshr_b32 s83, s{J}, 2", "s_and_b32 s83, s83, 3", "s_lshl_b32 s83, s83, 2", f"s_lshl_b32 s84, s{S_WT}, 1", "s_add_u32 s83, s83, s84", "s_lshl_b32 s83, s83, 11")
    A("s_add_u32 s82, s82, s83")
    A(f"v_lshlrev_b32 {r['vlin']}, 4, {l}")
    for k in range(2):
        for tb in range(2):
            d = pk[tb]
            pack_block(A, r, r['acc'][k][tb], d)
            A(f"s_add_u32 s{S_T}, s82, {k*32768 + tb*2048}")
            for hf in range(2):
                A(f"buffer_store_dwordx4 {d.sub(4*hf,4)}, {r['vlin']}, s[{SRD_WS}:{SRD_WS+3}], s{S_T} offen offset:{hf*1024}")
    A("L_EXIT_p1:")
    A("s_endpgm")
    return A, V.hi

def weights_loop(A, r, st, pub):
    pre = ["s_waitcnt vmcnt(16)", "s_barrier"] + list(pub)
    main_loop(A, r, 2, 2, False, False, {'mid': list(st), 'pre': pre})
```

```python
from common import *

S_W = 28; SRD_WS = 32; SRD_DW = 36
S_B, S_A0, S_B0, S_DST, S_STAT = 40, 41, 42, 43, 44
S_T = 48
S_M0 = 60; S_SA = 61; S_SB = 62

def gemm(A, r, extra_after=None):
    l16 = r['l16']
    def group(g):
        G = [[f"s_add_u32 s{S_SA}, s{S_A0}, {g*4096}", f"s_add_u32 s{S_SB}, s{S_B0}, {g*4096}", f"s_add_u32 m0, s{S_M0}, {g*4096}"]]
        for j in range(4):
            G.append([f"buffer_load_dwordx4 {l16}, s[{SRD_WS}:{SRD_WS+3}], s{S_SA} offen offset:{j*1024} lds"])
            G.append([f"buffer_load_dwordx4 {R('a', 4*(4*g+j), 4)}, {l16}, s[{SRD_WS}:{SRD_WS+3}], s{S_SB} offen offset:{j*1024}"])
        return G
    def reads(ks):
        b = ks & 1
        return [f"ds_read_b128 {r['fa'][b][mb]}, {r['va'][mb >> 1]} offset:{(mb & 1)*32768 + ks*1024}" for mb in range(4)]
    for g in range(7):
        for x in group(g): A.ext(x)
    A("s_waitcnt vmcnt(48)", "s_barrier")
    A.ext(reads(0))
    pend = group(7)
    for ks in range(32):
        b = ks & 1
        M = [mfma(r['acc'][mb], r['fa'][b][mb], R('a', 4*ks, 4), '0' if ks == 0 else None) for mb in range(4)]
        A("s_waitcnt lgkmcnt(0)")
        rd = reads(ks + 1) if ks < 31 else []
        if (ks & 3) == 3 and ks < 31:
            g = (ks >> 2) + 1
            A(M[0])
            A(f"s_waitcnt vmcnt({8*(7-g)})", "s_barrier")
            A.ext(interleave(M[1:], rd))
        else:
            seq = []
            for i, m in enumerate(M):
                seq.append(m)
                if i < 3 and rd: seq.append(rd[i])
                if i == 2 and rd: seq.append(rd[3])
                if pend and ks < 3:
                    n = 3 if ks < 2 else len(pend)
                    for _ in range(min(len(pend), 1 if ks < 2 else 2)): seq += pend.pop(0)
            A.ext(seq)
    assert not pend

def store_frags(A, r, pk):
    for mb in range(4):
        d = pk[mb & 1]; acc = r['acc'][mb]
        for i in range(8): A(f"v_cvt_pk_bf16_f32 {d[i]}, {acc[2*i]}, {acc[2*i+1]}")
        if mb % 2 == 0: A(f"s_add_u32 s{S_T}, s{S_DST}, {mb*2048}")
        for hf in range(2):
            A(f"buffer_store_dwordx4 {d.sub(4*hf,4)}, {r['l16']}, s[{SRD_WS}:{SRD_WS+3}], s{S_T} offen offset:{(mb & 1)*2048 + hf*1024}")

def build():
    A = KAsm('p2')
    V = Alloc('v', 1, 256)
    r = {}
    for n in ['lane', 'l16', 't0', 't1', 't2', 't3']: r[n] = V(1)
    base = V.mark()
    r['va'] = V(2, 1)
    r['acc'] = [V(16, 4) for _ in range(4)]
    r['fa'] = [[V(4) for _ in range(4)] for _ in range(2)]
    pk = [V(8, 4), V(8, 4)]
    mx = V(2); sm = V(4); st2 = V(2)
    hi_gemm = V.hi
    l = r['lane']; t0, t1, t2, t3 = r['t0'], r['t1'], r['t2'], r['t3']
    prologue(A, 256)
    A(f"v_and_b32 {l}, 63, v0", f"v_lshrrev_b32 {t0}, 6, v0", f"v_lshlrev_b32 {r['l16']}, 4, {l}")
    A(f"v_readfirstlane_b32 s{S_W}, {t0}")
    A("s_and_b32 s48, s2, 7", "s_lshr_b32 s49, s2, 3", f"s_lshr_b32 s{S_B}, s48, 2")
    A("s_waitcnt lgkmcnt(0)")
    srd(A, SRD_WS, 'ws', WS_END)
    A("s_cmp_ge_u32 s49, 24", "s_cbranch_scc1 L_p2_conv")
    A(f"v_add_u32 {r['va'][1]}, 0x10000, {r['l16']}", f"v_mov_b32 {r['va'][0]}, {r['l16']}")
    A(f"s_lshl_b32 s{S_M0}, s{S_W}, 15")
    A("s_cmp_ge_u32 s49, 16", "s_cbranch_scc1 L_p2_vsetup")
    A("s_and_b32 s50, s48, 1", "s_lshl_b32 s50, s50, 2", "s_and_b32 s51, s49, 3", "s_add_u32 s50, s50, s51")
    A("s_lshr_b32 s51, s48, 1", "s_and_b32 s51, s51, 1", "s_lshl_b32 s51, s51, 2", "s_lshr_b32 s52, s49, 2", "s_add_u32 s51, s51, s52")
    A(f"s_lshl_b32 s52, s{S_B}, 3", "s_add_u32 s53, s52, s51", "s_lshl_b32 s53, s53, 2", f"s_add_u32 s53, s53, s{S_W}", "s_lshl_b32 s53, s53, 15")
    A(f"s_add_u32 s{S_A0}, s53, {hex(KF)}")
    A("s_add_u32 s53, s52, s50", "s_lshl_b32 s53, s53, 2", f"s_add_u32 s53, s53, s{S_W}")
    A("s_lshl_b32 s54, s53, 15", f"s_add_u32 s{S_B0}, s54, {hex(QF)}")
    A("s_lshl_b32 s54, s53, 16", "s_lshl_b32 s55, s51, 13", "s_add_u32 s54, s54, s55", f"s_add_u32 s{S_DST}, s54, {hex(PF)}")
    A("s_add_u32 s54, s52, s51", "s_lshl_b32 s54, s54, 10", "s_lshl_b32 s55, s50, 7", "s_add_u32 s54, s54, s55", f"s_lshl_b32 s55, s{S_W}, 5", "s_add_u32 s54, s54, s55")
    A("s_lshl_b32 s54, s54, 3", f"s_add_u32 s{S_STAT}, s54, {hex(SM)}")
    gemm(A, r)
    acc = r['acc']
    A(f"v_cmp_lt_u32 vcc, 31, {l}", f"v_mov_b32 {t0}, 0xff800000")
    for q in (13, 14, 15): A(f"v_cndmask_b32 {acc[3][q]}, {acc[3][q]}, {t0}, vcc")
    flat = [acc[mb][i] for mb in range(4) for i in range(16)]
    A(f"v_max3_f32 {mx[0]}, {flat[0]}, {flat[1]}, {flat[2]}", f"v_max3_f32 {mx[1]}, {flat[3]}, {flat[4]}, {flat[5]}")
    k = 6
    while k + 3 < 64:
        A(f"v_max3_f32 {mx[0]}, {mx[0]}, {flat[k]}, {flat[k+1]}", f"v_max3_f32 {mx[1]}, {mx[1]}, {flat[k+2]}, {flat[k+3]}")
        k += 4
    A(f"v_max3_f32 {mx[0]}, {mx[0]}, {flat[62]}, {flat[63]}")
    A(f"v_max_f32 {mx[0]}, {mx[0]}, {mx[1]}", f"v_mov_b32 {mx[1]}, {mx[0]}")
    A(f"v_permlane32_swap_b32 {mx[0]}, {mx[1]}", f"v_max_f32 {mx[0]}, {mx[0]}, {mx[1]}")
    for mb in range(4):
        a_ = acc[mb]
        for i in range(8):
            A(f"v_pk_add_f32 {a_.sub(2*i,2)}, {a_.sub(2*i,2)}, {mx} op_sel_hi:[1,0] neg_lo:[0,1] neg_hi:[0,1]")
        for i in range(16): A(f"v_exp_f32 {a_[i]}, {a_[i]}")
        for i in range(8):
            s_ = sm.sub(2*(i & 1), 2)
            if mb == 0 and i < 2: A(f"v_pk_add_f32 {s_}, {a_.sub(2*i,2)}, {a_.sub(2*(i+2),2)}")
            elif mb == 0 and i < 4: continue
            else: A(f"v_pk_add_f32 {s_}, {s_}, {a_.sub(2*i,2)}")
        d = pk[mb & 1]
        for i in range(8): A(f"v_cvt_pk_bf16_f32 {d[i]}, {a_[2*i]}, {a_[2*i+1]}")
        if mb % 2 == 0: A(f"s_add_u32 s{S_T}, s{S_DST}, {mb*2048}")
        for hf in range(2):
            A(f"buffer_store_dwordx4 {d.sub(4*hf,4)}, {r['l16']}, s[{SRD_WS}:{SRD_WS+3}], s{S_T} offen offset:{(mb & 1)*2048 + hf*1024}")
    A(f"v_pk_add_f32 {sm.sub(0,2)}, {sm.sub(0,2)}, {sm.sub(2,2)}", f"v_add_f32 {sm[0]}, {sm[0]}, {sm[1]}", f"v_mov_b32 {sm[1]}, {sm[0]}")
    A(f"v_permlane32_swap_b32 {sm[0]}, {sm[1]}", f"v_add_f32 {st2[1]}, {sm[0]}, {sm[1]}", f"v_mov_b32 {st2[0]}, {mx[0]}")
    A(f"v_lshlrev_b32 {t0}, 3, {l}", f"v_mov_b32 {t1}, {hex(OOB)}", f"v_cmp_gt_u32 vcc, 32, {l}", f"v_cndmask_b32 {t0}, {t1}, {t0}, vcc")
    A(f"buffer_store_dwordx2 {st2}, {t0}, s[{SRD_WS}:{SRD_WS+3}], s{S_STAT} offen")
    A("s_endpgm")
    A("L_p2_vsetup:")
    A("s_sub_u32 s49, s49, 16", "s_and_b32 s50, s48, 3", "s_lshl_b32 s50, s50, 1", "s_and_b32 s51, s49, 1", "s_add_u32 s50, s50, s51")
    A("s_lshr_b32 s51, s49, 1")
    A(f"s_lshl_b32 s52, s{S_B}, 3", "s_add_u32 s53, s52, s50", "s_lshl_b32 s53, s53, 2", f"s_add_u32 s53, s53, s{S_W}", "s_lshl_b32 s53, s53, 15")
    A(f"s_add_u32 s{S_A0}, s53, {hex(VF)}")
    A("s_lshl_b32 s53, s51, 2", f"s_add_u32 s53, s53, s{S_W}")
    A("s_lshl_b32 s54, s53, 15", f"s_add_u32 s{S_B0}, s54, {hex(WAMF)}")
    A(f"s_lshl_b32 s54, s{S_B}, 4", "s_add_u32 s54, s54, s53", "s_lshl_b32 s54, s54, 16", "s_lshl_b32 s55, s50, 13", "s_add_u32 s54, s54, s55")
    A(f"s_add_u32 s{S_DST}, s54, {hex(V2F)}")
    gemm(A, r)
    store_frags(A, r, pk)
    A("s_endpgm")
    A("L_p2_conv:")
    V.reset(base)
    stg = V(64, 4); gcol = V(62, 1); wp = V(62, 2); par = [V(4) for _ in range(4)]; gn = [V(2), V(2)]
    ab = V(2); vt4 = V(1); vlw = V(1); vlr = V(1); msk = V(1)
    acc = stg
    SRDW = f"s[{SRD_WS}:{SRD_WS+3}]"
    srd(A, SRD_DW, 'dw', 31 * 1024)
    A("s_sub_u32 s49, s49, 24", "s_and_b32 s50, s48, 3", "s_lshl_b32 s50, s50, 1", "s_lshr_b32 s51, s49, 2", "s_add_u32 s50, s50, s51")
    A("s_and_b32 s51, s49, 3")
    A("s_mul_i32 s52, s50, 125", "s_lshl_b32 s53, s51, 5", "s_add_u32 s52, s52, s53")
    A(f"s_mul_i32 s53, s{S_B}, 1000", "s_add_u32 s53, s53, s52", "s_lshl_b32 s53, s53, 10")
    S_G, S_U, S_T0 = 56, 57, 58
    A(f"s_add_u32 s{S_G}, s53, {hex(GB - 15*1024)}", f"s_add_u32 s{S_U}, s53, {hex(UB)}", f"s_mov_b32 s{S_T0}, s52")
    A(f"s_lshl_b32 s53, s{S_B}, 3", "s_add_u32 s53, s53, s50", "s_lshl_b32 s53, s53, 2", "s_add_u32 s53, s53, s51", "s_lshl_b32 s53, s53, 15")
    A(f"s_add_u32 s{S_DST}, s53, {hex(UCF)}")
    A(f"v_lshrrev_b32 {t0}, 2, {l}", f"s_lshl_b32 s53, s{S_W}, 4", f"v_add_u32 {t0}, s53, {t0}")
    A(f"v_and_b32 {t1}, 3, {l}", f"v_lshlrev_b32 {t2}, 10, {t0}", f"v_lshl_add_u32 {t2}, {t1}, 4, {t2}")
    for jj in range(16):
        A(f"buffer_load_dwordx4 {stg.sub(4*jj,4)}, {t2}, {SRDW}, s{S_G} offen offset:{jj*64}")
    A(f"v_lshlrev_b32 {vt4}, 2, v0")
    def gload(s_):
        L = []
        if s_ % 4 == 0: L.append(f"s_add_u32 s{S_SA}, s{S_G}, {s_*1024}")
        L.append(f"buffer_load_dword {gcol[s_]}, {vt4}, {SRDW}, s{S_SA} offen offset:{(s_ % 4)*1024}")
        return L
    for s_ in range(44): A.ext(gload(s_))
    A(f"v_mov_b32 {msk}, 0x3f803f80")
    A("s_waitcnt vmcnt(44)")
    for jj in range(16):
        for d in range(4):
            x = stg[4*jj + d]; first = jj == 0 and d == 0
            A(f"v_dot2_f32_bf16 {ab[0]}, {x}, {msk}, {'0' if first else ab[0]}")
            A(f"v_dot2_f32_bf16 {ab[1]}, {x}, {x}, {'0' if first else ab[1]}")
    for mod in ["quad_perm:[1,0,3,2]", "quad_perm:[2,3,0,1]"]:
        for x in (ab[0], ab[1]): A(f"v_add_f32_dpp {x}, {x}, {x} {mod} row_mask:0xf bank_mask:0xf")
    A(f"v_mul_f32 {ab[0]}, {hexf(1/512)}, {ab[0]}", f"v_mul_f32 {ab[1]}, {hexf(1/512)}, {ab[1]}",
      f"v_fma_f32 {ab[1]}, -{ab[0]}, {ab[0]}, {ab[1]}", f"v_max_f32 {ab[1]}, 0, {ab[1]}", f"v_add_f32 {ab[1]}, {hexf(1e-5)}, {ab[1]}",
      f"v_rsq_f32 {ab[1]}, {ab[1]}", f"v_mul_f32 {t2}, {ab[0]}, {ab[1]}", f"v_sub_f32 {t2}, 0, {t2}")
    A(f"s_sub_u32 s53, s{S_T0}, 15", f"v_add_u32 {t3}, s53, {t0}", f"v_cmp_gt_u32 vcc, 1000, {t3}")
    A(f"v_cndmask_b32 {ab[0]}, 0, {ab[1]}, vcc", f"v_cndmask_b32 {ab[1]}, 0, {t2}, vcc")
    A(f"v_lshlrev_b32 {t2}, 3, {t0}", f"v_cmp_eq_u32 vcc, 0, {t1}", "s_and_saveexec_b64 s[54:55], vcc")
    A(f"ds_write_b64 {t2}, {ab}", "s_mov_b64 exec, s[54:55]")
    A("s_waitcnt vmcnt(12)")
    for s_ in range(44, 62): A.ext(gload(s_))
    for i in range(31):
        if i % 4 == 0: A(f"s_mov_b32 s{S_SB}, {i*1024}")
        A(f"buffer_load_dword {wp[2*i+1]}, {vt4}, s[{SRD_DW}:{SRD_DW+3}], s{S_SB} offen offset:{(i % 4)*1024}")
    A(f"v_mov_b32 {msk}, 0xffff0000", f"v_mov_b32 {t0}, 0")
    PARB = 0
    A("s_waitcnt lgkmcnt(0)", "s_barrier")
    def pread(p): return f"ds_read_b128 {par[p % 4]}, {t0} offset:{PARB + p*16}"
    for p in range(3): A(pread(p))
    A("s_waitcnt vmcnt(0)")
    for i in range(31):
        A(f"v_lshlrev_b32 {wp[2*i]}, 16, {wp[2*i+1]}", f"v_and_b32 {wp[2*i+1]}, {msk}, {wp[2*i+1]}")
    def uload(t):
        L = []
        if t % 4 == 0: L.append(f"s_add_u32 s{S_SA}, s{S_U}, {t*1024}")
        L.append(f"buffer_load_dword {gcol[t]}, {vt4}, {SRDW}, s{S_SA} offen offset:{(t % 4)*1024}")
        return L
    for s_ in range(62):
        p = s_ >> 1
        if s_ % 2 == 0:
            A(f"s_waitcnt lgkmcnt({min(2, 30 - p)})")
        g = gn[s_ & 1]; pr = par[p % 4].sub(2*(s_ & 1), 2)
        A(f"v_lshlrev_b32 {g[0]}, 16, {gcol[s_]}", f"v_and_b32 {g[1]}, {msk}, {gcol[s_]}")
        A(f"v_pk_fma_f32 {g}, {g}, {pr}, {pr} op_sel:[0,0,1] op_sel_hi:[1,0,1]")
        if s_ % 2 == 1 and p + 3 <= 30: A(pread(p + 3))
        if s_ >= 30 and s_ - 30 < 32: A.ext(uload(s_ - 30))
        for t in range(max(0, s_ - 30), min(31, s_) + 1):
            i = s_ - t; a_ = acc.sub(2*t, 2); w_ = wp.sub(2*i, 2)
            if i == 0: A(f"v_pk_mul_f32 {a_}, {g}, {w_}")
            else: A(f"v_pk_fma_f32 {a_}, {g}, {w_}, {a_}")
    UCB = 1024
    A(f"v_add_u32 {vlw}, {UCB}, {vt4}")
    A("s_waitcnt vmcnt(0)")
    for t in range(32):
        g = gn[t & 1]; a_ = acc.sub(2*t, 2)
        A(f"v_lshlrev_b32 {g[0]}, 16, {gcol[t]}", f"v_and_b32 {g[1]}, {msk}, {gcol[t]}")
        A(f"v_pk_mul_f32 {a_}, {a_}, {g}")
        A(f"v_cvt_pk_bf16_f32 {gcol[t]}, {a_[0]}, {a_[1]}")
        A(f"ds_write_b32 {vlw}, {gcol[t]} offset:{t*1032}")
    A(f"v_and_b32 {t0}, 31, {l}", f"v_mul_u32_u24 {t0}, 1032, {t0}", f"v_lshrrev_b32 {t1}, 5, {l}", f"v_lshl_add_u32 {t0}, {t1}, 3, {t0}")
    A(f"s_lshl_b32 s53, s{S_W}, 8", f"s_add_u32 s53, s53, {UCB}", f"v_add_u32 {vlr}, s53, {t0}")
    A("s_waitcnt lgkmcnt(0)", "s_barrier")
    for k in range(8):
        A(f"ds_read2_b64 {wp.sub(4*k,4)}, {vlr} offset0:{4*k} offset1:{4*k+2}")
    A(f"s_lshl_b32 s53, s{S_W}, 13", f"s_add_u32 s{S_DST}, s{S_DST}, s53")
    for k in range(8):
        A(f"s_waitcnt lgkmcnt({7-k})")
        if k % 4 == 0: A(f"s_add_u32 s{S_T}, s{S_DST}, {k*1024}")
        A(f"buffer_store_dwordx4 {wp.sub(4*k,4)}, {r['l16']}, {SRDW}, s{S_T} offen offset:{(k % 4)*1024}")
    A("L_EXIT_p2:")
    A("s_endpgm")
    return A, max(V.hi, hi_gemm), 128
```

```python
from common import *

LDS = 163840
S_W = 28; SRD_WS = 32; SRD_X = 36; SRD_O = 40
S_WD, S_WQ, S_SRC1, S_SRC2, S_M0, S_SO, S_B = 44, 45, 46, 47, 48, 49, 50
S_T = 52
NST = 5; NCH = 12

def build():
    A = KAsm('p3')
    V = Alloc('v', 1, 256)
    r = {}
    for n in ['lane', 'l16', 't0', 't1', 't2', 't3', 'vx', 'vo', 'mg', 'li']: r[n] = V(1)
    va = V(3, 1); vb = V(3, 1)
    stt = V(16, 2)
    xr = V(8, 2)
    acc = V(16, 4); accc = V(16, 4); tmp = [V(16, 4), V(16, 4)]
    fa = [V(4), V(4)]; fb = [V(4), V(4)]
    pk = V(8, 4); xf = V(16, 2)
    l = r['lane']; t0, t1, t2, t3 = r['t0'], r['t1'], r['t2'], r['t3']
    WS = f"s[{SRD_WS}:{SRD_WS+3}]"
    prologue(A, 256)
    A(f"v_and_b32 {l}, 63, v0", f"v_lshrrev_b32 {t0}, 6, v0", f"v_lshlrev_b32 {r['l16']}, 4, {l}")
    A(f"v_readfirstlane_b32 s{S_W}, {t0}")
    A("s_and_b32 s52, s2, 7", "s_lshr_b32 s53, s2, 3", f"s_lshr_b32 s{S_B}, s52, 2")
    A("s_and_b32 s54, s52, 3", "s_lshl_b32 s54, s54, 2", "s_and_b32 s55, s53, 3", "s_add_u32 s54, s54, s55")
    A("s_lshr_b32 s55, s53, 2")
    A(f"s_and_b32 s{S_WD}, s{S_W}, 1", f"s_lshr_b32 s{S_WQ}, s{S_W}, 1")
    A("s_waitcnt lgkmcnt(0)")
    srd(A, SRD_WS, 'ws', WS_END); srd(A, SRD_X, 'x', XBYTES); srd(A, SRD_O, 'out', XBYTES)
    A(f"s_cmp_ge_u32 s{S_W}, 2", "s_cbranch_scc1 L_p3_bsrc")
    A("s_lshl_b32 s56, s55, 1", f"s_add_u32 s56, s56, s{S_W}")
    A(f"s_lshl_b32 s57, s{S_B}, 4", "s_add_u32 s57, s57, s56", "s_lshl_b32 s57, s57, 16", f"s_add_u32 s{S_SRC1}, s57, {hex(V2F)}")
    A("s_lshl_b32 s57, s56, 15", f"s_add_u32 s{S_SRC2}, s57, {hex(WDMF)}")
    A("s_branch L_p3_srcdone")
    A("L_p3_bsrc:")
    A("s_lshl_b32 s56, s54, 1", f"s_add_u32 s56, s56, s{S_W}", "s_sub_u32 s56, s56, 2", f"s_lshl_b32 s57, s{S_B}, 5", "s_add_u32 s56, s56, s57")
    A("s_lshl_b32 s57, s56, 16", f"s_add_u32 s{S_SRC1}, s57, {hex(PF)}")
    A("s_lshl_b32 s57, s56, 15", f"s_add_u32 s{S_SRC2}, s57, {hex(UCF)}")
    A("L_p3_srcdone:")
    A(f"s_lshl_b32 s{S_M0}, s{S_W}, 13")
    A(f"s_lshl_b32 s56, s{S_B}, 13", "s_lshl_b32 s57, s54, 6", "s_add_u32 s56, s56, s57", f"s_lshl_b32 s57, s{S_WQ}, 5", "s_add_u32 s56, s56, s57")
    A("s_lshl_b32 s56, s56, 3", f"s_add_u32 s56, s56, {hex(SM)}")
    A(f"v_and_b32 {t0}, 31, {l}", f"v_lshlrev_b32 {t1}, 3, {t0}")
    for j in range(8):
        A(f"s_add_u32 s57, s56, {j*8192}")
        A(f"buffer_load_dwordx2 {stt.sub(2*j,2)}, {t1}, {WS}, s57 offen")
    A("s_and_b32 s56, s54, 1", "s_lshl_b32 s56, s56, 6", f"s_lshl_b32 s57, s{S_WQ}, 5", "s_add_u32 s56, s56, s57", f"v_add_u32 {t0}, s56, {t0}")
    A(f"s_lshl_b32 s56, s{S_B}, 3", "s_lshr_b32 s57, s54, 1", "s_add_u32 s56, s56, s57", "s_mul_i32 s56, s56, 125")
    A(f"v_add_u32 {t1}, s56, {t0}", f"v_lshlrev_b32 {t1}, 10, {t1}")
    A("s_lshl_b32 s56, s55, 7", f"s_lshl_b32 s57, s{S_WD}, 6", "s_add_u32 s56, s56, s57", f"v_add_u32 {t1}, s56, {t1}")
    A(f"v_lshrrev_b32 {t2}, 5, {l}")
    A(f"v_lshl_add_u32 {r['vx']}, {t2}, 3, {t1}", f"v_lshl_add_u32 {r['vo']}, {t2}, 4, {t1}")
    A(f"v_cmp_gt_u32 vcc, 125, {t0}", f"v_mov_b32 {t3}, {hex(OOB)}")
    A(f"v_cndmask_b32 {r['vx']}, {t3}, {r['vx']}, vcc", f"v_cndmask_b32 {r['vo']}, {t3}, {r['vo']}, vcc")
    for q in range(4):
        A(f"buffer_load_dwordx2 {xr.sub(2*q,2)}, {r['vx']}, s[{SRD_X}:{SRD_X+3}], 0 offen offset:{16*q}")
    def dma(c):
        st = c % NST
        src, off = (S_SRC1, c * 8192) if c < 8 else (S_SRC2, (c - 8) * 8192)
        G = []
        for hf in range(2):
            G.append([f"s_add_u32 s{S_SO}, s{src}, {off + hf*4096}", f"s_add_u32 m0, s{S_M0}, {st*32768 + hf*4096}"])
            for j in range(4):
                G.append([f"buffer_load_dwordx4 {r['l16']}, {WS}, s{S_SO} offen offset:{j*1024} lds"])
        return G
    for c in range(NST):
        for g in dma(c): A.ext(g)
    A(f"s_lshl_b32 s56, s{S_WD}, 13", f"s_lshl_b32 s57, s{S_WQ}, 13", "s_add_u32 s57, s57, 16384")
    for k in range(3):
        A(f"s_add_u32 s58, s56, {k*65536}", f"v_add_u32 {va[k]}, s58, {r['l16']}")
        A(f"s_add_u32 s58, s57, {k*65536}", f"v_add_u32 {vb[k]}, s58, {r['l16']}")
    A(f"s_waitcnt vmcnt({8*NST + 4})")
    mg, li = r['mg'], r['li']
    A(f"v_max3_f32 {mg}, {stt[0]}, {stt[2]}, {stt[4]}", f"v_max3_f32 {mg}, {mg}, {stt[6]}, {stt[8]}",
      f"v_max3_f32 {mg}, {mg}, {stt[10]}, {stt[12]}", f"v_max_f32 {mg}, {mg}, {stt[14]}")
    for j in range(8): A(f"v_sub_f32 {stt[2*j]}, {stt[2*j]}, {mg}")
    for j in range(8): A(f"v_exp_f32 {stt[2*j]}, {stt[2*j]}")
    A(f"v_mul_f32 {li}, {stt[0]}, {stt[1]}")
    for j in range(1, 8): A(f"v_fmac_f32 {li}, {stt[2*j]}, {stt[2*j+1]}")
    A(f"v_rcp_f32 {li}, {li}")
    for j in range(8): A(f"v_mul_f32 {stt[2*j]}, {stt[2*j]}, {li}")
    def reads(g):
        c, k = g >> 3, g & 7; st = c % NST; b = g & 1
        off = (st & 1) * 32768 + k * 1024
        return [f"ds_read_b128 {fa[b]}, {va[st >> 1]} offset:{off}", f"ds_read_b128 {fb[b]}, {vb[st >> 1]} offset:{off}"]
    def fold(c):
        if c == 0: return [f"v_mul_f32 {acc[i]}, {stt[0]}, {tmp[0][i]}" for i in range(16)]
        return [f"v_fmac_f32 {acc[i]}, {stt[2*c]}, {tmp[c & 1][i]}" for i in range(16)]
    A(f"s_waitcnt vmcnt({8*(NST-1)})", "s_barrier")
    A.ext(reads(0))
    pend = []; pfold = []
    for g in range(8 * NCH):
        c, k = g >> 3, g & 7; b = g & 1
        dst = tmp[c & 1] if c < 8 else accc
        first = (k == 0 and c <= 8)
        M = mfma(dst, fa[b], fb[b], '0' if first else None)
        A("s_waitcnt lgkmcnt(0)")
        rd = reads(g + 1) if g + 1 < 8 * NCH else []
        if k == 7 and c < NCH - 1:
            n = c + 1
            issued = min(NCH - 1, max(NST - 1, n + NST - 3))
            A(M)
            A(f"s_waitcnt vmcnt({8*(issued - n)})", "s_barrier")
            A.ext(rd)
            if c >= 1 and c + NST - 1 < NCH: pend = dma(c + NST - 1)
            if c < 8: pfold = fold(c)
        else:
            A(M); A.ext(rd)
            for _ in range(2):
                if pend: A.ext(pend.pop(0))
            if k >= 3 and pfold:
                A.ext(pfold[:4]); pfold = pfold[4:]
    assert not pend and not pfold
    for i in range(8):
        A(f"v_lshlrev_b32 {xf[2*i]}, 16, {xr[i]}", f"v_and_b32 {xf[2*i+1]}, 0xffff0000, {xr[i]}")
    for i in range(8): A(f"v_pk_add_f32 {xf.sub(2*i,2)}, {xf.sub(2*i,2)}, {acc.sub(2*i,2)}")
    for i in range(8): A(f"v_pk_add_f32 {xf.sub(2*i,2)}, {xf.sub(2*i,2)}, {accc.sub(2*i,2)}")
    for i in range(8): A(f"v_cvt_pk_bf16_f32 {pk[i]}, {xf[2*i]}, {xf[2*i+1]}")
    for q in range(2):
        A(f"v_permlane32_swap_b32 {pk[4*q]}, {pk[4*q+2]}", f"v_permlane32_swap_b32 {pk[4*q+1]}, {pk[4*q+3]}")
    for q in range(2):
        A(f"buffer_store_dwordx4 {pk.sub(4*q,4)}, {r['vo']}, s[{SRD_O}:{SRD_O+3}], 0 offen offset:{32*q}")
    A("L_EXIT_p3:")
    A("s_endpgm")
    return A, V.hi, 0
```

```python
import sys
sys.path.insert(0, 'gen')
import common
if 'diag' in sys.argv: common.DIAG = True
if 'prolog' in sys.argv: common.PROLOG = True
import build, p1, p2
parts = []
A1, h1 = p1.build(); parts.append(('p1_kernel', (A1, h1, 0)))
A2, h2, ag = p2.build(); parts.append(('p2_kernel', (A2, h2, ag)))
try:
    import p3
    A3, h3, ag3 = p3.build(); parts.append(('p3_kernel', (A3, h3, ag3)))
except ImportError:
    pass
hdr = open('standalone__conformer_family_branchformer__speech.s.ref').read().split('; Override launch')[0]
launch = "; @launch kernel=p1_kernel grid=(256,1,1) block=(256,1,1) lds=163840\n; @launch kernel=p2_kernel grid=(256,1,1) block=(256,1,1) lds=131072\n; @launch kernel=p3_kernel grid=(256,1,1) block=(256,1,1) lds=%d\n" % (getattr(sys.modules.get('p3'), 'LDS', 0))
src = build.build(parts, hdr + launch)
out = sys.argv[1] if len(sys.argv) > 1 else 'all.s'
open(out, 'w').write(src)
```

```python
from asmlib import *

KA = dict(x=0, wq=8, wk=16, wv=24, wao=32, wup=40, dw=48, wdn=56, wm=64, out=72, dbg=80, ws=88)
SP = dict(x=4, wq=6, wk=8, wv=10, wao=12, wup=14, dw=16, wdn=18, wm=20, out=22, dbg=24, ws=26)

QF   = 0x000000
KF   = 0x200000
VF   = 0x400000
UB   = 0x600000
GB   = UB + 2000 * 1024
WAMF = GB + 2000 * 1024
WDMF = WAMF + 0x80000
XST  = 0xB00000
PF   = 0xC00000
V2F  = 0x1000000
UCF  = 0x1200000
SM   = 0x1400000
WS_END = 0x1440000
OOB  = 0x7ff00000

XBYTES = 2000 * 1024
LOG2E = 1.4426950408889634
QSCALE = 512 ** -0.5 * LOG2E

import struct
def f2u(x): return struct.unpack('<I', struct.pack('<f', x))[0]
def hexf(x): return hex(f2u(x))

def prologue(A, nwg):
    A(f"s_cmp_ge_u32 s2, {nwg}")
    A("s_cbranch_scc1 L_EXIT_%s" % A.tag)
    A("s_load_dwordx16 s[4:19], s[0:1], 0")
    A("s_load_dwordx8 s[20:27], s[0:1], 64")

def srd(A, dst, ptr, size, off_sgpr=None, off_imm=0):
    p = SP[ptr] if isinstance(ptr, str) else ptr
    if off_sgpr is None and off_imm == 0:
        A(f"s_mov_b32 s{dst}, s{p}")
        A(f"s_and_b32 s{dst+1}, s{p+1}, 0xffff")
    else:
        if off_sgpr is not None:
            A(f"s_add_u32 s{dst}, s{p}, {off_sgpr}")
            A(f"s_addc_u32 s{dst+1}, s{p+1}, 0")
            if off_imm:
                A(f"s_add_u32 s{dst}, s{dst}, {hex(off_imm)}")
                A(f"s_addc_u32 s{dst+1}, s{dst+1}, 0")
        else:
            A(f"s_add_u32 s{dst}, s{p}, {hex(off_imm)}")
            A(f"s_addc_u32 s{dst+1}, s{p+1}, 0")
        A(f"s_and_b32 s{dst+1}, s{dst+1}, 0xffff")
    A(f"s_mov_b32 s{dst+2}, {hex(size) if isinstance(size, int) else size}")
    A(f"s_mov_b32 s{dst+3}, 0x20000")

def mfma(d, a_, b_, c=None):
    return f"v_mfma_f32_32x32x16_bf16 {d}, {a_}, {b_}, {d if c is None else c}"

class KAsm(Asm):
    def __init__(self, tag): super().__init__(); self.tag = tag; self._n = 0
    def label(self, base):
        self._n += 1
        return f"L_{self.tag}_{base}_{self._n}"

STAMP = 0x1420000
DIAG = False
PROLOG = False
def stamp(A, k):
    if DIAG:
        A("s_memrealtime s[92:93]", "s_waitcnt lgkmcnt(0)", f"s_mov_b32 s{94+2*k}, s92")
        A("s_memtime s[92:93]", "s_waitcnt lgkmcnt(0)", f"s_mov_b32 s{95+2*k}, s92")
def stamp_flush(A, kidx, srd_ws, vt0, vt1, novm=False):
    if not DIAG: return
    lab = A.label('nostamp')
    if not novm: A("s_waitcnt vmcnt(0)")
    stamp(A, 3)
    A("s_cmp_lg_u32 s28, 0", f"s_cbranch_scc1 {lab}")
    A(f"s_lshl_b32 s93, s2, 5", f"s_add_u32 s93, s93, {hex(STAMP + kidx*8192)}")
    A("s_mov_b64 exec, 1")
    for k in range(4):
        A(f"v_mov_b32 {vt0}, s{94+2*k}", f"v_mov_b32 {vt1}, s{95+2*k}", f"v_mov_b32 v0, 0")
        A(f"buffer_store_dwordx2 v[{vt0.idx}:{vt0.idx+1}], v0, s[{srd_ws}:{srd_ws+3}], s93 offen offset:{8*k}", "s_nop 1")
    A(f"{lab}:")
```

```python
from common import *
import common

S_W, S_WT, S_WF, S_T0 = 28, 29, 30, 31
SRD_X = 32; SRD_W = [36, 40, 44]; SRD_WS = 48; SRD_DBG = 52
S_KW = [56, 57, 58]; S_KSTEP = [59, 60, 61]; S_KX = 62; S_M0X = 63; S_M0W = 64
S_XM = 66
S_I = 68; S_CT = 69
S_DSTA = 70; S_DSTB = 71; S_SCA = 72
S_SH = [73, 74, 75]
S_T = 80
S_C2 = 90
S_CNT = 79

XREG, WREG = 0, 65536
XST_B, WST_B = 16384, 24576

def lane_setup(A, V, r):
    A(f"v_and_b32 {r['lane']}, 63, v0")
    A(f"v_lshrrev_b32 {r['t0']}, 6, v0")
    A("s_nop 0")
    A(f"v_readfirstlane_b32 s{S_W}, {r['t0']}")
    A(f"s_lshr_b32 s{S_WT}, s{S_W}, 1")
    A(f"s_and_b32 s{S_WF}, s{S_W}, 1")

def dma_addr_setup(A, r, nslots):
    l = r['lane']; t0, t1, t2, t3 = r['t0'], r['t1'], r['t2'], r['t3']
    A(f"v_lshrrev_b32 {t0}, 3, {l}")
    A(f"v_lshrrev_b32 {t1}, 4, {l}")
    A(f"v_and_b32 {t2}, 7, {l}")
    A(f"v_xor_b32 {t3}, {t2}, {t1}")
    A(f"s_lshl_b32 s{S_T}, s{S_W}, 5")
    A(f"v_add_u32 {t0}, s{S_T}, {t0}")
    for j in range(4):
        d = r['vx_dma'][j]
        A(f"v_add_u32 {d}, {8*j}, {t0}")
        A(f"v_lshlrev_b32 {d}, 10, {d}")
        if j % 2 == 0: A(f"v_lshl_add_u32 {d}, {t3}, 4, {d}")
        else:
            A(f"v_xor_b32 {t1}, 4, {t3}")
            A(f"v_lshl_add_u32 {d}, {t1}, 4, {d}")
    A(f"v_lshrrev_b32 {t0}, 3, {l}")
    A(f"s_lshl_b32 s{S_T}, s{S_W}, 4")
    A(f"v_add_u32 {t0}, s{S_T}, {t0}")
    A(f"v_lshrrev_b32 {t1}, 4, {l}")
    A(f"v_and_b32 {t1}, 1, {t1}")
    A(f"v_lshlrev_b32 {t1}, 2, {t1}")
    A(f"v_xor_b32 {t1}, {t1}, {t2}")
    A(f"v_lshlrev_b32 {t1}, 4, {t1}")
    for p in range(nslots):
        for j in range(2):
            d = r['vw_dma'][2*p+j]
            A(f"v_add_u32 {d}, {8*j}, {t0}")
            A(f"v_lshlrev_b32 {d}, s{S_SH[p]}, {d}")
            A(f"v_add_u32 {d}, {d}, {t1}")
    A(f"s_lshl_b32 s{S_M0X}, s{S_W}, 12")
    A(f"s_lshl_b32 s{S_M0W}, s{S_W}, 11")
    A(f"s_add_u32 s{S_M0W}, s{S_M0W}, {WREG}")
    for p in range(nslots):
        A(f"s_mov_b32 s{S_KW[p]}, 0")
        A(f"s_lshl_b32 s{S_KSTEP[p]}, 64, s{S_SH[p]}")

def read_addr_setup(A, r, frs):
    l = r['lane']; t0, t1, t2, t3 = r['t0'], r['t1'], r['t2'], r['t3']
    A(f"v_and_b32 {t0}, 31, {l}")
    A(f"v_lshrrev_b32 {t1}, 1, {t0}")
    A(f"v_and_b32 {t1}, 7, {t1}")
    A(f"v_lshrrev_b32 {t2}, 5, {l}")
    A(f"s_lshl_b32 s{S_T}, s{S_WT}, 6")
    A(f"v_add_u32 {t0}, s{S_T}, {t0}")
    A(f"v_lshlrev_b32 {t0}, 7, {t0}")
    for s_ in range(4):
        d = r['vx_rd'][s_]
        A(f"v_or_b32 {t3}, {2*s_}, {t2}")
        A(f"v_xor_b32 {t3}, {t3}, {t1}")
        A(f"v_lshl_add_u32 {d}, {t3}, 4, {t0}")
    A(f"v_and_b32 {t0}, 15, {l}")
    A(f"v_lshrrev_b32 {t1}, 2, {t0}")
    A(f"v_lshl_add_u32 {t1}, {t2}, 3, {t1}")
    A(f"v_lshlrev_b32 {t1}, 7, {t1}")
    A(f"v_and_b32 {t3}, 1, {t0}")
    A(f"v_lshl_add_u32 {t1}, {t3}, 3, {t1}")
    A(f"v_bfe_u32 {t3}, {l}, 4, 1")
    A(f"v_lshlrev_b32 {t3}, 1, {t3}")
    A(f"v_bfe_u32 {t2}, {t0}, 1, 1")
    A(f"v_or_b32 {t3}, {t3}, {t2}")
    A(f"v_bfe_u32 {t2}, {t0}, 3, 1")
    A(f"v_lshlrev_b32 {t2}, 2, {t2}")
    A(f"v_xor_b32 {t3}, {t3}, {t2}")
    for k, (slot, e) in enumerate(frs):
        for half in range(2):
            d = r['vw_rd'][2*k+half]
            if e == 'wf':
                A(f"s_lshl_b32 s{S_T}, s{S_WF}, 2")
                A(f"v_xor_b32 {d}, s{S_T}, {t3}")
            else:
                A(f"v_xor_b32 {d}, {4*e}, {t3}")
            A(f"v_lshl_add_u32 {d}, {d}, 4, {t1}")
            if slot == 'wf':
                A(f"s_lshl_b32 s{S_T}, s{S_WF}, 13")
                A(f"s_add_u32 s{S_T}, s{S_T}, {WREG + half * 2 * WST_B}")
                A(f"v_add_u32 {d}, s{S_T}, {d}")
            else:
                A(f"v_add_u32 {d}, {WREG + half * 2 * WST_B + slot * 8192}, {d}")

def dma_chunk(r, c, nslots, masked):
    st = c & 3; G = []
    G.append([f"s_mov_b32 s{S_KX}, {c*128}"])
    for j in range(4):
        g = [f"s_add_u32 m0, s{S_M0X}, {st*XST_B + j*1024}"]
        if j == 3 and masked: g.append(f"s_mov_b64 exec, s[{S_XM}:{S_XM+1}]")
        else: g.append("s_nop 0")
        g.append(f"buffer_load_dwordx4 {r['vx_dma'][j]}, s[{SRD_X}:{SRD_X+3}], s{S_KX} offen lds")
        if j == 3 and masked: g.append("s_mov_b64 exec, -1")
        G.append(g)
    for p in range(nslots):
        for j in range(2):
            G.append([f"s_add_u32 m0, s{S_M0W}, {st*WST_B + p*8192 + j*1024}", "s_nop 0",
                      f"buffer_load_dwordx4 {r['vw_dma'][2*p+j]}, s[{SRD_W[p]}:{SRD_W[p]+3}], s{S_KW[p]} offen lds"])
        G.append([f"s_add_u32 s{S_KW[p]}, s{S_KW[p]}, s{S_KSTEP[p]}"])
    return G

def frag_reads(r, g, nf):
    c, s_ = g >> 2, g & 3; st = c & 3; b = g & 1
    L = [f"ds_read_b128 {r['fx'][b][0]}, {r['vx_rd'][s_]} offset:{st*XST_B}"]
    for k in range(nf):
        for u in range(2):
            off = (st & 1) * WST_B + (16*s_ + 4*u) * 128
            L.append(f"ds_read_b64_tr_b16 {r['fw'][b][k].sub(2*u, 2)}, {r['vw_rd'][2*k + (st >> 1)]} offset:{off}")
        if k == 0:
            L.append(f"ds_read_b128 {r['fx'][b][1]}, {r['vx_rd'][s_]} offset:{st*XST_B + 4096}")
    return L

def main_loop(A, r, nf, nslots, masked, w_is_a, after_barrier):
    ndma = 4 + 2 * nslots
    for c in range(4):
        for g in dma_chunk(r, c, nslots, masked): A.ext(g)
        if c == 1 and 'mid' in after_barrier: A.ext(after_barrier['mid'])
    if 'pre' in after_barrier: A.ext(after_barrier['pre'])
    A(f"s_waitcnt vmcnt({3*ndma}) lgkmcnt(0)")
    A("s_barrier")
    stamp(A, 1)
    A.ext(frag_reads(r, 0, nf))
    for g in range(32):
        c, s_ = g >> 2, g & 3; b = g & 1
        M = []
        for k in range(nf):
            for tb in range(2):
                acc = r['acc'][k][tb]
                x, w = r['fx'][b][tb], r['fw'][b][k]
                M.append(mfma(acc, w if w_is_a else x, x if w_is_a else w, '0' if g == 0 else None))
        if ('step', g) in after_barrier: A.ext(after_barrier[('step', g)])
        A("s_waitcnt lgkmcnt(0)")
        rd = frag_reads(r, g + 1, nf) if g + 1 < 32 else []
        if s_ == 3 and c < 7:
            A(M[0]); A(M[1])
            nb = c + 1
            out = {1: 2, 2: 1}.get(nb, 1 if nb < 7 else 0)
            extra = after_barrier.get(('vm', nb), 0)
            A(f"s_waitcnt vmcnt({out*ndma + extra})")
            A("s_barrier")
            fill = list(rd)
            tail = []
            if 1 <= c <= 4:
                for grp in dma_chunk(r, c + 3, nslots, masked): tail.append(grp)
            A.ext(interleave(M[2:], fill))
            r['_pending'] = tail
            if nb in after_barrier: r['_pending'] = tail + [[x] for x in after_barrier[nb]]
        else:
            pend = r.get('_pending', [])
            take = pend[:] if s_ == 1 or len(pend) <= 6 else pend[:(len(pend) + 1) // 2]
            r['_pending'] = pend[len(take):]
            seq = []
            nm = len(M)
            rdq = list(rd); gq = list(take)
            for i, m in enumerate(M):
                seq.append(m)
                k = (len(rd) * (i + 1) + nm - 2) // (nm - 1) - (len(rd) - len(rdq)) if i < nm - 1 else len(rdq)
                for _ in range(min(k, len(rdq))): seq.append(rdq.pop(0))
                k2 = (len(take) * (i + 1) + nm - 1) // nm - (len(take) - len(gq))
                for _ in range(k2): seq += gq.pop(0)
            A.ext(seq)
    assert not r.get('_pending')
    stamp(A, 2)

def gelu_block(A, r, y):
    t = r['tmp']; one = r['one2']; c1 = r['c1']
    P = range(8)
    for i in P: A(f"v_pk_mul_f32 {t.sub(2*i,2)}, {y.sub(2*i,2)}, {y.sub(2*i,2)}")
    for i in P: A(f"v_pk_fma_f32 {t.sub(2*i,2)}, {t.sub(2*i,2)}, s[{S_C2}:{S_C2+1}], {c1}")
    for i in P: A(f"v_pk_mul_f32 {t.sub(2*i,2)}, {t.sub(2*i,2)}, {y.sub(2*i,2)}")
    for i in range(16): A(f"v_exp_f32 {t[i]}, {t[i]}")
    for i in P: A(f"v_pk_add_f32 {t.sub(2*i,2)}, {t.sub(2*i,2)}, {one}")
    for i in range(16): A(f"v_rcp_f32 {t[i]}, {t[i]}")
    for i in P: A(f"v_pk_mul_f32 {y.sub(2*i,2)}, {y.sub(2*i,2)}, {t.sub(2*i,2)}")

def correct_block(A, r, acc, ab):
    cs = r['cs']
    for i in range(8):
        A(f"v_pk_mul_f32 {acc.sub(2*i,2)}, {acc.sub(2*i,2)}, {ab} op_sel:[0,0] op_sel_hi:[1,0]")
    for i in range(8):
        A(f"v_pk_fma_f32 {acc.sub(2*i,2)}, {cs.sub(2*i,2)}, {ab}, {acc.sub(2*i,2)} op_sel:[0,1,0] op_sel_hi:[1,1,1]")

def pack_block(A, r, acc, dst):
    for i in range(8): A(f"v_cvt_pk_bf16_f32 {dst[i]}, {acc[2*i]}, {acc[2*i+1]}")

def read_cs(A, r, k):
    base = r['vcsA'] if k < 2 else r['vcsB']
    for q in range(4):
        A(f"ds_read_b128 {r['cs'].sub(4*q,4)}, {base} offset:{(128*k if k < 2 else 0) + 32*q}")
    A("s_waitcnt lgkmcnt(0)")

def epi_lin(A, r, k, pk):
    read_cs(A, r, k)
    for tb in range(2):
        acc = r['acc'][k][tb]; ab = r['abs'][tb]; d = pk[tb]
        correct_block(A, r, acc, ab)
        pack_block(A, r, acc, d)
        A(f"s_add_u32 s{S_T}, s{S_DSTA}, {k*2048 + tb*32768}")
        for hf in range(2):
            A(f"buffer_store_dwordx4 {d.sub(4*hf,4)}, {r['vlin']}, s[{SRD_WS}:{SRD_WS+3}], s{S_T} offen offset:{hf*1024}")

def epi_gel(A, r, k, pk, sdst, extra):
    read_cs(A, r, k)
    for tb in range(2):
        acc = r['acc'][k][tb]; ab = r['ab'][tb]; d = pk[tb]
        correct_block(A, r, acc, ab)
        gelu_block(A, r, acc)
        pack_block(A, r, acc, d)
        for q in range(2):
            A(f"v_permlane32_swap_b32 {d[4*q]}, {d[4*q+2]}")
            A(f"v_permlane32_swap_b32 {d[4*q+1]}, {d[4*q+3]}")
        A(f"s_add_u32 s{S_T}, s{sdst}, {extra}")
        for q in range(2):
            A(f"buffer_store_dwordx4 {d.sub(4*q,4)}, {r['vgel'][tb]}, s[{SRD_WS}:{SRD_WS+3}], s{S_T} offen offset:{q*32}")

def build(name='p1_kernel'):
    A = KAsm('p1')
    V = Alloc('v', 1, 256)
    r = {}
    for n in ['lane', 't0', 't1', 't2', 't3', 'vlin', 'vcsA', 'vcsB', 'vpoll', 'vz']: r[n] = V(1)
    r['vx_dma'] = V(4, 1); r['vw_dma'] = V(6, 1); r['vx_rd'] = V(4, 1); r['vw_rd'] = V(6, 1)
    r['vgel'] = V(2, 1)
    r['ab'] = [V(2), V(2)]; r['abs'] = [V(2), V(2)]
    r['one2'] = V(2); r['c1'] = V(2)
    r['acc'] = [[V(16, 4), V(16, 4)] for _ in range(3)]
    r['fx'] = [[V(4), V(4)] for _ in range(2)]
    r['fw'] = [[V(4) for _ in range(3)] for _ in range(2)]
    r['cs'] = V(16, 4); r['tmp'] = V(16, 4)
    pk = [V(8, 4), V(8, 4)]
    st64 = V(0 + 16, 4)
    prologue(A, 256)
    stamp(A, 0)
    lane_setup(A, V, r)
    A("s_and_b32 s80, s2, 7")
    A("s_lshr_b32 s81, s2, 3")
    A("s_waitcnt lgkmcnt(0)")
    srd(A, SRD_WS, 'ws', WS_END)
    srd(A, SRD_DBG, 'dbg', 256)
    A("s_cmp_ge_u32 s81, 28")
    A("s_cbranch_scc1 L_p1_weights")
    A("s_and_b32 s82, s80, 3", "s_lshl_b32 s82, s82, 2", "s_and_b32 s83, s81, 3", f"s_add_u32 s{S_I}, s82, s83")
    A("s_lshr_b32 s82, s80, 2", "s_mul_i32 s82, s82, 7", "s_lshr_b32 s83, s81, 2", f"s_add_u32 s{S_CT}, s82, s83")
    A(f"s_mul_i32 s82, s{S_I}, {125*1024}")
    srd(A, SRD_X, 'x', 125*1024, off_sgpr='s82')
    A(f"s_cmp_ge_u32 s{S_CT}, 12")
    A("s_cbranch_scc1 L_p1_setup_g")
    for p in range(2):
        A(f"s_lshl_b32 s82, s{S_CT}, 1", f"s_add_u32 s82, s82, {p}")
        A("s_cmp_lt_u32 s82, 16", f"s_cselect_b64 s[84:85], s[{SP['wk']}:{SP['wk']+1}], s[{SP['wv']}:{SP['wv']+1}]")
        A("s_cmp_lt_u32 s82, 8", f"s_cselect_b64 s[84:85], s[{SP['wq']}:{SP['wq']+1}], s[84:85]")
        A("s_and_b32 s83, s82, 7", "s_lshl_b32 s83, s83, 7")
        A("s_sub_u32 s86, 0x80000, s83")
        srd(A, SRD_W[p], 84, 's86', off_sgpr='s83')
        A(f"s_mov_b32 s{S_SH[p]}, 10")
    A(f"s_lshl_b32 s83, s{S_CT}, 7", "s_sub_u32 s86, 0x100000, s83")
    srd(A, SRD_W[2], 'wup', 's86', off_sgpr='s83')
    A(f"s_mov_b32 s{S_SH[2]}, 11")
    A(f"s_lshl_b32 s82, s{S_CT}, 1", f"s_add_u32 s82, s82, s{S_WF}")
    A("s_lshr_b32 s83, s82, 3", "s_lshl_b32 s83, s83, 21", "s_and_b32 s84, s82, 7", "s_lshl_b32 s84, s84, 12")
    A(f"s_add_u32 s{S_DSTA}, s83, s84")
    A("s_cmp_lt_u32 s82, 8", f"s_cselect_b32 s{S_SCA}, {hexf(QSCALE)}, 1.0")
    A(f"s_lshr_b32 s83, s{S_CT}, 3", f"s_mul_i32 s83, s83, {GB - UB}", f"s_and_b32 s84, s{S_CT}, 7", "s_lshl_b32 s84, s84, 7")
    A("s_add_u32 s83, s83, s84", f"s_lshl_b32 s84, s{S_WF}, 6", "s_add_u32 s83, s83, s84", f"s_add_u32 s{S_DSTB}, s83, {hex(UB)}")
    A("s_branch L_p1_setup_done")
    A("L_p1_setup_g:")
    for p in range(3):
        pp = p if p < 2 else 0
        A(f"s_sub_u32 s82, s{S_CT}, 12", "s_lshl_b32 s82, s82, 1", f"s_add_u32 s82, s82, {12 + pp}", "s_lshl_b32 s83, s82, 7")
        A("s_sub_u32 s86, 0x100000, s83")
        srd(A, SRD_W[p], 'wup', 's86', off_sgpr='s83')
        A(f"s_mov_b32 s{S_SH[p]}, 11")
    A(f"s_sub_u32 s82, s{S_CT}, 12", "s_lshl_b32 s82, s82, 1", f"s_add_u32 s82, s82, s{S_WF}", "s_add_u32 s82, s82, 12")
    A("s_and_b32 s84, s82, 7", "s_lshl_b32 s84, s84, 7", f"s_add_u32 s{S_DSTA}, s84, {hex(GB)}")
    A(f"s_mov_b32 s{S_DSTB}, 0", f"s_mov_b32 s{S_SCA}, 1.0")
    A("L_p1_setup_done:")
    dma_addr_setup(A, r, 3)
    A(f"s_mov_b32 s{S_XM}, -1", f"s_cmp_eq_u32 s{S_W}, 3", f"s_cselect_b32 s{S_XM+1}, 0xff, -1")
    l = r['lane']; t0, t1 = r['t0'], r['t1']
    A(f"v_lshrrev_b32 {t0}, 3, {l}", f"v_add_u32 {t0}, 125, {t0}", f"v_lshlrev_b32 {t0}, 7, {t0}")
    A(f"v_and_b32 {t1}, 7, {l}", f"v_lshl_add_u32 {t0}, {t1}, 4, {t0}")
    A(f"s_lshl_b32 s{S_T}, s{S_W}, 14", f"v_add_u32 {t0}, s{S_T}, {t0}")
    ones = r['tmp'].sub(0, 4)
    for q in range(4): A(f"v_mov_b32 {ones[q]}, 0x3f803f80")
    pre = [f"v_cmp_gt_u32 vcc, 24, {l}", "s_and_saveexec_b64 s[92:93], vcc", f"ds_write_b128 {t0}, {ones}", "s_mov_b64 exec, s[92:93]"]
    A.ext(pre)
    read_addr_setup(A, r, [('wf', 0), ('wf', 1), (2, 'wf')])
    t2, t3 = r['t2'], r['t3']
    A(f"s_lshl_b32 s82, s{S_I}, 2", f"s_lshl_b32 s83, s{S_WT}, 1", "s_add_u32 s82, s82, s83", "s_lshl_b32 s82, s82, 15")
    A(f"v_lshlrev_b32 {r['vlin']}, 4, {l}", f"v_add_u32 {r['vlin']}, s82, {r['vlin']}")
    A(f"v_lshrrev_b32 {t2}, 5, {l}", f"v_lshlrev_b32 {t2}, 4, {t2}")
    A(f"s_lshl_b32 s82, s{S_WF}, 8", f"v_add_u32 {r['vcsA']}, s82, {t2}")
    A(f"s_lshl_b32 s82, s{S_WF}, 7", "s_add_u32 s82, s82, 512", f"v_add_u32 {r['vcsB']}, s82, {t2}")
    A(f"v_and_b32 {t0}, 31, {l}", f"s_lshl_b32 s82, s{S_WT}, 6", f"v_add_u32 {t0}, s82, {t0}")
    A(f"s_mul_i32 s83, s{S_I}, 125")
    for tb in range(2):
        A(f"v_add_u32 {t1}, {32*tb}, {t0}")
        A(f"v_add_u32 {t3}, s83, {t1}", f"v_lshlrev_b32 {t3}, 10, {t3}", f"v_add_u32 {t3}, {t3}, {t2}")
        A(f"v_cmp_gt_u32 vcc, 125, {t1}", f"v_mov_b32 {r['vgel'][tb]}, {hex(OOB)}", f"v_cndmask_b32 {r['vgel'][tb]}, {r['vgel'][tb]}, {t3}, vcc")
    A(f"s_lshl_b32 s82, s{S_I}, 10", f"s_add_u32 s82, s82, {hex(XST)}", f"v_lshlrev_b32 {r['vz']}, 3, {t0}", f"v_add_u32 {r['vz']}, s82, {r['vz']}")
    A(f"s_lshl_b32 s82, s{S_I}, 2", f"v_mov_b32 {r['vpoll']}, s82")
    A(f"v_mov_b32 {r['one2'][0]}, 1.0", f"v_mov_b32 {r['one2'][1]}, 1.0")
    c1 = -2.0 * LOG2E * 0.7978845608028654
    A(f"v_mov_b32 {r['c1'][0]}, {hexf(c1)}", f"v_mov_b32 {r['c1'][1]}, {hexf(c1)}")
    A(f"s_mov_b32 s{S_C2}, {hexf(c1*0.044715)}", f"s_mov_b32 s{S_C2+1}, {hexf(c1*0.044715)}")
    pollv = r['t0']
    poll = [f"buffer_load_dword {pollv}, {r['vpoll']}, s[{SRD_DBG}:{SRD_DBG+3}], 0 offen sc1"]
    lp, lq = A.label('poll'), A.label('pollok')
    check = ["s_waitcnt vmcnt(0)", f"v_readfirstlane_b32 s{S_T+1}, {pollv}", "s_nop 3", f"s_cmp_ge_u32 s{S_T+1}, 2", f"s_cbranch_scc1 {lq}",
             f"s_mov_b32 s{S_CNT}, 0x40000", f"{lp}:", "s_sleep 4",
             f"buffer_load_dword {pollv}, {r['vpoll']}, s[{SRD_DBG}:{SRD_DBG+3}], 0 offen sc1", "s_waitcnt vmcnt(0)",
             f"v_readfirstlane_b32 s{S_T+1}, {pollv}", f"s_sub_u32 s{S_CNT}, s{S_CNT}, 1", "s_nop 2", f"s_cmp_eq_u32 s{S_CNT}, 0", f"s_cbranch_scc1 {lq}",
             f"s_cmp_ge_u32 s{S_T+1}, 2", f"s_cbranch_scc0 {lp}", f"{lq}:",
             f"buffer_load_dwordx2 {r['ab'][0]}, {r['vz']}, s[{SRD_WS}:{SRD_WS+3}], 0 offen sc1",
             f"buffer_load_dwordx2 {r['ab'][1]}, {r['vz']}, s[{SRD_WS}:{SRD_WS+3}], 0 offen offset:256 sc1"]
    main_loop(A, r, 3, 3, True, True, {6: poll, ('vm', 7): 1, ('step', 29): check})
    A(f"s_cmp_eq_u32 s{S_WT}, 0", "s_cbranch_scc1 L_p1_nocs")
    A("s_mov_b32 exec_lo, 0x20000000", "s_mov_b32 exec_hi, 0x20000000", "s_nop 7")
    for k in range(3):
        base = r['vcsA'] if k < 2 else r['vcsB']
        for q in range(4):
            A(f"ds_write_b128 {base}, {r['acc'][k][1].sub(4*q,4)} offset:{(128*k if k < 2 else 0) + 32*q}")
    A("s_mov_b64 exec, -1")
    A("L_p1_nocs:")
    A("s_waitcnt lgkmcnt(0)", "s_barrier", "s_waitcnt vmcnt(0)")
    for tb in range(2):
        A(f"v_pk_mul_f32 {r['abs'][tb]}, {r['ab'][tb]}, s[{S_SCA}:{S_SCA+1}] op_sel_hi:[1,0]")
    A(f"s_cmp_ge_u32 s{S_CT}, 12", "s_cbranch_scc1 L_p1_epi_g")
    epi_lin(A, r, 0, pk); epi_lin(A, r, 1, pk); epi_gel(A, r, 2, pk, S_DSTB, 0)
    stamp_flush(A, 0, SRD_WS, r['ab'][0][0], r['ab'][0][1])
    A("s_endpgm")
    A("L_p1_epi_g:")
    epi_gel(A, r, 0, pk, S_DSTA, 0); epi_gel(A, r, 1, pk, S_DSTA, 64)
    stamp_flush(A, 0, SRD_WS, r['ab'][0][0], r['ab'][0][1])
    A("s_endpgm")
    A("L_p1_weights:")
    A("s_sub_u32 s81, s81, 28", "s_lshl_b32 s81, s81, 3", "s_add_u32 s81, s81, s80")
    J = 78
    A(f"s_mov_b32 s{J}, s81")
    A(f"s_lshr_b32 s82, s{J}, 1", f"s_mov_b32 s{S_I}, s82", f"s_mul_i32 s82, s82, {125*1024}")
    srd(A, SRD_W[2], 'x', 125*1024, off_sgpr='s82')
    stv = [r['cs'], r['tmp'], R('v', pk[0].idx, 16), st64]
    assert pk[1].idx == pk[0].idx + 8
    A(f"s_and_b32 s83, s{J}, 1", "s_lshl_b32 s83, s83, 6", f"s_lshl_b32 s84, s{S_W}, 4", "s_add_u32 s83, s83, s84")
    rowv = r['vgel']
    for g2 in range(2):
        A(f"v_lshrrev_b32 {rowv[g2]}, 3, {l}", f"v_add_u32 {rowv[g2]}, s83, {rowv[g2]}")
        if g2: A(f"v_add_u32 {rowv[g2]}, 8, {rowv[g2]}")
    for g2 in range(2):
        A(f"v_lshlrev_b32 {t0}, 10, {rowv[g2]}", f"v_and_b32 {t1}, 7, {l}", f"v_lshl_add_u32 {t0}, {t1}, 4, {t0}")
        for jj in range(8):
            q = g2 * 8 + jj
            A(f"buffer_load_dwordx4 {stv[q//4].sub(4*(q%4),4)}, {t0}, s[{SRD_W[2]}:{SRD_W[2]+3}], 0 offen offset:{jj*128}")
        A("s_nop 0")
    A(f"s_lshr_b32 s82, s{J}, 4")
    A("s_cmp_eq_u32 s82, 0", f"s_cselect_b64 s[84:85], s[{SP['wao']}:{SP['wao']+1}], s[{SP['wdn']}:{SP['wdn']+1}]")
    A(f"s_lshr_b32 s83, s{J}, 2", "s_and_b32 s83, s83, 3", "s_lshl_b32 s83, s83, 17")
    srd(A, SRD_X, 84, 131072, off_sgpr='s83')
    for p in range(2):
        A(f"s_lshr_b32 s82, s{J}, 4", "s_lshl_b32 s82, s82, 19", f"s_and_b32 s83, s{J}, 3", "s_lshl_b32 s83, s83, 8")
        A(f"s_add_u32 s83, s83, {128*p}", "s_sub_u32 s86, 0x80000, s83", "s_add_u32 s83, s83, s82")
        srd(A, SRD_W[p], 'wm', 's86', off_sgpr='s83')
        A(f"s_mov_b32 s{S_SH[p]}, 10")
    dma_addr_setup(A, r, 2)
    read_addr_setup(A, r, [('wf', 0), ('wf', 1)])
    st = []
    a1, a2 = r['ab'][0], r['ab'][1]
    onesb = r['one2'][0]
    st.append(f"v_mov_b32 {onesb}, 0x3f803f80")
    st.append("s_waitcnt vmcnt(16)")
    for g2 in range(2):
        sm, sq = (a1[0], a1[1]) if g2 == 0 else (a2[0], a2[1])
        first = True
        for jj in range(8):
            q = g2 * 8 + jj
            for d in range(4):
                x = stv[q//4][4*(q%4) + d]
                st.append(f"v_dot2_f32_bf16 {sm}, {x}, {onesb}, {'0' if first else sm}")
                st.append(f"v_dot2_f32_bf16 {sq}, {x}, {x}, {'0' if first else sq}")
                first = False
    for mod in ["quad_perm:[1,0,3,2]", "quad_perm:[2,3,0,1]", "row_half_mirror"]:
        for x in (a1[0], a1[1], a2[0], a2[1]):
            st.append(f"v_add_f32_dpp {x}, {x}, {x} {mod} row_mask:0xf bank_mask:0xf")
    for g2, ab in enumerate((a1, a2)):
        st += [f"v_mul_f32 {ab[0]}, {hexf(1/512)}, {ab[0]}",
               f"v_mul_f32 {ab[1]}, {hexf(1/512)}, {ab[1]}",
               f"v_fma_f32 {ab[1]}, -{ab[0]}, {ab[0]}, {ab[1]}",
               f"v_max_f32 {ab[1]}, 0, {ab[1]}",
               f"v_add_f32 {ab[1]}, {hexf(1e-5)}, {ab[1]}",
               f"v_rsq_f32 {ab[1]}, {ab[1]}",
               f"v_mul_f32 {t1}, -{ab[0]}, {ab[1]}" if False else f"v_mul_f32 {t1}, {ab[0]}, {ab[1]}",
               f"v_sub_f32 {t1}, 0, {t1}",
               f"v_cmp_gt_u32 vcc, 125, {rowv[g2]}",
               f"v_cndmask_b32 {ab[0]}, 0, {ab[1]}, vcc",
               f"v_cndmask_b32 {ab[1]}, 0, {t1}, vcc",
               f"s_lshl_b32 s82, s{S_I}, 10", f"s_add_u32 s82, s82, {hex(XST)}",
               f"v_lshlrev_b32 {t0}, 3, {rowv[g2]}", f"v_add_u32 {t0}, s82, {t0}",
               f"v_and_b32 {t1}, 7, {l}", f"v_cmp_eq_u32 vcc, 0, {t1}", f"v_mov_b32 {t1}, {hex(OOB)}",
               f"v_cndmask_b32 {t0}, {t1}, {t0}, vcc",
               f"buffer_store_dwordx2 {ab}, {t0}, s[{SRD_WS}:{SRD_WS+3}], 0 offen sc1", "s_nop 1"]
    pub = [f"s_lshl_b32 s82, s{S_I}, 2", f"v_mov_b32 {t0}, s82", f"v_mov_b32 {t1}, 1",
           f"s_cmp_lg_u32 s{S_W}, 0", "s_cbranch_scc1 L_p1_nopub", "s_mov_b64 exec, 1",
           f"buffer_atomic_add {t1}, {t0}, s[{SRD_DBG}:{SRD_DBG+3}], 0 offen", "s_mov_b64 exec, -1", "L_p1_nopub:"]
    weights_loop(A, r, st, pub)
    A(f"s_lshr_b32 s82, s{J}, 4", "s_lshl_b32 s82, s82, 19", f"s_add_u32 s82, s82, {hex(WAMF)}")
    A(f"s_and_b32 s83, s{J}, 3", "s_lshl_b32 s83, s83, 2", f"s_lshl_b32 s84, s{S_WF}, 1", "s_add_u32 s83, s83, s84", "s_lshl_b32 s83, s83, 15")
    A("s_add_u32 s82, s82, s83")
    A(f"s_lshr_b32 s83, s{J}, 2", "s_and_b32 s83, s83, 3", "s_lshl_b32 s83, s83, 2", f"s_lshl_b32 s84, s{S_WT}, 1", "s_add_u32 s83, s83, s84", "s_lshl_b32 s83, s83, 11")
    A("s_add_u32 s82, s82, s83")
    A(f"v_lshlrev_b32 {r['vlin']}, 4, {l}")
    for k in range(2):
        for tb in range(2):
            d = pk[tb]
            pack_block(A, r, r['acc'][k][tb], d)
            A(f"s_add_u32 s{S_T}, s82, {k*32768 + tb*2048}")
            for hf in range(2):
                A(f"buffer_store_dwordx4 {d.sub(4*hf,4)}, {r['vlin']}, s[{SRD_WS}:{SRD_WS+3}], s{S_T} offen offset:{hf*1024}")
    stamp_flush(A, 0, SRD_WS, r['ab'][0][0], r['ab'][0][1])
    A("L_EXIT_p1:")
    A("s_endpgm")
    return A, V.hi

def weights_loop(A, r, st, pub):
    pre = ["s_waitcnt vmcnt(16)", "s_barrier"] + list(pub)
    main_loop(A, r, 2, 2, False, False, {'mid': list(st), 'pre': pre})
```

```python
from common import *
import common

S_W = 28; SRD_WS = 32; SRD_DW = 36
S_B, S_A0, S_B0, S_DST, S_STAT = 40, 41, 42, 43, 44
S_T = 48
S_M0 = 60; S_SA = 61; S_SB = 62

def gemm(A, r, extra_after=None):
    l16 = r['l16']
    def group(g):
        G = [[f"s_add_u32 s{S_SA}, s{S_A0}, {g*4096}", f"s_add_u32 s{S_SB}, s{S_B0}, {g*4096}", f"s_add_u32 m0, s{S_M0}, {g*4096}"]]
        for j in range(4):
            G.append([f"buffer_load_dwordx4 {l16}, s[{SRD_WS}:{SRD_WS+3}], s{S_SA} offen offset:{j*1024} lds"])
            G.append([f"buffer_load_dwordx4 {R('a', 4*(4*g+j), 4)}, {l16}, s[{SRD_WS}:{SRD_WS+3}], s{S_SB} offen offset:{j*1024}"])
        return G
    def reads(ks):
        b = ks & 1
        return [f"ds_read_b128 {r['fa'][b][mb]}, {r['va'][mb >> 1]} offset:{(mb & 1)*32768 + ks*1024}" for mb in range(4)]
    if common.PROLOG: stamp(A, 1)
    for g in range(7):
        for x in group(g): A.ext(x)
    if common.PROLOG: stamp(A, 2)
    A("s_waitcnt vmcnt(48)", "s_barrier")
    if common.PROLOG:
        stamp_flush(A, 1, SRD_WS, r['t2'], r['t3'], novm=True)
        A("s_mov_b64 exec, -1")
    else: stamp(A, 1)
    A.ext(reads(0))
    pend = group(7)
    for ks in range(32):
        b = ks & 1
        M = [mfma(r['acc'][mb], r['fa'][b][mb], R('a', 4*ks, 4), '0' if ks == 0 else None) for mb in range(4)]
        A("s_waitcnt lgkmcnt(0)")
        rd = reads(ks + 1) if ks < 31 else []
        if (ks & 3) == 3 and ks < 31:
            g = (ks >> 2) + 1
            A(M[0])
            A(f"s_waitcnt vmcnt({8*(7-g)})", "s_barrier")
            A.ext(interleave(M[1:], rd))
        else:
            seq = []
            for i, m in enumerate(M):
                seq.append(m)
                if i < 3 and rd: seq.append(rd[i])
                if i == 2 and rd: seq.append(rd[3])
                if pend and ks < 3:
                    n = 3 if ks < 2 else len(pend)
                    for _ in range(min(len(pend), 1 if ks < 2 else 2)): seq += pend.pop(0)
            A.ext(seq)
    assert not pend
    if not common.PROLOG: stamp(A, 2)

def store_frags(A, r, pk):
    for mb in range(4):
        d = pk[mb & 1]; acc = r['acc'][mb]
        for i in range(8): A(f"v_cvt_pk_bf16_f32 {d[i]}, {acc[2*i]}, {acc[2*i+1]}")
        if mb % 2 == 0: A(f"s_add_u32 s{S_T}, s{S_DST}, {mb*2048}")
        for hf in range(2):
            A(f"buffer_store_dwordx4 {d.sub(4*hf,4)}, {r['l16']}, s[{SRD_WS}:{SRD_WS+3}], s{S_T} offen offset:{(mb & 1)*2048 + hf*1024}")

def build():
    A = KAsm('p2')
    V = Alloc('v', 1, 256)
    r = {}
    for n in ['lane', 'l16', 't0', 'tpad', 't1', 't2', 't3']: r[n] = V(1)
    base = V.mark()
    r['va'] = V(2, 1)
    r['acc'] = [V(16, 4) for _ in range(4)]
    r['fa'] = [[V(4) for _ in range(4)] for _ in range(2)]
    pk = [V(8, 4), V(8, 4)]
    mx = V(2); sm = V(4); st2 = V(2)
    hi_gemm = V.hi
    l = r['lane']; t0, t1, t2, t3 = r['t0'], r['t1'], r['t2'], r['t3']
    prologue(A, 256)
    stamp(A, 0)
    A(f"v_and_b32 {l}, 63, v0", f"v_lshrrev_b32 {t0}, 6, v0", f"v_lshlrev_b32 {r['l16']}, 4, {l}")
    A(f"v_readfirstlane_b32 s{S_W}, {t0}")
    A("s_and_b32 s48, s2, 7", "s_lshr_b32 s49, s2, 3", f"s_lshr_b32 s{S_B}, s48, 2")
    A("s_waitcnt lgkmcnt(0)")
    srd(A, SRD_WS, 'ws', WS_END)
    A("s_cmp_ge_u32 s49, 24", "s_cbranch_scc1 L_p2_conv")
    A(f"v_add_u32 {r['va'][1]}, 0x10000, {r['l16']}", f"v_mov_b32 {r['va'][0]}, {r['l16']}")
    A(f"s_lshl_b32 s{S_M0}, s{S_W}, 15")
    A("s_cmp_ge_u32 s49, 16", "s_cbranch_scc1 L_p2_vsetup")
    A("s_and_b32 s50, s48, 1", "s_lshl_b32 s50, s50, 2", "s_and_b32 s51, s49, 3", "s_add_u32 s50, s50, s51")
    A("s_lshr_b32 s51, s48, 1", "s_and_b32 s51, s51, 1", "s_lshl_b32 s51, s51, 2", "s_lshr_b32 s52, s49, 2", "s_add_u32 s51, s51, s52")
    A(f"s_lshl_b32 s52, s{S_B}, 3", "s_add_u32 s53, s52, s51", "s_lshl_b32 s53, s53, 2", f"s_add_u32 s53, s53, s{S_W}", "s_lshl_b32 s53, s53, 15")
    A(f"s_add_u32 s{S_A0}, s53, {hex(KF)}")
    A("s_add_u32 s53, s52, s50", "s_lshl_b32 s53, s53, 2", f"s_add_u32 s53, s53, s{S_W}")
    A("s_lshl_b32 s54, s53, 15", f"s_add_u32 s{S_B0}, s54, {hex(QF)}")
    A("s_lshl_b32 s54, s53, 16", "s_lshl_b32 s55, s51, 13", "s_add_u32 s54, s54, s55", f"s_add_u32 s{S_DST}, s54, {hex(PF)}")
    A("s_add_u32 s54, s52, s51", "s_lshl_b32 s54, s54, 10", "s_lshl_b32 s55, s50, 7", "s_add_u32 s54, s54, s55", f"s_lshl_b32 s55, s{S_W}, 5", "s_add_u32 s54, s54, s55")
    A("s_lshl_b32 s54, s54, 3", f"s_add_u32 s{S_STAT}, s54, {hex(SM)}")
    gemm(A, r)
    acc = r['acc']
    A(f"v_cmp_lt_u32 vcc, 31, {l}", f"v_mov_b32 {t0}, 0xff800000")
    for q in (13, 14, 15): A(f"v_cndmask_b32 {acc[3][q]}, {acc[3][q]}, {t0}, vcc")
    flat = [acc[mb][i] for mb in range(4) for i in range(16)]
    A(f"v_max3_f32 {mx[0]}, {flat[0]}, {flat[1]}, {flat[2]}", f"v_max3_f32 {mx[1]}, {flat[3]}, {flat[4]}, {flat[5]}")
    k = 6
    while k + 3 < 64:
        A(f"v_max3_f32 {mx[0]}, {mx[0]}, {flat[k]}, {flat[k+1]}", f"v_max3_f32 {mx[1]}, {mx[1]}, {flat[k+2]}, {flat[k+3]}")
        k += 4
    A(f"v_max3_f32 {mx[0]}, {mx[0]}, {flat[62]}, {flat[63]}")
    A(f"v_max_f32 {mx[0]}, {mx[0]}, {mx[1]}", f"v_mov_b32 {mx[1]}, {mx[0]}")
    A(f"v_permlane32_swap_b32 {mx[0]}, {mx[1]}", f"v_max_f32 {mx[0]}, {mx[0]}, {mx[1]}")
    for mb in range(4):
        a_ = acc[mb]
        for i in range(8):
            A(f"v_pk_add_f32 {a_.sub(2*i,2)}, {a_.sub(2*i,2)}, {mx} op_sel_hi:[1,0] neg_lo:[0,1] neg_hi:[0,1]")
        for i in range(16): A(f"v_exp_f32 {a_[i]}, {a_[i]}")
        for i in range(8):
            s_ = sm.sub(2*(i & 1), 2)
            if mb == 0 and i < 2: A(f"v_pk_add_f32 {s_}, {a_.sub(2*i,2)}, {a_.sub(2*(i+2),2)}")
            elif mb == 0 and i < 4: continue
            else: A(f"v_pk_add_f32 {s_}, {s_}, {a_.sub(2*i,2)}")
        d = pk[mb & 1]
        for i in range(8): A(f"v_cvt_pk_bf16_f32 {d[i]}, {a_[2*i]}, {a_[2*i+1]}")
        if mb % 2 == 0: A(f"s_add_u32 s{S_T}, s{S_DST}, {mb*2048}")
        for hf in range(2):
            A(f"buffer_store_dwordx4 {d.sub(4*hf,4)}, {r['l16']}, s[{SRD_WS}:{SRD_WS+3}], s{S_T} offen offset:{(mb & 1)*2048 + hf*1024}")
    A(f"v_pk_add_f32 {sm.sub(0,2)}, {sm.sub(0,2)}, {sm.sub(2,2)}", f"v_add_f32 {sm[0]}, {sm[0]}, {sm[1]}", f"v_mov_b32 {sm[1]}, {sm[0]}")
    A(f"v_permlane32_swap_b32 {sm[0]}, {sm[1]}", f"v_add_f32 {st2[1]}, {sm[0]}, {sm[1]}", f"v_mov_b32 {st2[0]}, {mx[0]}")
    A(f"v_lshlrev_b32 {t0}, 3, {l}", f"v_mov_b32 {t1}, {hex(OOB)}", f"v_cmp_gt_u32 vcc, 32, {l}", f"v_cndmask_b32 {t0}, {t1}, {t0}, vcc")
    A(f"buffer_store_dwordx2 {st2}, {t0}, s[{SRD_WS}:{SRD_WS+3}], s{S_STAT} offen")
    (None if common.PROLOG else stamp_flush(A, 1, SRD_WS, mx[0], mx[1]))
    A("s_endpgm")
    A("L_p2_vsetup:")
    A("s_sub_u32 s49, s49, 16", "s_and_b32 s50, s48, 3", "s_lshl_b32 s50, s50, 1", "s_and_b32 s51, s49, 1", "s_add_u32 s50, s50, s51")
    A("s_lshr_b32 s51, s49, 1")
    A(f"s_lshl_b32 s52, s{S_B}, 3", "s_add_u32 s53, s52, s50", "s_lshl_b32 s53, s53, 2", f"s_add_u32 s53, s53, s{S_W}", "s_lshl_b32 s53, s53, 15")
    A(f"s_add_u32 s{S_A0}, s53, {hex(VF)}")
    A("s_lshl_b32 s53, s51, 2", f"s_add_u32 s53, s53, s{S_W}")
    A("s_lshl_b32 s54, s53, 15", f"s_add_u32 s{S_B0}, s54, {hex(WAMF)}")
    A(f"s_lshl_b32 s54, s{S_B}, 4", "s_add_u32 s54, s54, s53", "s_lshl_b32 s54, s54, 16", "s_lshl_b32 s55, s50, 13", "s_add_u32 s54, s54, s55")
    A(f"s_add_u32 s{S_DST}, s54, {hex(V2F)}")
    gemm(A, r)
    store_frags(A, r, pk)
    (None if common.PROLOG else stamp_flush(A, 1, SRD_WS, mx[0], mx[1]))
    A("s_endpgm")
    A("L_p2_conv:")
    V.reset(base)
    stg = V(64, 4); gcol = V(62, 1); wp = V(62, 2); par = [V(4) for _ in range(4)]; gn = [V(2), V(2)]
    ab = V(2); vt4 = V(1); vlw = V(1); vlr = V(1); msk = V(1)
    acc = stg
    SRDW = f"s[{SRD_WS}:{SRD_WS+3}]"
    srd(A, SRD_DW, 'dw', 31 * 1024)
    A("s_sub_u32 s49, s49, 24", "s_and_b32 s50, s48, 3", "s_lshl_b32 s50, s50, 1", "s_lshr_b32 s51, s49, 2", "s_add_u32 s50, s50, s51")
    A("s_and_b32 s51, s49, 3")
    A("s_mul_i32 s52, s50, 125", "s_lshl_b32 s53, s51, 5", "s_add_u32 s52, s52, s53")
    A(f"s_mul_i32 s53, s{S_B}, 1000", "s_add_u32 s53, s53, s52", "s_lshl_b32 s53, s53, 10")
    S_G, S_U, S_T0 = 56, 57, 58
    A(f"s_add_u32 s{S_G}, s53, {hex(GB - 15*1024)}", f"s_add_u32 s{S_U}, s53, {hex(UB)}", f"s_mov_b32 s{S_T0}, s52")
    A(f"s_lshl_b32 s53, s{S_B}, 3", "s_add_u32 s53, s53, s50", "s_lshl_b32 s53, s53, 2", "s_add_u32 s53, s53, s51", "s_lshl_b32 s53, s53, 15")
    A(f"s_add_u32 s{S_DST}, s53, {hex(UCF)}")
    A(f"v_lshrrev_b32 {t0}, 2, {l}", f"s_lshl_b32 s53, s{S_W}, 4", f"v_add_u32 {t0}, s53, {t0}")
    A(f"v_and_b32 {t1}, 3, {l}", f"v_lshlrev_b32 {t2}, 10, {t0}", f"v_lshl_add_u32 {t2}, {t1}, 4, {t2}")
    for jj in range(16):
        A(f"buffer_load_dwordx4 {stg.sub(4*jj,4)}, {t2}, {SRDW}, s{S_G} offen offset:{jj*64}")
    A(f"v_lshlrev_b32 {vt4}, 2, v0")
    def gload(s_):
        L = []
        if s_ % 4 == 0: L.append(f"s_add_u32 s{S_SA}, s{S_G}, {s_*1024}")
        L.append(f"buffer_load_dword {gcol[s_]}, {vt4}, {SRDW}, s{S_SA} offen offset:{(s_ % 4)*1024}")
        return L
    for s_ in range(44): A.ext(gload(s_))
    A(f"v_mov_b32 {msk}, 0x3f803f80")
    A("s_waitcnt vmcnt(44)")
    for jj in range(16):
        for d in range(4):
            x = stg[4*jj + d]; first = jj == 0 and d == 0
            A(f"v_dot2_f32_bf16 {ab[0]}, {x}, {msk}, {'0' if first else ab[0]}")
            A(f"v_dot2_f32_bf16 {ab[1]}, {x}, {x}, {'0' if first else ab[1]}")
    for mod in ["quad_perm:[1,0,3,2]", "quad_perm:[2,3,0,1]"]:
        for x in (ab[0], ab[1]): A(f"v_add_f32_dpp {x}, {x}, {x} {mod} row_mask:0xf bank_mask:0xf")
    A(f"v_mul_f32 {ab[0]}, {hexf(1/512)}, {ab[0]}", f"v_mul_f32 {ab[1]}, {hexf(1/512)}, {ab[1]}",
      f"v_fma_f32 {ab[1]}, -{ab[0]}, {ab[0]}, {ab[1]}", f"v_max_f32 {ab[1]}, 0, {ab[1]}", f"v_add_f32 {ab[1]}, {hexf(1e-5)}, {ab[1]}",
      f"v_rsq_f32 {ab[1]}, {ab[1]}", f"v_mul_f32 {t2}, {ab[0]}, {ab[1]}", f"v_sub_f32 {t2}, 0, {t2}")
    A(f"s_sub_u32 s53, s{S_T0}, 15", f"v_add_u32 {t3}, s53, {t0}", f"v_cmp_gt_u32 vcc, 1000, {t3}")
    A(f"v_cndmask_b32 {ab[0]}, 0, {ab[1]}, vcc", f"v_cndmask_b32 {ab[1]}, 0, {t2}, vcc")
    A(f"v_lshlrev_b32 {t2}, 3, {t0}", f"v_cmp_eq_u32 vcc, 0, {t1}", "s_and_saveexec_b64 s[54:55], vcc")
    A(f"ds_write_b64 {t2}, {ab}", "s_mov_b64 exec, s[54:55]")
    A("s_waitcnt vmcnt(12)")
    for s_ in range(44, 62): A.ext(gload(s_))
    for i in range(31):
        if i % 4 == 0: A(f"s_mov_b32 s{S_SB}, {i*1024}")
        A(f"buffer_load_dword {wp[2*i+1]}, {vt4}, s[{SRD_DW}:{SRD_DW+3}], s{S_SB} offen offset:{(i % 4)*1024}")
    A(f"v_mov_b32 {msk}, 0xffff0000", f"v_mov_b32 {t0}, 0")
    PARB = 0
    A("s_waitcnt lgkmcnt(0)", "s_barrier")
    stamp(A, 1)
    def pread(p): return f"ds_read_b128 {par[p % 4]}, {t0} offset:{PARB + p*16}"
    for p in range(3): A(pread(p))
    A("s_waitcnt vmcnt(0)")
    for i in range(31):
        A(f"v_lshlrev_b32 {wp[2*i]}, 16, {wp[2*i+1]}", f"v_and_b32 {wp[2*i+1]}, {msk}, {wp[2*i+1]}")
    def uload(t):
        L = []
        if t % 4 == 0: L.append(f"s_add_u32 s{S_SA}, s{S_U}, {t*1024}")
        L.append(f"buffer_load_dword {gcol[t]}, {vt4}, {SRDW}, s{S_SA} offen offset:{(t % 4)*1024}")
        return L
    for s_ in range(62):
        p = s_ >> 1
        if s_ % 2 == 0:
            A(f"s_waitcnt lgkmcnt({min(2, 30 - p)})")
        g = gn[s_ & 1]; pr = par[p % 4].sub(2*(s_ & 1), 2)
        A(f"v_lshlrev_b32 {g[0]}, 16, {gcol[s_]}", f"v_and_b32 {g[1]}, {msk}, {gcol[s_]}")
        A(f"v_pk_fma_f32 {g}, {g}, {pr}, {pr} op_sel:[0,0,1] op_sel_hi:[1,0,1]")
        if s_ % 2 == 1 and p + 3 <= 30: A(pread(p + 3))
        if s_ >= 30 and s_ - 30 < 32: A.ext(uload(s_ - 30))
        for t in range(max(0, s_ - 30), min(31, s_) + 1):
            i = s_ - t; a_ = acc.sub(2*t, 2); w_ = wp.sub(2*i, 2)
            if i == 0: A(f"v_pk_mul_f32 {a_}, {g}, {w_}")
            else: A(f"v_pk_fma_f32 {a_}, {g}, {w_}, {a_}")
    stamp(A, 2)
    UCB = 1024
    A(f"v_add_u32 {vlw}, {UCB}, {vt4}")
    A("s_waitcnt vmcnt(0)")
    for t in range(32):
        g = gn[t & 1]; a_ = acc.sub(2*t, 2)
        A(f"v_lshlrev_b32 {g[0]}, 16, {gcol[t]}", f"v_and_b32 {g[1]}, {msk}, {gcol[t]}")
        A(f"v_pk_mul_f32 {a_}, {a_}, {g}")
        A(f"v_cvt_pk_bf16_f32 {gcol[t]}, {a_[0]}, {a_[1]}")
        A(f"ds_write_b32 {vlw}, {gcol[t]} offset:{t*1032}")
    A(f"v_and_b32 {t0}, 31, {l}", f"v_mul_u32_u24 {t0}, 1032, {t0}", f"v_lshrrev_b32 {t1}, 5, {l}", f"v_lshl_add_u32 {t0}, {t1}, 3, {t0}")
    A(f"s_lshl_b32 s53, s{S_W}, 8", f"s_add_u32 s53, s53, {UCB}", f"v_add_u32 {vlr}, s53, {t0}")
    A("s_waitcnt lgkmcnt(0)", "s_barrier")
    for k in range(8):
        A(f"ds_read2_b64 {wp.sub(4*k,4)}, {vlr} offset0:{4*k} offset1:{4*k+2}")
    A(f"s_lshl_b32 s53, s{S_W}, 13", f"s_add_u32 s{S_DST}, s{S_DST}, s53")
    for k in range(8):
        A(f"s_waitcnt lgkmcnt({7-k})")
        if k % 4 == 0: A(f"s_add_u32 s{S_T}, s{S_DST}, {k*1024}")
        A(f"buffer_store_dwordx4 {wp.sub(4*k,4)}, {r['l16']}, {SRDW}, s{S_T} offen offset:{(k % 4)*1024}")
    stamp_flush(A, 1, SRD_WS, ab[0], ab[1])
    A("L_EXIT_p2:")
    A("s_endpgm")
    return A, max(V.hi, hi_gemm), 128
```

```python
from common import *
import common

LDS = 163840
S_W = 28; SRD_WS = 32; SRD_X = 36; SRD_O = 40
S_WD, S_WQ, S_SRC1, S_SRC2, S_M0, S_SO, S_B = 44, 45, 46, 47, 48, 49, 50
S_T = 52
NST = 5; NCH = 12

def build():
    A = KAsm('p3')
    V = Alloc('v', 1, 256)
    r = {}
    for n in ['lane', 'l16', 't0', 't1', 't2', 't3', 'vx', 'vo', 'mg', 'li']: r[n] = V(1)
    va = V(3, 1); vb = V(3, 1)
    stt = V(16, 2)
    xr = V(8, 2)
    acc = V(16, 4); accc = V(16, 4); tmp = [V(16, 4), V(16, 4)]
    fa = [V(4), V(4)]; fb = [V(4), V(4)]
    pk = V(8, 4); xf = V(16, 2)
    l = r['lane']; t0, t1, t2, t3 = r['t0'], r['t1'], r['t2'], r['t3']
    WS = f"s[{SRD_WS}:{SRD_WS+3}]"
    prologue(A, 256)
    stamp(A, 0)
    A(f"v_and_b32 {l}, 63, v0", f"v_lshrrev_b32 {t0}, 6, v0", f"v_lshlrev_b32 {r['l16']}, 4, {l}")
    A(f"v_readfirstlane_b32 s{S_W}, {t0}")
    A("s_and_b32 s52, s2, 7", "s_lshr_b32 s53, s2, 3", f"s_lshr_b32 s{S_B}, s52, 2")
    A("s_and_b32 s54, s52, 3", "s_lshl_b32 s54, s54, 2", "s_and_b32 s55, s53, 3", "s_add_u32 s54, s54, s55")
    A("s_lshr_b32 s55, s53, 2")
    A(f"s_and_b32 s{S_WD}, s{S_W}, 1", f"s_lshr_b32 s{S_WQ}, s{S_W}, 1")
    A("s_waitcnt lgkmcnt(0)")
    srd(A, SRD_WS, 'ws', WS_END); srd(A, SRD_X, 'x', XBYTES); srd(A, SRD_O, 'out', XBYTES)
    A(f"s_cmp_ge_u32 s{S_W}, 2", "s_cbranch_scc1 L_p3_bsrc")
    A("s_lshl_b32 s56, s55, 1", f"s_add_u32 s56, s56, s{S_W}")
    A(f"s_lshl_b32 s57, s{S_B}, 4", "s_add_u32 s57, s57, s56", "s_lshl_b32 s57, s57, 16", f"s_add_u32 s{S_SRC1}, s57, {hex(V2F)}")
    A("s_lshl_b32 s57, s56, 15", f"s_add_u32 s{S_SRC2}, s57, {hex(WDMF)}")
    A("s_branch L_p3_srcdone")
    A("L_p3_bsrc:")
    A("s_lshl_b32 s56, s54, 1", f"s_add_u32 s56, s56, s{S_W}", "s_sub_u32 s56, s56, 2", f"s_lshl_b32 s57, s{S_B}, 5", "s_add_u32 s56, s56, s57")
    A("s_lshl_b32 s57, s56, 16", f"s_add_u32 s{S_SRC1}, s57, {hex(PF)}")
    A("s_lshl_b32 s57, s56, 15", f"s_add_u32 s{S_SRC2}, s57, {hex(UCF)}")
    A("L_p3_srcdone:")
    A(f"s_lshl_b32 s{S_M0}, s{S_W}, 13")
    A(f"s_lshl_b32 s56, s{S_B}, 13", "s_lshl_b32 s57, s54, 6", "s_add_u32 s56, s56, s57", f"s_lshl_b32 s57, s{S_WQ}, 5", "s_add_u32 s56, s56, s57")
    A("s_lshl_b32 s56, s56, 3", f"s_add_u32 s56, s56, {hex(SM)}")
    A(f"v_and_b32 {t0}, 31, {l}", f"v_lshlrev_b32 {t1}, 3, {t0}")
    for j in range(8):
        A(f"s_add_u32 s57, s56, {j*8192}")
        A(f"buffer_load_dwordx2 {stt.sub(2*j,2)}, {t1}, {WS}, s57 offen")
    A("s_and_b32 s56, s54, 1", "s_lshl_b32 s56, s56, 6", f"s_lshl_b32 s57, s{S_WQ}, 5", "s_add_u32 s56, s56, s57", f"v_add_u32 {t0}, s56, {t0}")
    A(f"s_lshl_b32 s56, s{S_B}, 3", "s_lshr_b32 s57, s54, 1", "s_add_u32 s56, s56, s57", "s_mul_i32 s56, s56, 125")
    A(f"v_add_u32 {t1}, s56, {t0}", f"v_lshlrev_b32 {t1}, 10, {t1}")
    A("s_lshl_b32 s56, s55, 7", f"s_lshl_b32 s57, s{S_WD}, 6", "s_add_u32 s56, s56, s57", f"v_add_u32 {t1}, s56, {t1}")
    A(f"v_lshrrev_b32 {t2}, 5, {l}")
    A(f"v_lshl_add_u32 {r['vx']}, {t2}, 3, {t1}", f"v_lshl_add_u32 {r['vo']}, {t2}, 4, {t1}")
    A(f"v_cmp_gt_u32 vcc, 125, {t0}", f"v_mov_b32 {t3}, {hex(OOB)}")
    A(f"v_cndmask_b32 {r['vx']}, {t3}, {r['vx']}, vcc", f"v_cndmask_b32 {r['vo']}, {t3}, {r['vo']}, vcc")
    for q in range(4):
        A(f"buffer_load_dwordx2 {xr.sub(2*q,2)}, {r['vx']}, s[{SRD_X}:{SRD_X+3}], 0 offen offset:{16*q}")
    def dma(c):
        st = c % NST
        src, off = (S_SRC1, c * 8192) if c < 8 else (S_SRC2, (c - 8) * 8192)
        G = []
        for hf in range(2):
            G.append([f"s_add_u32 s{S_SO}, s{src}, {off + hf*4096}", f"s_add_u32 m0, s{S_M0}, {st*32768 + hf*4096}"])
            for j in range(4):
                G.append([f"buffer_load_dwordx4 {r['l16']}, {WS}, s{S_SO} offen offset:{j*1024} lds"])
        return G
    for c in range(NST):
        for g in dma(c): A.ext(g)
    A(f"s_lshl_b32 s56, s{S_WD}, 13", f"s_lshl_b32 s57, s{S_WQ}, 13", "s_add_u32 s57, s57, 16384")
    for k in range(3):
        A(f"s_add_u32 s58, s56, {k*65536}", f"v_add_u32 {va[k]}, s58, {r['l16']}")
        A(f"s_add_u32 s58, s57, {k*65536}", f"v_add_u32 {vb[k]}, s58, {r['l16']}")
    A(f"s_waitcnt vmcnt({8*NST + 4})")
    mg, li = r['mg'], r['li']
    A(f"v_max3_f32 {mg}, {stt[0]}, {stt[2]}, {stt[4]}", f"v_max3_f32 {mg}, {mg}, {stt[6]}, {stt[8]}",
      f"v_max3_f32 {mg}, {mg}, {stt[10]}, {stt[12]}", f"v_max_f32 {mg}, {mg}, {stt[14]}")
    for j in range(8): A(f"v_sub_f32 {stt[2*j]}, {stt[2*j]}, {mg}")
    for j in range(8): A(f"v_exp_f32 {stt[2*j]}, {stt[2*j]}")
    A(f"v_mul_f32 {li}, {stt[0]}, {stt[1]}")
    for j in range(1, 8): A(f"v_fmac_f32 {li}, {stt[2*j]}, {stt[2*j+1]}")
    A(f"v_rcp_f32 {li}, {li}")
    for j in range(8): A(f"v_mul_f32 {stt[2*j]}, {stt[2*j]}, {li}")
    def reads(g):
        c, k = g >> 3, g & 7; st = c % NST; b = g & 1
        off = (st & 1) * 32768 + k * 1024
        return [f"ds_read_b128 {fa[b]}, {va[st >> 1]} offset:{off}", f"ds_read_b128 {fb[b]}, {vb[st >> 1]} offset:{off}"]
    def fold(c):
        if c == 0: return [f"v_mul_f32 {acc[i]}, {stt[0]}, {tmp[0][i]}" for i in range(16)]
        return [f"v_fmac_f32 {acc[i]}, {stt[2*c]}, {tmp[c & 1][i]}" for i in range(16)]
    A(f"s_waitcnt vmcnt({8*(NST-1)})", "s_barrier")
    stamp(A, 1)
    A.ext(reads(0))
    pend = []; pfold = []
    for g in range(8 * NCH):
        c, k = g >> 3, g & 7; b = g & 1
        dst = tmp[c & 1] if c < 8 else accc
        first = (k == 0 and c <= 8)
        M = mfma(dst, fa[b], fb[b], '0' if first else None)
        A("s_waitcnt lgkmcnt(0)")
        rd = reads(g + 1) if g + 1 < 8 * NCH else []
        if k == 7 and c < NCH - 1:
            n = c + 1
            issued = min(NCH - 1, max(NST - 1, n + NST - 3))
            A(M)
            A(f"s_waitcnt vmcnt({8*(issued - n)})", "s_barrier")
            A.ext(rd)
            if c >= 1 and c + NST - 1 < NCH: pend = dma(c + NST - 1)
            if c < 8: pfold = fold(c)
        else:
            A(M); A.ext(rd)
            for _ in range(2):
                if pend: A.ext(pend.pop(0))
            if k >= 3 and pfold:
                A.ext(pfold[:4]); pfold = pfold[4:]
    assert not pend and not pfold
    stamp(A, 2)
    for i in range(8):
        A(f"v_lshlrev_b32 {xf[2*i]}, 16, {xr[i]}", f"v_and_b32 {xf[2*i+1]}, 0xffff0000, {xr[i]}")
    for i in range(8): A(f"v_pk_add_f32 {xf.sub(2*i,2)}, {xf.sub(2*i,2)}, {acc.sub(2*i,2)}")
    for i in range(8): A(f"v_pk_add_f32 {xf.sub(2*i,2)}, {xf.sub(2*i,2)}, {accc.sub(2*i,2)}")
    for i in range(8): A(f"v_cvt_pk_bf16_f32 {pk[i]}, {xf[2*i]}, {xf[2*i+1]}")
    for q in range(2):
        A(f"v_permlane32_swap_b32 {pk[4*q]}, {pk[4*q+2]}", f"v_permlane32_swap_b32 {pk[4*q+1]}, {pk[4*q+3]}")
    for q in range(2):
        A(f"buffer_store_dwordx4 {pk.sub(4*q,4)}, {r['vo']}, s[{SRD_O}:{SRD_O+3}], 0 offen offset:{32*q}")
    stamp_flush(A, 2, SRD_WS, stt[0], stt[1])
    if common.DIAG:
        A("s_mov_b64 exec, -1", "s_waitcnt vmcnt(0)", "s_cmp_lg_u32 s2, 0", "s_cbranch_scc1 L_EXIT_p3", "s_cmp_lg_u32 s28, 0", "s_cbranch_scc1 L_EXIT_p3")
        srd(A, SRD_X, 'dbg', 256)
        A(f"v_lshrrev_b32 {t0}, 2, {l}", f"v_lshlrev_b32 {t0}, 13, {t0}", f"v_and_b32 {t1}, 3, {l}", f"v_lshl_add_u32 {t0}, {t1}, 3, {t0}")
        A(f"v_add_u32 {t0}, {hex(STAMP)}, {t0}", f"v_cmp_gt_u32 vcc, 12, {l}", f"v_mov_b32 {t1}, {hex(OOB)}", f"v_cndmask_b32 {t0}, {t1}, {t0}, vcc")
        A(f"buffer_load_dword {t2}, {t0}, {WS}, 0 offen sc1", f"v_lshlrev_b32 {t1}, 2, {l}", "s_waitcnt vmcnt(0)")
        A(f"buffer_store_dword {t2}, {t1}, s[{SRD_X}:{SRD_X+3}], 0 offen", "s_waitcnt vmcnt(0)")
    A("L_EXIT_p3:")
    A("s_endpgm")
    return A, V.hi, 0
```

```python
import re

def v(i): return f"v{i}"
def a(i): return f"a{i}"
def s(i): return f"s{i}"
def vr(i, n): return f"v[{i}:{i+n-1}]" if n > 1 else f"v{i}"
def ar(i, n): return f"a[{i}:{i+n-1}]" if n > 1 else f"a{i}"
def sr(i, n): return f"s[{i}:{i+n-1}]" if n > 1 else f"s{i}"

class R:
    def __init__(self, kind, idx, n=1): self.kind, self.idx, self.n = kind, idx, n
    def __str__(self): return f"{self.kind}[{self.idx}:{self.idx+self.n-1}]" if self.n > 1 else f"{self.kind}{self.idx}"
    def __getitem__(self, k):
        if isinstance(k, slice):
            st = k.start or 0; en = self.n if k.stop is None else k.stop
            assert 0 <= st < en <= self.n
            return R(self.kind, self.idx + st, en - st)
        assert 0 <= k < self.n, (k, self.n)
        return R(self.kind, self.idx + k, 1)
    def sub(self, st, n): return self[st:st + n]

class Alloc:
    def __init__(self, kind, start, limit): self.kind, self.next, self.limit, self.hi = kind, start, limit, start
    def __call__(self, n=1, align=None):
        if align is None: align = 1 if n == 1 else (2 if self.kind != 's' else (4 if n >= 4 else 2))
        self.next = (self.next + align - 1) // align * align
        r = R(self.kind, self.next, n); self.next += n
        assert self.next <= self.limit, f"out of {self.kind} registers: {self.next} > {self.limit}"
        self.hi = max(self.hi, self.next)
        return r
    def mark(self): return self.next
    def reset(self, m): self.next = m

_REG = re.compile(r"^(-|abs\()?(v|a|s)(?:(\d+)|\[(\d+):(\d+)\])\)?$")
def regs_of(tok):
    tok = tok.strip()
    if tok in ('vcc',): return {('s', 'vcc_lo'), ('s', 'vcc_hi')}
    if tok in ('vcc_lo', 'vcc_hi', 'm0', 'exec_lo', 'exec_hi'): return {('s', tok)}
    if tok == 'exec': return {('s', 'exec_lo'), ('s', 'exec_hi')}
    m = _REG.match(tok)
    if not m: return set()
    k = m.group(2)
    if m.group(3) is not None: return {(k, int(m.group(3)))}
    return {(k, i) for i in range(int(m.group(4)), int(m.group(5)) + 1)}

TRANS = ('v_exp_f32', 'v_log_f32', 'v_rcp_f32', 'v_rsq_f32', 'v_sqrt_f32', 'v_sin_f32', 'v_cos_f32')
def split_ops(rest):
    out, depth, cur = [], 0, ''
    for ch in rest:
        if ch == '[': depth += 1
        if ch == ']': depth -= 1
        if ch == ',' and depth == 0: out.append(cur.strip()); cur = ''
        else: cur += ch
    if cur.strip(): out.append(cur.strip())
    return out

class I:
    def __init__(self, text):
        self.text = text
        t = text.split(';')[0].strip()
        self.mn, _, rest = t.partition(' ')
        ops = split_ops(rest)
        mods = ''
        if ops:
            last = ops[-1].split()
            ops[-1] = last[0] if last else ''
            mods = ' '.join(last[1:])
        self.ops, self.mods = ops, mods
        mn = self.mn
        self.cls = 'other'; self.w = set(); self.r = set(); self.passes = 0
        rg = [regs_of(o) for o in ops]
        if mn.startswith('v_mfma'):
            self.cls = 'mfma'; self.w = rg[0]; self.srcab = rg[1] | rg[2]; self.srcc = rg[3]; self.r = self.srcab | self.srcc
            self.passes = 8 if '32x32x16' in mn else (4 if '16x16x32' in mn else 16)
        elif mn.startswith('v_'):
            self.cls = 'valu'
            if mn.startswith('v_cmp'):
                self.w = rg[0]; self.r = set().union(*rg[1:])
            elif mn.startswith('v_permlane') and 'swap' in mn:
                self.w = rg[0] | rg[1]; self.r = rg[0] | rg[1]
            elif mn.startswith(('v_add_co', 'v_sub_co', 'v_addc_co', 'v_subb_co')):
                self.w = rg[0] | rg[1]; self.r = set().union(*rg[2:])
            else:
                self.w = rg[0]; self.r = set().union(*rg[1:]) if len(rg) > 1 else set()
                if mn.startswith(('v_fmac', 'v_dot2c', 'v_pk_fmac', 'v_writelane')): self.r |= rg[0]
                if mn.startswith('v_cndmask') and len(ops) == 3: self.r |= regs_of('vcc')
            self.trans = mn.replace('_e32', '').replace('_e64', '') in TRANS
            self.dpp = 'dpp' in mn or 'row_' in text or 'quad_perm' in text
        elif mn.startswith(('buffer_', 'global_')):
            self.cls = 'vmem'
            alltoks = ops
            lds = ' lds' in (' ' + mods) or 'load_lds' in mn
            if 'store' in mn or 'atomic' in mn:
                self.r = set().union(*rg)
                self.store = True
                self.data = rg[0] if mn.startswith('buffer_') else rg[1]
                self.wide = 'x4' in mn or 'x3' in mn
                if 'atomic' in mn and 'sc0' in mods: self.w = rg[0]
            else:
                self.store = False
                if lds: self.r = set().union(*rg) | {('s', 'm0')}
                else: self.w = rg[0]; self.r = set().union(*rg[1:])
            self.lds = lds
        elif mn.startswith('ds_'):
            self.cls = 'ds'
            if mn.startswith(('ds_read', 'ds_bpermute', 'ds_permute', 'ds_swizzle')):
                self.w = rg[0]; self.r = set().union(*rg[1:])
            else: self.r = set().union(*rg)
        elif mn.startswith('s_'):
            self.cls = 'salu'
            if mn in ('s_nop', 's_waitcnt', 's_barrier', 's_endpgm', 's_setprio', 's_sleep') or mn.startswith(('s_cbranch', 's_branch', 's_cmp', 's_bitcmp')):
                self.r = set().union(*rg) if rg else set()
            else:
                self.w = rg[0] if rg else set(); self.r = set().union(*rg[1:]) if len(rg) > 1 else set()
                if 'saveexec' in mn: self.w |= regs_of('exec')
    def states(self):
        if self.mn == 's_nop': return int(self.ops[0], 0) + 1
        return 1

def isvec(rs): return {x for x in rs if x[0] in 'va'}
def issg(rs): return {x for x in rs if x[0] == 's'}

def need(p, c):
    n = 0
    if p.cls == 'valu':
        wv = isvec(p.w); ws = issg(p.w)
        if p.mn.startswith('v_dot'):
            if c.mn == p.mn:
                if wv & (c.r - (regs_of(c.ops[3]) if len(c.ops) > 3 else set())): n = max(n, 3)
            elif wv & (c.r | c.w): n = max(n, 3)
        if c.cls == 'mfma' and wv & c.r: n = max(n, 2)
        if c.cls == 'valu':
            if wv & c.r:
                if c.mn.startswith(('v_readlane', 'v_readfirstlane')): n = max(n, 1)
                if c.dpp: n = max(n, 2)
                if c.mn.startswith('v_permlane'): n = max(n, 2)
                if p.trans and not c.trans: n = max(n, 1)
            if ws & c.r:
                n = max(n, 2)
                if c.mn.startswith(('v_readlane', 'v_writelane')): n = max(n, 4)
            if ws & {('s', 'exec_lo'), ('s', 'exec_hi')}: n = max(n, 5 if c.dpp else 4)
        if c.cls == 'vmem' and ws & c.r: n = max(n, 5)
        if c.cls == 'mfma' and ws & {('s', 'exec_lo'), ('s', 'exec_hi')}: n = max(n, 4)
        if c.cls == 'salu' and ws & c.r: n = max(n, 4)
    if p.cls == 'mfma':
        ps = p.passes
        big = {4: 8, 8: 12, 16: 20}[ps]
        if c.cls == 'mfma':
            if p.w & c.srcab: n = max(n, big)
            if p.w & c.srcc and not (p.w == c.srcc and p.passes == c.passes): n = max(n, {4: 6, 8: 10, 16: 18}[ps])
            if p.w & c.w and not (p.w == c.w): n = max(n, {4: 6, 8: 10, 16: 18}[ps])
        elif c.cls in ('valu', 'vmem', 'ds'):
            if p.w & (c.r | c.w): n = max(n, big)
            if c.cls == 'valu' and p.srcc & c.w: n = max(n, {4: 3, 8: 7, 16: 15}[ps])
    if p.cls == 'vmem' and p.store and p.wide:
        if c.cls == 'valu' and p.data & c.w: n = max(n, 2)
        elif p.data & c.w: n = max(n, 1)
    if p.cls == 'salu' and ('s', 'm0') in p.w and c.cls == 'vmem' and getattr(c, 'lds', False): n = max(n, 1)
    return n

def fix_hazards(lines, window=24):
    out = []; hist = []; added = 0
    for ln in lines:
        t = ln.strip()
        if not t or t.startswith((';', '.', '//')) or t.endswith(':'):
            out.append(ln); continue
        c = I(t)
        dist = 0; pad = 0
        for p in reversed(hist):
            nd = need(p, c)
            if nd > dist: pad = max(pad, nd - dist)
            dist += p.states()
            if dist >= window: break
        while pad > 0:
            k = min(pad, 16)
            out.append(f"s_nop {k-1}"); hist.append(I(f"s_nop {k-1}")); pad -= k; added += 1
        out.append(ln); hist.append(c)
        if len(hist) > 64: hist = hist[-40:]
    return out, added

class Asm:
    def __init__(self): self.L = []
    def __call__(self, *lines):
        for ln in lines:
            for x in str(ln).split('\n'):
                self.L.append(x)
    def ext(self, lines):
        for x in lines: self(x)

def interleave(main, fill, start=0, per=None):
    out = []; n = len(main) - start; k = 0
    for i, m in enumerate(main):
        out.append(m)
        if i >= start and n > 0:
            tgt = (len(fill) * (i - start + 1) + n - 1) // n if per is None else min(len(fill), per * (i - start + 1))
            while k < tgt: out.append(fill[k]); k += 1
    out += fill[k:]
    return out

def kd(name, vgpr, accum, sgpr=102):
    total = vgpr
    return f""".section .rodata,"a"
.p2align 6
.amdhsa_kernel {name}
  .amdhsa_next_free_vgpr {total}
  .amdhsa_next_free_sgpr {sgpr}
  .amdhsa_accum_offset {accum}
  .amdhsa_group_segment_fixed_size 0
  .amdhsa_kernarg_size 96
  .amdhsa_user_sgpr_count 2
  .amdhsa_user_sgpr_kernarg_segment_ptr 1
  .amdhsa_system_sgpr_workgroup_id_x 1
  .amdhsa_float_denorm_mode_32 3
.end_amdhsa_kernel
.text
"""


class VM:
    def __init__(self): self.ops = []
    def issue(self, tag): self.ops.append(tag)
    def need(self, tag):
        idx = [i for i, t in enumerate(self.ops) if t == tag]
        if not idx: return 63
        n = sum(1 for t in self.ops[idx[-1] + 1:] if t != 'cond')
        assert n <= 63, n
        return n

def is_vmem(line):
    t = line.strip()
    return t.startswith(('buffer_', 'global_'))

def spread(main, groups, first=0, last=None):
    last = len(main) - 1 if last is None else last
    n = last - first + 1; out = []; k = 0
    for i, m in enumerate(main):
        out.append(m)
        if first <= i <= last:
            tgt = (len(groups) * (i - first + 1) + n - 1) // n
            while k < tgt:
                out += groups[k]; k += 1
    for g in groups[k:]: out += g
    return out
```

```python
import sys, importlib
from common import *
import p1

STF = ''
def finish(A, name, hi, accum=None, agprs=0):
    if STF and name != 'p3_kernel':
        A.L = [(l + ' ' + STF if l.strip().startswith('buffer_store_dwordx4') and 'sc1' not in l else l) for l in A.L]
    lines, added = fix_hazards(A.L)
    vg = (hi + 7) // 8 * 8
    if agprs:
        acc = (hi + 3) // 4 * 4; total = acc + agprs
    else:
        acc = min(256, (hi + 3) // 4 * 4); total = hi
    head = f".globl {name}\n.p2align 8\n.type {name},@function\n{name}:\n"
    return head + "\n".join(lines) + "\n" + kd(name, total, acc), added

def build(parts, header):
    out = header + '.amdgcn_target "amdgcn-amd-amdhsa--gfx950"\n.text\n'
    for name, (A, hi, ag) in parts:
        txt, added = finish(A, name, hi, agprs=ag)
        n = sum(1 for l in A.L if l.strip() and not l.strip().endswith(':') and not l.strip().startswith(';'))
        print(f"{name}: {n} instructions, {added} hazard nops added, vgpr hi {hi}, agpr {ag}", file=sys.stderr)
        out += txt
    return out

if __name__ == '__main__':
    A, hi = p1.build()
    src = build([('p1_kernel', (A, hi, 0))], "; @launch kernel=p1_kernel grid=(256,1,1) block=(256,1,1) lds=163840\n")
    open('p1_only.s', 'w').write(src)
```

```python
from asmlib import *

KA = dict(x=0, wq=8, wk=16, wv=24, wao=32, wup=40, dw=48, wdn=56, wm=64, out=72, dbg=80, ws=88)
SP = dict(x=4, wq=6, wk=8, wv=10, wao=12, wup=14, dw=16, wdn=18, wm=20, out=22, dbg=24, ws=26)

QF   = 0x000000
KF   = 0x200000
VF   = 0x400000
UB   = 0x600000
GB   = UB + 2000 * 1024
WAMF = GB + 2000 * 1024
WDMF = WAMF + 0x80000
XST  = 0xB00000
GST  = 0xB10000
PF   = 0xC00000
V2F  = 0x1000000
UCF  = 0x1200000
SM   = 0x1400000
WS_END = 0x1440000
OOB  = 0x7ff00000

XBYTES = 2000 * 1024
LOG2E = 1.4426950408889634
QSCALE = 512 ** -0.5 * LOG2E

import struct
def f2u(x): return struct.unpack('<I', struct.pack('<f', x))[0]
def hexf(x): return hex(f2u(x))

def prologue(A, nwg):
    A(f"s_cmp_ge_u32 s2, {nwg}")
    A("s_cbranch_scc1 L_EXIT_%s" % A.tag)
    A("s_load_dwordx16 s[4:19], s[0:1], 0")
    A("s_load_dwordx8 s[20:27], s[0:1], 64")

def srd(A, dst, ptr, size, off_sgpr=None, off_imm=0):
    p = SP[ptr] if isinstance(ptr, str) else ptr
    if off_sgpr is None and off_imm == 0:
        A(f"s_mov_b32 s{dst}, s{p}")
        A(f"s_and_b32 s{dst+1}, s{p+1}, 0xffff")
    else:
        if off_sgpr is not None:
            A(f"s_add_u32 s{dst}, s{p}, {off_sgpr}")
            A(f"s_addc_u32 s{dst+1}, s{p+1}, 0")
            if off_imm:
                A(f"s_add_u32 s{dst}, s{dst}, {hex(off_imm)}")
                A(f"s_addc_u32 s{dst+1}, s{dst+1}, 0")
        else:
            A(f"s_add_u32 s{dst}, s{p}, {hex(off_imm)}")
            A(f"s_addc_u32 s{dst+1}, s{p+1}, 0")
        A(f"s_and_b32 s{dst+1}, s{dst+1}, 0xffff")
    A(f"s_mov_b32 s{dst+2}, {hex(size) if isinstance(size, int) else size}")
    A(f"s_mov_b32 s{dst+3}, 0x20000")

def mfma(d, a_, b_, c=None):
    return f"v_mfma_f32_32x32x16_bf16 {d}, {a_}, {b_}, {d if c is None else c}"

class KAsm(Asm):
    def __init__(self, tag): super().__init__(); self.tag = tag; self._n = 0
    def label(self, base):
        self._n += 1
        return f"L_{self.tag}_{base}_{self._n}"

STAMP = 0x1420000
DIAG = False
ROT = 0
PROLOG = False
POINTS = ['entry', 'b0', 'mainend', 'end']
def stamp(A, name):
    if isinstance(name, int): name = ['entry', 'b0', 'mainend', 'end'][name]
    if DIAG and name in POINTS:
        k = POINTS.index(name)
        A("s_memrealtime s[92:93]", "s_waitcnt lgkmcnt(0)", f"s_mov_b32 s{94+2*k}, s92")
        A("s_memtime s[92:93]", "s_waitcnt lgkmcnt(0)", f"s_mov_b32 s{95+2*k}, s92")
def stamp_flush(A, kidx, srd_ws, vt0, vt1, novm=False):
    if not DIAG: return
    lab = A.label('nostamp')
    if not novm: A("s_waitcnt vmcnt(0)")
    stamp(A, 3)
    A("s_cmp_lg_u32 s28, 0", f"s_cbranch_scc1 {lab}")
    A(f"s_lshl_b32 s93, s2, 5", f"s_add_u32 s93, s93, {hex(STAMP + kidx*8192)}")
    A("s_mov_b64 exec, 1")
    for k in range(4):
        A(f"v_mov_b32 {vt0}, s{94+2*k}", f"v_mov_b32 {vt1}, s{95+2*k}", f"v_mov_b32 v0, 0")
        A(f"buffer_store_dwordx2 v[{vt0.idx}:{vt0.idx+1}], v0, s[{srd_ws}:{srd_ws+3}], s93 offen offset:{8*k}", "s_nop 1")
    A(f"{lab}:")
```

```python
from common import *
import common

S_W, S_WT, S_WF, S_T0 = 28, 29, 30, 31
SRD_X = 32; SRD_W = [36, 40, 44]; SRD_WS = 48; SRD_DBG = 52
S_KW = [56, 57, 58]; S_KSTEP = [59, 60, 61]; S_KX = 62; S_M0X = 63; S_M0W = 64
S_XM = 66
S_I = 68; S_CT = 69
S_DSTA = 70; S_DSTB = 71; S_SCA = 72
S_SH = [73, 74, 75]
S_T = 80
S_C2 = 90
S_CNT = 79

XREG, WREG = 0, 65536
XST_B, WST_B = 16384, 24576

def lane_setup(A, V, r):
    A(f"v_and_b32 {r['lane']}, 63, v0")
    A(f"v_lshrrev_b32 {r['t0']}, 6, v0")
    A("s_nop 0")
    A(f"v_readfirstlane_b32 s{S_W}, {r['t0']}")
    A(f"s_lshr_b32 s{S_WT}, s{S_W}, 1")
    A(f"s_and_b32 s{S_WF}, s{S_W}, 1")

def dma_addr_setup(A, r, nslots):
    l = r['lane']; t0, t1, t2, t3 = r['t0'], r['t1'], r['t2'], r['t3']
    A(f"v_lshrrev_b32 {t0}, 3, {l}")
    A(f"v_lshrrev_b32 {t1}, 4, {l}")
    A(f"v_and_b32 {t2}, 7, {l}")
    A(f"v_xor_b32 {t3}, {t2}, {t1}")
    A(f"s_lshl_b32 s{S_T}, s{S_W}, 5")
    A(f"v_add_u32 {t0}, s{S_T}, {t0}")
    for j in range(4):
        d = r['vx_dma'][j]
        A(f"v_add_u32 {d}, {8*j}, {t0}")
        A(f"v_lshlrev_b32 {d}, 10, {d}")
        if j % 2 == 0: A(f"v_lshl_add_u32 {d}, {t3}, 4, {d}")
        else:
            A(f"v_xor_b32 {t1}, 4, {t3}")
            A(f"v_lshl_add_u32 {d}, {t1}, 4, {d}")
    A(f"v_lshrrev_b32 {t0}, 3, {l}")
    A(f"s_lshl_b32 s{S_T}, s{S_W}, 4")
    A(f"v_add_u32 {t0}, s{S_T}, {t0}")
    A(f"v_lshrrev_b32 {t1}, 4, {l}")
    A(f"v_and_b32 {t1}, 1, {t1}")
    A(f"v_lshlrev_b32 {t1}, 2, {t1}")
    A(f"v_xor_b32 {t1}, {t1}, {t2}")
    A(f"v_lshlrev_b32 {t1}, 4, {t1}")
    for p in range(nslots):
        for j in range(2):
            d = r['vw_dma'][2*p+j]
            A(f"v_add_u32 {d}, {8*j}, {t0}")
            A(f"v_lshlrev_b32 {d}, s{S_SH[p]}, {d}")
            A(f"v_add_u32 {d}, {d}, {t1}")
    A(f"s_lshl_b32 s{S_M0X}, s{S_W}, 12")
    A(f"s_lshl_b32 s{S_M0W}, s{S_W}, 11")
    A(f"s_add_u32 s{S_M0W}, s{S_M0W}, {WREG}")
    for p in range(nslots):
        A(f"s_mov_b32 s{S_KW[p]}, 0")
        A(f"s_lshl_b32 s{S_KSTEP[p]}, 64, s{S_SH[p]}")

def read_addr_setup(A, r, frs):
    l = r['lane']; t0, t1, t2, t3 = r['t0'], r['t1'], r['t2'], r['t3']
    A(f"v_and_b32 {t0}, 31, {l}")
    A(f"v_lshrrev_b32 {t1}, 1, {t0}")
    A(f"v_and_b32 {t1}, 7, {t1}")
    A(f"v_lshrrev_b32 {t2}, 5, {l}")
    A(f"s_lshl_b32 s{S_T}, s{S_WT}, 6")
    A(f"v_add_u32 {t0}, s{S_T}, {t0}")
    A(f"v_lshlrev_b32 {t0}, 7, {t0}")
    for s_ in range(4):
        d = r['vx_rd'][s_]
        A(f"v_or_b32 {t3}, {2*s_}, {t2}")
        A(f"v_xor_b32 {t3}, {t3}, {t1}")
        A(f"v_lshl_add_u32 {d}, {t3}, 4, {t0}")
    A(f"v_and_b32 {t0}, 15, {l}")
    A(f"v_lshrrev_b32 {t1}, 2, {t0}")
    A(f"v_lshl_add_u32 {t1}, {t2}, 3, {t1}")
    A(f"v_lshlrev_b32 {t1}, 7, {t1}")
    A(f"v_and_b32 {t3}, 1, {t0}")
    A(f"v_lshl_add_u32 {t1}, {t3}, 3, {t1}")
    A(f"v_bfe_u32 {t3}, {l}, 4, 1")
    A(f"v_lshlrev_b32 {t3}, 1, {t3}")
    A(f"v_bfe_u32 {t2}, {t0}, 1, 1")
    A(f"v_or_b32 {t3}, {t3}, {t2}")
    A(f"v_bfe_u32 {t2}, {t0}, 3, 1")
    A(f"v_lshlrev_b32 {t2}, 2, {t2}")
    A(f"v_xor_b32 {t3}, {t3}, {t2}")
    for k, (slot, e) in enumerate(frs):
        for half in range(2):
            d = r['vw_rd'][2*k+half]
            if e == 'wf':
                A(f"s_lshl_b32 s{S_T}, s{S_WF}, 2")
                A(f"v_xor_b32 {d}, s{S_T}, {t3}")
            else:
                A(f"v_xor_b32 {d}, {4*e}, {t3}")
            A(f"v_lshl_add_u32 {d}, {d}, 4, {t1}")
            if slot == 'wf':
                A(f"s_lshl_b32 s{S_T}, s{S_WF}, 13")
                A(f"s_add_u32 s{S_T}, s{S_T}, {WREG + half * 2 * WST_B}")
                A(f"v_add_u32 {d}, s{S_T}, {d}")
            else:
                A(f"v_add_u32 {d}, {WREG + half * 2 * WST_B + slot * 8192}, {d}")

def dma_chunk(r, c, nslots, masked):
    st = c & 3; G = []
    G.append([f"s_mov_b32 s{S_KX}, {c*128}"])
    for j in range(4):
        g = [f"s_add_u32 m0, s{S_M0X}, {st*XST_B + j*1024}"]
        if j == 3 and masked: g.append(f"s_mov_b64 exec, s[{S_XM}:{S_XM+1}]")
        else: g.append("s_nop 0")
        g.append(f"buffer_load_dwordx4 {r['vx_dma'][j]}, s[{SRD_X}:{SRD_X+3}], s{S_KX} offen lds")
        if j == 3 and masked: g.append("s_mov_b64 exec, -1")
        G.append(g)
    for p in range(nslots):
        for j in range(2):
            G.append([f"s_add_u32 m0, s{S_M0W}, {st*WST_B + p*8192 + j*1024}", "s_nop 0",
                      f"buffer_load_dwordx4 {r['vw_dma'][2*p+j]}, s[{SRD_W[p]}:{SRD_W[p]+3}], s{S_KW[p]} offen lds"])
        G.append([f"s_add_u32 s{S_KW[p]}, s{S_KW[p]}, s{S_KSTEP[p]}"])
    return G

def frag_reads(r, g, nf):
    c, s_ = g >> 2, g & 3; st = c & 3; b = g & 1
    L = [f"ds_read_b128 {r['fx'][b][0]}, {r['vx_rd'][s_]} offset:{st*XST_B}"]
    for k in range(nf):
        for u in range(2):
            off = (st & 1) * WST_B + (16*s_ + 4*u) * 128
            L.append(f"ds_read_b64_tr_b16 {r['fw'][b][k].sub(2*u, 2)}, {r['vw_rd'][2*k + (st >> 1)]} offset:{off}")
        if k == 0:
            L.append(f"ds_read_b128 {r['fx'][b][1]}, {r['vx_rd'][s_]} offset:{st*XST_B + 4096}")
    return L

def main_loop(A, r, nf, nslots, masked, w_is_a, hooks):
    vm = hooks.get('vm') or VM()
    stamp(A, 'setup')
    def emit(lines, tag=None):
        for x in lines:
            A(x)
            if is_vmem(x): vm.issue(tag)
    for c in range(2):
        for g in dma_chunk(r, c, nslots, masked): emit(g, ('c', c))
        if c == 0 and 'mid' in hooks: emit(hooks['mid'](vm), 'mid')
    stamp(A, 'issued')
    if 'pre' in hooks: emit(hooks['pre'](vm), 'pre')
    A(f"s_waitcnt vmcnt({vm.need(('c', 0))}) lgkmcnt(0)")
    A("s_barrier")
    stamp(A, 1)
    A.ext(frag_reads(r, 0, nf))
    for c in range(8):
        dm = dma_chunk(r, c + 2, nslots, masked) if c + 2 < 8 else []
        extra = [[x] for x in hooks.get(('chunk', c), [])]
        share = [dm[(len(dm) * q) // 4:(len(dm) * (q + 1)) // 4] for q in range(4)]
        share[0] = extra + share[0]
        for s_ in range(4):
            g = 4 * c + s_; b = g & 1
            M = []
            for k in range(nf):
                for tb in range(2):
                    acc = r['acc'][k][tb]
                    x, w = r['fx'][b][tb], r['fw'][b][k]
                    M.append(mfma(acc, w if w_is_a else x, x if w_is_a else w, '0' if g == 0 else None))
            if ('step', g) in hooks: emit(hooks[('step', g)](vm), ('step', g))
            A("s_waitcnt lgkmcnt(0)")
            rd = [[x] for x in frag_reads(r, g + 1, nf)] if g + 1 < 32 else []
            if s_ == 3 and c < 7:
                A(M[0]); A(M[1])
                A(f"s_waitcnt vmcnt({vm.need(('c', c + 1))})")
                A("s_barrier")
                seq = spread(M[2:], rd + share[3])
            else:
                nm = len(M)
                seq = spread(M, rd, 0, nm - 2)
                pos = [i for i, x in enumerate(seq) if x.startswith('v_mfma')]
                groups = share[s_]; out = []; k = 0
                for i, x in enumerate(seq):
                    out.append(x)
                    if i + 1 in pos or i == len(seq) - 1:
                        done = sum(1 for p in pos if p <= i)
                        tgt = (len(groups) * done + nm - 1) // nm
                        while k < tgt: out += groups[k]; k += 1
                for gq in groups[k:]: out += gq
                seq = out
            tagc = ('c', c + 2)
            for x in seq:
                A(x)
                if is_vmem(x): vm.issue(tagc if ' lds' in x else 'other')
    stamp(A, 2)

def gelu_block(A, r, y):
    t = r['tmp']; one = r['one2']; c1 = r['c1']
    P = range(8)
    for i in P: A(f"v_pk_mul_f32 {t.sub(2*i,2)}, {y.sub(2*i,2)}, {y.sub(2*i,2)}")
    for i in P: A(f"v_pk_fma_f32 {t.sub(2*i,2)}, {t.sub(2*i,2)}, s[{S_C2}:{S_C2+1}], {c1}")
    for i in P: A(f"v_pk_mul_f32 {t.sub(2*i,2)}, {t.sub(2*i,2)}, {y.sub(2*i,2)}")
    for i in range(16): A(f"v_exp_f32 {t[i]}, {t[i]}")
    for i in P: A(f"v_pk_add_f32 {t.sub(2*i,2)}, {t.sub(2*i,2)}, {one}")
    for i in range(16): A(f"v_rcp_f32 {t[i]}, {t[i]}")
    for i in P: A(f"v_pk_mul_f32 {y.sub(2*i,2)}, {y.sub(2*i,2)}, {t.sub(2*i,2)}")

def correct_block(A, r, acc, ab):
    cs = r['cs']
    for i in range(8):
        A(f"v_pk_mul_f32 {acc.sub(2*i,2)}, {acc.sub(2*i,2)}, {ab} op_sel:[0,0] op_sel_hi:[1,0]")
    for i in range(8):
        A(f"v_pk_fma_f32 {acc.sub(2*i,2)}, {cs.sub(2*i,2)}, {ab}, {acc.sub(2*i,2)} op_sel:[0,1,0] op_sel_hi:[1,1,1]")

def pack_block(A, r, acc, dst):
    for i in range(8): A(f"v_cvt_pk_bf16_f32 {dst[i]}, {acc[2*i]}, {acc[2*i+1]}")

def read_cs(A, r, k):
    base = r['vcsA'] if k < 2 else r['vcsB']
    for q in range(4):
        A(f"ds_read_b128 {r['cs'].sub(4*q,4)}, {base} offset:{(128*k if k < 2 else 0) + 32*q}")
    A("s_waitcnt lgkmcnt(0)")

def epi_lin(A, r, k, pk):
    read_cs(A, r, k)
    for tb in range(2):
        acc = r['acc'][k][tb]; ab = r['abs'][tb]; d = pk[tb]
        correct_block(A, r, acc, ab)
        pack_block(A, r, acc, d)
        A(f"s_add_u32 s{S_T}, s{S_DSTA}, {k*2048 + tb*32768}")
        for hf in range(2):
            A(f"buffer_store_dwordx4 {d.sub(4*hf,4)}, {r['vlin']}, s[{SRD_WS}:{SRD_WS+3}], s{S_T} offen offset:{hf*1024}")

def epi_gel(A, r, k, pk, sdst, extra):
    read_cs(A, r, k)
    for tb in range(2):
        acc = r['acc'][k][tb]; ab = r['ab'][tb]; d = pk[tb]
        correct_block(A, r, acc, ab)
        gelu_block(A, r, acc)
        pack_block(A, r, acc, d)
        for q in range(2):
            A(f"v_permlane32_swap_b32 {d[4*q]}, {d[4*q+2]}")
            A(f"v_permlane32_swap_b32 {d[4*q+1]}, {d[4*q+3]}")
        A(f"s_add_u32 s{S_T}, s{sdst}, {extra}")
        for q in range(2):
            A(f"buffer_store_dwordx4 {d.sub(4*q,4)}, {r['vgel'][tb]}, s[{SRD_WS}:{SRD_WS+3}], s{S_T} offen offset:{q*32}")

def build(name='p1_kernel'):
    A = KAsm('p1')
    V = Alloc('v', 1, 256)
    r = {}
    for n in ['lane', 't0', 't1', 't2', 't3', 'vlin', 'vcsA', 'vcsB', 'vpoll', 'vz']: r[n] = V(1)
    r['vx_dma'] = V(4, 1); r['vw_dma'] = V(6, 1); r['vx_rd'] = V(4, 1); r['vw_rd'] = V(6, 1)
    r['vgel'] = V(2, 1)
    r['ab'] = [V(2), V(2)]; r['abs'] = [V(2), V(2)]
    r['one2'] = V(2); r['c1'] = V(2)
    r['acc'] = [[V(16, 4), V(16, 4)] for _ in range(3)]
    r['fx'] = [[V(4), V(4)] for _ in range(2)]
    r['fw'] = [[V(4) for _ in range(3)] for _ in range(2)]
    r['cs'] = V(16, 4); r['tmp'] = V(16, 4)
    pk = [V(8, 4), V(8, 4)]
    st64 = V(0 + 16, 4)
    prologue(A, 256)
    stamp(A, 0)
    lane_setup(A, V, r)
    A("s_and_b32 s80, s2, 7")
    A("s_lshr_b32 s81, s2, 3")
    A("s_waitcnt lgkmcnt(0)")
    stamp(A, 'karg')
    srd(A, SRD_WS, 'ws', WS_END)
    srd(A, SRD_DBG, 'dbg', 256)
    A("s_cmp_ge_u32 s81, 28")
    A("s_cbranch_scc1 L_p1_weights")
    A("s_and_b32 s82, s80, 3", "s_lshl_b32 s82, s82, 2", "s_and_b32 s83, s81, 3", f"s_add_u32 s{S_I}, s82, s83")
    A("s_lshr_b32 s82, s80, 2", "s_mul_i32 s82, s82, 7", "s_lshr_b32 s83, s81, 2", f"s_add_u32 s{S_CT}, s82, s83")
    A(f"s_mul_i32 s82, s{S_I}, {125*1024}")
    srd(A, SRD_X, 'x', 125*1024, off_sgpr='s82')
    A(f"s_cmp_ge_u32 s{S_CT}, 12")
    A("s_cbranch_scc1 L_p1_setup_g")
    for p in range(2):
        A(f"s_lshl_b32 s82, s{S_CT}, 1", f"s_add_u32 s82, s82, {p}")
        A("s_cmp_lt_u32 s82, 16", f"s_cselect_b64 s[84:85], s[{SP['wk']}:{SP['wk']+1}], s[{SP['wv']}:{SP['wv']+1}]")
        A("s_cmp_lt_u32 s82, 8", f"s_cselect_b64 s[84:85], s[{SP['wq']}:{SP['wq']+1}], s[84:85]")
        A("s_and_b32 s83, s82, 7", "s_lshl_b32 s83, s83, 7")
        A("s_sub_u32 s86, 0x80000, s83")
        srd(A, SRD_W[p], 84, 's86', off_sgpr='s83')
        A(f"s_mov_b32 s{S_SH[p]}, 10")
    A(f"s_lshl_b32 s83, s{S_CT}, 7", "s_sub_u32 s86, 0x100000, s83")
    srd(A, SRD_W[2], 'wup', 's86', off_sgpr='s83')
    A(f"s_mov_b32 s{S_SH[2]}, 11")
    A(f"s_lshl_b32 s82, s{S_CT}, 1", f"s_add_u32 s82, s82, s{S_WF}")
    A("s_lshr_b32 s83, s82, 3", "s_lshl_b32 s83, s83, 21", "s_and_b32 s84, s82, 7", "s_lshl_b32 s84, s84, 12")
    A(f"s_add_u32 s{S_DSTA}, s83, s84")
    A("s_cmp_lt_u32 s82, 8", f"s_cselect_b32 s{S_SCA}, {hexf(QSCALE)}, 1.0")
    A(f"s_lshr_b32 s83, s{S_CT}, 3", f"s_mul_i32 s83, s83, {GB - UB}", f"s_and_b32 s84, s{S_CT}, 7", "s_lshl_b32 s84, s84, 7")
    A("s_add_u32 s83, s83, s84", f"s_lshl_b32 s84, s{S_WF}, 6", "s_add_u32 s83, s83, s84", f"s_add_u32 s{S_DSTB}, s83, {hex(UB)}")
    A("s_branch L_p1_setup_done")
    A("L_p1_setup_g:")
    for p in range(3):
        pp = p if p < 2 else 0
        A(f"s_sub_u32 s82, s{S_CT}, 12", "s_lshl_b32 s82, s82, 1", f"s_add_u32 s82, s82, {12 + pp}", "s_lshl_b32 s83, s82, 7")
        A("s_sub_u32 s86, 0x100000, s83")
        srd(A, SRD_W[p], 'wup', 's86', off_sgpr='s83')
        A(f"s_mov_b32 s{S_SH[p]}, 11")
    A(f"s_sub_u32 s82, s{S_CT}, 12", "s_lshl_b32 s82, s82, 1", f"s_add_u32 s82, s82, s{S_WF}", "s_add_u32 s82, s82, 12")
    A("s_and_b32 s84, s82, 7", "s_lshl_b32 s84, s84, 7", f"s_add_u32 s{S_DSTA}, s84, {hex(GB)}")
    A(f"s_mov_b32 s{S_DSTB}, 0", f"s_mov_b32 s{S_SCA}, 1.0")
    A("L_p1_setup_done:")
    dma_addr_setup(A, r, 3)
    A(f"s_mov_b32 s{S_XM}, -1", f"s_cmp_eq_u32 s{S_W}, 3", f"s_cselect_b32 s{S_XM+1}, 0xff, -1")
    l = r['lane']; t0, t1 = r['t0'], r['t1']
    A(f"v_lshrrev_b32 {t0}, 3, {l}", f"v_add_u32 {t0}, 125, {t0}", f"v_lshlrev_b32 {t0}, 7, {t0}")
    A(f"v_and_b32 {t1}, 7, {l}", f"v_lshl_add_u32 {t0}, {t1}, 4, {t0}")
    A(f"s_lshl_b32 s{S_T}, s{S_W}, 14", f"v_add_u32 {t0}, s{S_T}, {t0}")
    ones = r['tmp'].sub(0, 4)
    for q in range(4): A(f"v_mov_b32 {ones[q]}, 0x3f803f80")
    pre = [f"v_cmp_gt_u32 vcc, 24, {l}", "s_and_saveexec_b64 s[92:93], vcc", f"ds_write_b128 {t0}, {ones}", "s_mov_b64 exec, s[92:93]"]
    A.ext(pre)
    read_addr_setup(A, r, [('wf', 0), ('wf', 1), (2, 'wf')])
    t2, t3 = r['t2'], r['t3']
    A(f"s_lshl_b32 s82, s{S_I}, 2", f"s_lshl_b32 s83, s{S_WT}, 1", "s_add_u32 s82, s82, s83", "s_lshl_b32 s82, s82, 15")
    A(f"v_lshlrev_b32 {r['vlin']}, 4, {l}", f"v_add_u32 {r['vlin']}, s82, {r['vlin']}")
    A(f"v_lshrrev_b32 {t2}, 5, {l}", f"v_lshlrev_b32 {t2}, 4, {t2}")
    A(f"s_lshl_b32 s82, s{S_WF}, 8", f"v_add_u32 {r['vcsA']}, s82, {t2}")
    A(f"s_lshl_b32 s82, s{S_WF}, 7", "s_add_u32 s82, s82, 512", f"v_add_u32 {r['vcsB']}, s82, {t2}")
    A(f"v_and_b32 {t0}, 31, {l}", f"s_lshl_b32 s82, s{S_WT}, 6", f"v_add_u32 {t0}, s82, {t0}")
    A(f"s_mul_i32 s83, s{S_I}, 125")
    for tb in range(2):
        A(f"v_add_u32 {t1}, {32*tb}, {t0}")
        A(f"v_add_u32 {t3}, s83, {t1}", f"v_lshlrev_b32 {t3}, 10, {t3}", f"v_add_u32 {t3}, {t3}, {t2}")
        A(f"v_cmp_gt_u32 vcc, 125, {t1}", f"v_mov_b32 {r['vgel'][tb]}, {hex(OOB)}", f"v_cndmask_b32 {r['vgel'][tb]}, {r['vgel'][tb]}, {t3}, vcc")
    A(f"s_lshl_b32 s82, s{S_I}, 10", f"s_add_u32 s82, s82, {hex(XST)}", f"v_lshlrev_b32 {r['vz']}, 3, {t0}", f"v_add_u32 {r['vz']}, s82, {r['vz']}")
    A(f"s_lshl_b32 s82, s{S_I}, 2", f"v_mov_b32 {r['vpoll']}, s82")
    A(f"v_mov_b32 {r['one2'][0]}, 1.0", f"v_mov_b32 {r['one2'][1]}, 1.0")
    c1 = -2.0 * LOG2E * 0.7978845608028654
    A(f"v_mov_b32 {r['c1'][0]}, {hexf(c1)}", f"v_mov_b32 {r['c1'][1]}, {hexf(c1)}")
    A(f"s_mov_b32 s{S_C2}, {hexf(c1*0.044715)}", f"s_mov_b32 s{S_C2+1}, {hexf(c1*0.044715)}")
    pollv = r['t0']
    poll = [f"buffer_load_dword {pollv}, {r['vpoll']}, s[{SRD_DBG}:{SRD_DBG+3}], 0 offen sc1"]
    lp, lq = A.label('poll'), A.label('pollok')
    check = ["s_waitcnt vmcnt(0)", f"v_readfirstlane_b32 s{S_T+1}, {pollv}", "s_nop 3", f"s_cmp_ge_u32 s{S_T+1}, 2", f"s_cbranch_scc1 {lq}",
             f"s_mov_b32 s{S_CNT}, 0x40000", f"{lp}:", "s_sleep 4",
             f"buffer_load_dword {pollv}, {r['vpoll']}, s[{SRD_DBG}:{SRD_DBG+3}], 0 offen sc1", "s_waitcnt vmcnt(0)",
             f"v_readfirstlane_b32 s{S_T+1}, {pollv}", f"s_sub_u32 s{S_CNT}, s{S_CNT}, 1", "s_nop 2", f"s_cmp_eq_u32 s{S_CNT}, 0", f"s_cbranch_scc1 {lq}",
             f"s_cmp_ge_u32 s{S_T+1}, 2", f"s_cbranch_scc0 {lp}", f"{lq}:",
             f"buffer_load_dwordx2 {r['ab'][0]}, {r['vz']}, s[{SRD_WS}:{SRD_WS+3}], 0 offen sc1",
             f"buffer_load_dwordx2 {r['ab'][1]}, {r['vz']}, s[{SRD_WS}:{SRD_WS+3}], 0 offen offset:256 sc1"]
    main_loop(A, r, 3, 3, True, True, {('chunk', 6): poll, ('step', 29): lambda vm: check})
    A(f"s_cmp_eq_u32 s{S_WT}, 0", "s_cbranch_scc1 L_p1_nocs")
    A("s_mov_b32 exec_lo, 0x20000000", "s_mov_b32 exec_hi, 0x20000000", "s_nop 7")
    for k in range(3):
        base = r['vcsA'] if k < 2 else r['vcsB']
        for q in range(4):
            A(f"ds_write_b128 {base}, {r['acc'][k][1].sub(4*q,4)} offset:{(128*k if k < 2 else 0) + 32*q}")
    A("s_mov_b64 exec, -1")
    A("L_p1_nocs:")
    A("s_waitcnt lgkmcnt(0)", "s_barrier", "s_waitcnt vmcnt(0)")
    stamp(A, 'cs')
    for tb in range(2):
        A(f"v_pk_mul_f32 {r['abs'][tb]}, {r['ab'][tb]}, s[{S_SCA}:{S_SCA+1}] op_sel_hi:[1,0]")
    A(f"s_cmp_ge_u32 s{S_CT}, 12", "s_cbranch_scc1 L_p1_epi_g")
    epi_lin(A, r, 0, pk); epi_lin(A, r, 1, pk); stamp(A, 'lin'); epi_gel(A, r, 2, pk, S_DSTB, 0); stamp(A, 'gel')
    stamp_flush(A, 0, SRD_WS, r['ab'][0][0], r['ab'][0][1])
    A("s_endpgm")
    A("L_p1_epi_g:")
    epi_gel(A, r, 0, pk, S_DSTA, 0); epi_gel(A, r, 1, pk, S_DSTA, 64)
    stamp_flush(A, 0, SRD_WS, r['ab'][0][0], r['ab'][0][1])
    A("s_endpgm")
    A("L_p1_weights:")
    A("s_sub_u32 s81, s81, 28", "s_lshl_b32 s81, s81, 3", "s_add_u32 s81, s81, s80")
    J = 78
    A(f"s_mov_b32 s{J}, s81")
    A(f"s_lshr_b32 s82, s{J}, 1", f"s_mov_b32 s{S_I}, s82", f"s_mul_i32 s82, s82, {125*1024}")
    srd(A, SRD_W[2], 'x', 125*1024, off_sgpr='s82')
    stv = [r['cs'], r['tmp'], R('v', pk[0].idx, 16), st64]
    assert pk[1].idx == pk[0].idx + 8
    A(f"s_and_b32 s83, s{J}, 1", "s_lshl_b32 s83, s83, 6", f"s_lshl_b32 s84, s{S_W}, 4", "s_add_u32 s83, s83, s84")
    rowv = r['vgel']
    for g2 in range(2):
        A(f"v_lshrrev_b32 {rowv[g2]}, 3, {l}", f"v_add_u32 {rowv[g2]}, s83, {rowv[g2]}")
        if g2: A(f"v_add_u32 {rowv[g2]}, 8, {rowv[g2]}")
    for g2 in range(2):
        A(f"v_lshlrev_b32 {t0}, 10, {rowv[g2]}", f"v_and_b32 {t1}, 7, {l}", f"v_lshl_add_u32 {t0}, {t1}, 4, {t0}")
        for jj in range(8):
            q = g2 * 8 + jj
            A(f"buffer_load_dwordx4 {stv[q//4].sub(4*(q%4),4)}, {t0}, s[{SRD_W[2]}:{SRD_W[2]+3}], 0 offen offset:{jj*128}")
        A("s_nop 0")
    A(f"s_lshr_b32 s82, s{J}, 4")
    A("s_cmp_eq_u32 s82, 0", f"s_cselect_b64 s[84:85], s[{SP['wao']}:{SP['wao']+1}], s[{SP['wdn']}:{SP['wdn']+1}]")
    A(f"s_lshr_b32 s83, s{J}, 2", "s_and_b32 s83, s83, 3", "s_lshl_b32 s83, s83, 17")
    srd(A, SRD_X, 84, 131072, off_sgpr='s83')
    for p in range(2):
        A(f"s_lshr_b32 s82, s{J}, 4", "s_lshl_b32 s82, s82, 19", f"s_and_b32 s83, s{J}, 3", "s_lshl_b32 s83, s83, 8")
        A(f"s_add_u32 s83, s83, {128*p}", "s_sub_u32 s86, 0x80000, s83", "s_add_u32 s83, s83, s82")
        srd(A, SRD_W[p], 'wm', 's86', off_sgpr='s83')
        A(f"s_mov_b32 s{S_SH[p]}, 10")
    dma_addr_setup(A, r, 2)
    read_addr_setup(A, r, [('wf', 0), ('wf', 1)])
    st = []
    a1, a2 = r['ab'][0], r['ab'][1]
    onesb = r['one2'][0]
    st.append(f"v_mov_b32 {onesb}, 0x3f803f80")
    st.append("WAITSTAT")
    for g2 in range(2):
        sm, sq = (a1[0], a1[1]) if g2 == 0 else (a2[0], a2[1])
        first = True
        for jj in range(8):
            q = g2 * 8 + jj
            for d in range(4):
                x = stv[q//4][4*(q%4) + d]
                st.append(f"v_dot2_f32_bf16 {sm}, {x}, {onesb}, {'0' if first else sm}")
                st.append(f"v_dot2_f32_bf16 {sq}, {x}, {x}, {'0' if first else sq}")
                first = False
    for mod in ["quad_perm:[1,0,3,2]", "quad_perm:[2,3,0,1]", "row_half_mirror"]:
        for x in (a1[0], a1[1], a2[0], a2[1]):
            st.append(f"v_add_f32_dpp {x}, {x}, {x} {mod} row_mask:0xf bank_mask:0xf")
    for g2, ab in enumerate((a1, a2)):
        st += [f"v_mul_f32 {ab[0]}, {hexf(1/512)}, {ab[0]}",
               f"v_mul_f32 {ab[1]}, {hexf(1/512)}, {ab[1]}",
               f"v_fma_f32 {ab[1]}, -{ab[0]}, {ab[0]}, {ab[1]}",
               f"v_max_f32 {ab[1]}, 0, {ab[1]}",
               f"v_add_f32 {ab[1]}, {hexf(1e-5)}, {ab[1]}",
               f"v_rsq_f32 {ab[1]}, {ab[1]}",
               f"v_mul_f32 {t1}, -{ab[0]}, {ab[1]}" if False else f"v_mul_f32 {t1}, {ab[0]}, {ab[1]}",
               f"v_sub_f32 {t1}, 0, {t1}",
               f"v_cmp_gt_u32 vcc, 125, {rowv[g2]}",
               f"v_cndmask_b32 {ab[0]}, 0, {ab[1]}, vcc",
               f"v_cndmask_b32 {ab[1]}, 0, {t1}, vcc",
               f"s_lshl_b32 s82, s{S_I}, 10", f"s_add_u32 s82, s82, {hex(XST)}",
               f"v_lshlrev_b32 {t0}, 3, {rowv[g2]}", f"v_add_u32 {t0}, s82, {t0}",
               f"v_and_b32 {t1}, 7, {l}", f"v_cmp_eq_u32 vcc, 0, {t1}", f"v_mov_b32 {t1}, {hex(OOB)}",
               f"v_cndmask_b32 {t0}, {t1}, {t0}, vcc",
               f"buffer_store_dwordx2 {ab}, {t0}, s[{SRD_WS}:{SRD_WS+3}], 0 offen sc1", "s_nop 1"]
    pub = [f"s_lshl_b32 s82, s{S_I}, 2", f"v_mov_b32 {t0}, s82", f"v_mov_b32 {t1}, 1",
           f"s_cmp_lg_u32 s{S_W}, 0", "s_cbranch_scc1 L_p1_nopub", "s_mov_b64 exec, 1",
           f"buffer_atomic_add {t1}, {t0}, s[{SRD_DBG}:{SRD_DBG+3}], 0 offen", "s_mov_b64 exec, -1", "L_p1_nopub:"]
    weights_loop(A, r, st, pub)
    A(f"s_lshr_b32 s82, s{J}, 4", "s_lshl_b32 s82, s82, 19", f"s_add_u32 s82, s82, {hex(WAMF)}")
    A(f"s_and_b32 s83, s{J}, 3", "s_lshl_b32 s83, s83, 2", f"s_lshl_b32 s84, s{S_WF}, 1", "s_add_u32 s83, s83, s84", "s_lshl_b32 s83, s83, 15")
    A("s_add_u32 s82, s82, s83")
    A(f"s_lshr_b32 s83, s{J}, 2", "s_and_b32 s83, s83, 3", "s_lshl_b32 s83, s83, 2", f"s_lshl_b32 s84, s{S_WT}, 1", "s_add_u32 s83, s83, s84", "s_lshl_b32 s83, s83, 11")
    A("s_add_u32 s82, s82, s83")
    A(f"v_lshlrev_b32 {r['vlin']}, 4, {l}")
    for k in range(2):
        for tb in range(2):
            d = pk[tb]
            pack_block(A, r, r['acc'][k][tb], d)
            A(f"s_add_u32 s{S_T}, s82, {k*32768 + tb*2048}")
            for hf in range(2):
                A(f"buffer_store_dwordx4 {d.sub(4*hf,4)}, {r['vlin']}, s[{SRD_WS}:{SRD_WS+3}], s{S_T} offen offset:{hf*1024}")
    stamp_flush(A, 0, SRD_WS, r['ab'][0][0], r['ab'][0][1])
    A("L_EXIT_p1:")
    A("s_endpgm")
    return A, V.hi

def weights_loop(A, r, st, pub):
    vm = VM()
    for _ in range(16): vm.issue('stat')
    mid = lambda vm: [f"s_waitcnt vmcnt({vm.need('stat')})" if x == 'WAITSTAT' else x for x in st]
    pre = lambda vm: [f"s_waitcnt vmcnt({vm.need('mid')})", "s_barrier"] + list(pub)
    main_loop(A, r, 2, 2, False, False, {'mid': mid, 'pre': pre, 'vm': vm})
```

```python
from common import *
import common

S_W = 28; SRD_WS = 32; SRD_DW = 36
S_B, S_A0, S_B0, S_DST, S_STAT = 40, 41, 42, 43, 44
S_T = 48
S_M0 = 60; S_SA = 61; S_SB = 62

def gemm(A, r, extra_after=None):
    l16 = r['l16']
    def group(g):
        G = [[f"s_add_u32 s{S_SA}, s{S_A0}, {g*4096}", f"s_add_u32 s{S_SB}, s{S_B0}, {g*4096}", f"s_add_u32 m0, s{S_M0}, {g*4096}"]]
        for j in range(4):
            G.append([f"buffer_load_dwordx4 {l16}, s[{SRD_WS}:{SRD_WS+3}], s{S_SA} offen offset:{j*1024} lds"])
            G.append([f"buffer_load_dwordx4 {R('a', 4*(4*g+j), 4)}, {l16}, s[{SRD_WS}:{SRD_WS+3}], s{S_SB} offen offset:{j*1024}"])
        return G
    def reads(ks):
        b = ks & 1
        return [f"ds_read_b128 {r['fa'][b][mb]}, {r['va'][mb >> 1]} offset:{(mb & 1)*32768 + ks*1024}" for mb in range(4)]
    vm = VM()
    def emit(lines, tag):
        for x in lines:
            A(x)
            if is_vmem(x): vm.issue(tag)
    stamp(A, 'setup')
    for g in range(2):
        for x in group(g): emit(x, g)
    stamp(A, 'issued')
    A(f"s_waitcnt vmcnt({vm.need(0)})", "s_barrier")
    stamp(A, 1)
    A.ext(reads(0))
    for g in range(8):
        nxt = group(g + 2) if g + 2 < 8 else []
        share = [nxt[0:3], nxt[3:5], nxt[5:7], nxt[7:9]]
        for q in range(4):
            ks = 4 * g + q; b = ks & 1
            M = [mfma(r['acc'][mb], r['fa'][b][mb], R('a', 4*ks, 4), '0' if ks == 0 else None) for mb in range(4)]
            A("s_waitcnt lgkmcnt(0)")
            rd = [[x] for x in reads(ks + 1)] if ks < 31 else []
            if q == 3 and g < 7:
                A(M[0])
                A(f"s_waitcnt vmcnt({vm.need(g + 1)})", "s_barrier")
                emit(spread(M[1:], rd + share[3]), g + 2)
            else:
                emit(spread(M, rd[:2] + share[q][:1] + rd[2:] + share[q][1:]), g + 2)
    stamp(A, 2)

def store_frags(A, r, pk):
    for mb in range(4):
        d = pk[mb & 1]; acc = r['acc'][mb]
        for i in range(8): A(f"v_cvt_pk_bf16_f32 {d[i]}, {acc[2*i]}, {acc[2*i+1]}")
        if mb % 2 == 0: A(f"s_add_u32 s{S_T}, s{S_DST}, {mb*2048}")
        for hf in range(2):
            A(f"buffer_store_dwordx4 {d.sub(4*hf,4)}, {r['l16']}, s[{SRD_WS}:{SRD_WS+3}], s{S_T} offen offset:{(mb & 1)*2048 + hf*1024}")

def build():
    A = KAsm('p2')
    V = Alloc('v', 1, 256)
    r = {}
    for n in ['lane', 'l16', 't0', 'tpad', 't1', 't2', 't3']: r[n] = V(1)
    base = V.mark()
    r['va'] = V(2, 1)
    r['acc'] = [V(16, 4) for _ in range(4)]
    r['fa'] = [[V(4) for _ in range(4)] for _ in range(2)]
    pk = [V(8, 4), V(8, 4)]
    mx = V(2); sm = V(4); st2 = V(2)
    hi_gemm = V.hi
    l = r['lane']; t0, t1, t2, t3 = r['t0'], r['t1'], r['t2'], r['t3']
    prologue(A, 256)
    stamp(A, 0)
    A(f"v_and_b32 {l}, 63, v0", f"v_lshrrev_b32 {t0}, 6, v0", f"v_lshlrev_b32 {r['l16']}, 4, {l}")
    A(f"v_readfirstlane_b32 s{S_W}, {t0}")
    A("s_and_b32 s48, s2, 7", "s_lshr_b32 s49, s2, 3", f"s_lshr_b32 s{S_B}, s48, 2")
    A("s_waitcnt lgkmcnt(0)")
    stamp(A, 'karg')
    srd(A, SRD_WS, 'ws', WS_END)
    A("s_cmp_ge_u32 s49, 24", "s_cbranch_scc1 L_p2_conv")
    A(f"v_add_u32 {r['va'][1]}, 0x10000, {r['l16']}", f"v_mov_b32 {r['va'][0]}, {r['l16']}")
    A(f"s_lshl_b32 s{S_M0}, s{S_W}, 15")
    A("s_cmp_ge_u32 s49, 16", "s_cbranch_scc1 L_p2_vsetup")
    A("s_and_b32 s50, s48, 1", "s_lshl_b32 s50, s50, 2", "s_and_b32 s51, s49, 3", "s_add_u32 s50, s50, s51")
    A("s_lshr_b32 s51, s48, 1", "s_and_b32 s51, s51, 1", "s_lshl_b32 s51, s51, 2", "s_lshr_b32 s52, s49, 2", "s_add_u32 s51, s51, s52")
    A(f"s_lshl_b32 s52, s{S_B}, 3", "s_add_u32 s53, s52, s51", "s_lshl_b32 s53, s53, 2", f"s_add_u32 s53, s53, s{S_W}", "s_lshl_b32 s53, s53, 15")
    A(f"s_add_u32 s{S_A0}, s53, {hex(KF)}")
    A("s_add_u32 s53, s52, s50", "s_lshl_b32 s53, s53, 2", f"s_add_u32 s53, s53, s{S_W}")
    A("s_lshl_b32 s54, s53, 15", f"s_add_u32 s{S_B0}, s54, {hex(QF)}")
    A("s_lshl_b32 s54, s53, 16", "s_lshl_b32 s55, s51, 13", "s_add_u32 s54, s54, s55", f"s_add_u32 s{S_DST}, s54, {hex(PF)}")
    A("s_add_u32 s54, s52, s51", "s_lshl_b32 s54, s54, 10", "s_lshl_b32 s55, s50, 7", "s_add_u32 s54, s54, s55", f"s_lshl_b32 s55, s{S_W}, 5", "s_add_u32 s54, s54, s55")
    A("s_lshl_b32 s54, s54, 3", f"s_add_u32 s{S_STAT}, s54, {hex(SM)}")
    gemm(A, r)
    acc = r['acc']
    A(f"v_cmp_lt_u32 vcc, 31, {l}", f"v_mov_b32 {t0}, 0xff800000")
    for q in (13, 14, 15): A(f"v_cndmask_b32 {acc[3][q]}, {acc[3][q]}, {t0}, vcc")
    flat = [acc[mb][i] for mb in range(4) for i in range(16)]
    A(f"v_max3_f32 {mx[0]}, {flat[0]}, {flat[1]}, {flat[2]}", f"v_max3_f32 {mx[1]}, {flat[3]}, {flat[4]}, {flat[5]}")
    k = 6
    while k + 3 < 64:
        A(f"v_max3_f32 {mx[0]}, {mx[0]}, {flat[k]}, {flat[k+1]}", f"v_max3_f32 {mx[1]}, {mx[1]}, {flat[k+2]}, {flat[k+3]}")
        k += 4
    A(f"v_max3_f32 {mx[0]}, {mx[0]}, {flat[62]}, {flat[63]}")
    A(f"v_max_f32 {mx[0]}, {mx[0]}, {mx[1]}", f"v_mov_b32 {mx[1]}, {mx[0]}")
    A(f"v_permlane32_swap_b32 {mx[0]}, {mx[1]}", f"v_max_f32 {mx[0]}, {mx[0]}, {mx[1]}")
    for mb in range(4):
        a_ = acc[mb]
        for i in range(8):
            A(f"v_pk_add_f32 {a_.sub(2*i,2)}, {a_.sub(2*i,2)}, {mx} op_sel_hi:[1,0] neg_lo:[0,1] neg_hi:[0,1]")
        for i in range(16): A(f"v_exp_f32 {a_[i]}, {a_[i]}")
        for i in range(8):
            s_ = sm.sub(2*(i & 1), 2)
            if mb == 0 and i < 2: A(f"v_pk_add_f32 {s_}, {a_.sub(2*i,2)}, {a_.sub(2*(i+2),2)}")
            elif mb == 0 and i < 4: continue
            else: A(f"v_pk_add_f32 {s_}, {s_}, {a_.sub(2*i,2)}")
        d = pk[mb & 1]
        for i in range(8): A(f"v_cvt_pk_bf16_f32 {d[i]}, {a_[2*i]}, {a_[2*i+1]}")
        if mb % 2 == 0: A(f"s_add_u32 s{S_T}, s{S_DST}, {mb*2048}")
        for hf in range(2):
            A(f"buffer_store_dwordx4 {d.sub(4*hf,4)}, {r['l16']}, s[{SRD_WS}:{SRD_WS+3}], s{S_T} offen offset:{(mb & 1)*2048 + hf*1024}")
    A(f"v_pk_add_f32 {sm.sub(0,2)}, {sm.sub(0,2)}, {sm.sub(2,2)}", f"v_add_f32 {sm[0]}, {sm[0]}, {sm[1]}", f"v_mov_b32 {sm[1]}, {sm[0]}")
    A(f"v_permlane32_swap_b32 {sm[0]}, {sm[1]}", f"v_add_f32 {st2[1]}, {sm[0]}, {sm[1]}", f"v_mov_b32 {st2[0]}, {mx[0]}")
    A(f"v_lshlrev_b32 {t0}, 3, {l}", f"v_mov_b32 {t1}, {hex(OOB)}", f"v_cmp_gt_u32 vcc, 32, {l}", f"v_cndmask_b32 {t0}, {t1}, {t0}, vcc")
    A(f"buffer_store_dwordx2 {st2}, {t0}, s[{SRD_WS}:{SRD_WS+3}], s{S_STAT} offen")
    stamp_flush(A, 1, SRD_WS, mx[0], mx[1])
    A("s_endpgm")
    A("L_p2_vsetup:")
    A("s_sub_u32 s49, s49, 16", "s_and_b32 s50, s48, 3", "s_lshl_b32 s50, s50, 1", "s_and_b32 s51, s49, 1", "s_add_u32 s50, s50, s51")
    A("s_lshr_b32 s51, s49, 1")
    A(f"s_lshl_b32 s52, s{S_B}, 3", "s_add_u32 s53, s52, s50", "s_lshl_b32 s53, s53, 2", f"s_add_u32 s53, s53, s{S_W}", "s_lshl_b32 s53, s53, 15")
    A(f"s_add_u32 s{S_A0}, s53, {hex(VF)}")
    A("s_lshl_b32 s53, s51, 2", f"s_add_u32 s53, s53, s{S_W}")
    A("s_lshl_b32 s54, s53, 15", f"s_add_u32 s{S_B0}, s54, {hex(WAMF)}")
    A(f"s_lshl_b32 s54, s{S_B}, 4", "s_add_u32 s54, s54, s53", "s_lshl_b32 s54, s54, 16", "s_lshl_b32 s55, s50, 13", "s_add_u32 s54, s54, s55")
    A(f"s_add_u32 s{S_DST}, s54, {hex(V2F)}")
    gemm(A, r)
    store_frags(A, r, pk)
    stamp_flush(A, 1, SRD_WS, mx[0], mx[1])
    A("s_endpgm")
    A("L_p2_conv:")
    V.reset(base)
    stg = V(64, 4); gcol = V(62, 1); wp = V(62, 2); par = [V(4) for _ in range(4)]; gn = [V(2), V(2)]
    ab = V(2); vt4 = V(1); vlw = V(1); vlr = V(1); msk = V(1)
    acc = stg
    SRDW = f"s[{SRD_WS}:{SRD_WS+3}]"
    srd(A, SRD_DW, 'dw', 31 * 1024)
    A("s_sub_u32 s49, s49, 24", "s_and_b32 s50, s48, 3", "s_lshl_b32 s50, s50, 1", "s_lshr_b32 s51, s49, 2", "s_add_u32 s50, s50, s51")
    A("s_and_b32 s51, s49, 3")
    A("s_mul_i32 s52, s50, 125", "s_lshl_b32 s53, s51, 5", "s_add_u32 s52, s52, s53")
    A(f"s_mul_i32 s53, s{S_B}, 1000", "s_add_u32 s53, s53, s52", "s_lshl_b32 s53, s53, 10")
    S_G, S_U, S_T0 = 56, 57, 58
    A(f"s_add_u32 s{S_G}, s53, {hex(GB - 15*1024)}", f"s_add_u32 s{S_U}, s53, {hex(UB)}", f"s_mov_b32 s{S_T0}, s52")
    A(f"s_lshl_b32 s53, s{S_B}, 3", "s_add_u32 s53, s53, s50", "s_lshl_b32 s53, s53, 2", "s_add_u32 s53, s53, s51", "s_lshl_b32 s53, s53, 15")
    A(f"s_add_u32 s{S_DST}, s53, {hex(UCF)}")
    stamp(A, 'setup')
    A(f"v_lshrrev_b32 {t0}, 2, {l}", f"s_lshl_b32 s53, s{S_W}, 4", f"v_add_u32 {t0}, s53, {t0}")
    A(f"v_and_b32 {t1}, 3, {l}", f"v_lshlrev_b32 {t2}, 10, {t0}", f"v_lshl_add_u32 {t2}, {t1}, 4, {t2}")
    for jj in range(16):
        A(f"buffer_load_dwordx4 {stg.sub(4*jj,4)}, {t2}, {SRDW}, s{S_G} offen offset:{jj*64}")
    A(f"v_lshlrev_b32 {vt4}, 2, v0")
    def gload(s_):
        L = []
        if s_ % 4 == 0: L.append(f"s_add_u32 s{S_SA}, s{S_G}, {s_*1024}")
        L.append(f"buffer_load_dword {gcol[s_]}, {vt4}, {SRDW}, s{S_SA} offen offset:{(s_ % 4)*1024}")
        return L
    for s_ in range(44): A.ext(gload(s_))
    stamp(A, 'issued')
    A(f"v_mov_b32 {msk}, 0x3f803f80")
    A("s_waitcnt vmcnt(44)")
    stamp(A, 'statld')
    for jj in range(16):
        for d in range(4):
            x = stg[4*jj + d]; first = jj == 0 and d == 0
            A(f"v_dot2_f32_bf16 {ab[0]}, {x}, {msk}, {'0' if first else ab[0]}")
            A(f"v_dot2_f32_bf16 {ab[1]}, {x}, {x}, {'0' if first else ab[1]}")
    for mod in ["quad_perm:[1,0,3,2]", "quad_perm:[2,3,0,1]"]:
        for x in (ab[0], ab[1]): A(f"v_add_f32_dpp {x}, {x}, {x} {mod} row_mask:0xf bank_mask:0xf")
    A(f"v_mul_f32 {ab[0]}, {hexf(1/512)}, {ab[0]}", f"v_mul_f32 {ab[1]}, {hexf(1/512)}, {ab[1]}",
      f"v_fma_f32 {ab[1]}, -{ab[0]}, {ab[0]}, {ab[1]}", f"v_max_f32 {ab[1]}, 0, {ab[1]}", f"v_add_f32 {ab[1]}, {hexf(1e-5)}, {ab[1]}",
      f"v_rsq_f32 {ab[1]}, {ab[1]}", f"v_mul_f32 {t2}, {ab[0]}, {ab[1]}", f"v_sub_f32 {t2}, 0, {t2}")
    A(f"s_sub_u32 s53, s{S_T0}, 15", f"v_add_u32 {t3}, s53, {t0}", f"v_cmp_gt_u32 vcc, 1000, {t3}")
    A(f"v_cndmask_b32 {ab[0]}, 0, {ab[1]}, vcc", f"v_cndmask_b32 {ab[1]}, 0, {t2}, vcc")
    A(f"v_lshlrev_b32 {t2}, 3, {t0}", f"v_cmp_eq_u32 vcc, 0, {t1}", "s_and_saveexec_b64 s[54:55], vcc")
    A(f"ds_write_b64 {t2}, {ab}", "s_mov_b64 exec, s[54:55]")
    stamp(A, 'statdone')
    A("s_waitcnt vmcnt(12)")
    for s_ in range(44, 62): A.ext(gload(s_))
    for i in range(31):
        if i % 4 == 0: A(f"s_mov_b32 s{S_SB}, {i*1024}")
        A(f"buffer_load_dword {wp[2*i+1]}, {vt4}, s[{SRD_DW}:{SRD_DW+3}], s{S_SB} offen offset:{(i % 4)*1024}")
    A(f"v_mov_b32 {msk}, 0xffff0000", f"v_mov_b32 {t0}, 0")
    PARB = 0
    A("s_waitcnt lgkmcnt(0)", "s_barrier")
    stamp(A, 1)
    def pread(p): return f"ds_read_b128 {par[p % 4]}, {t0} offset:{PARB + p*16}"
    for p in range(3): A(pread(p))
    A("s_waitcnt vmcnt(0)")
    for i in range(31):
        A(f"v_lshlrev_b32 {wp[2*i]}, 16, {wp[2*i+1]}", f"v_and_b32 {wp[2*i+1]}, {msk}, {wp[2*i+1]}")
    def uload(t):
        L = []
        if t % 4 == 0: L.append(f"s_add_u32 s{S_SA}, s{S_U}, {t*1024}")
        L.append(f"buffer_load_dword {gcol[t]}, {vt4}, {SRDW}, s{S_SA} offen offset:{(t % 4)*1024}")
        return L
    for s_ in range(62):
        p = s_ >> 1
        if s_ % 2 == 0:
            A(f"s_waitcnt lgkmcnt({min(2, 30 - p)})")
        g = gn[s_ & 1]; pr = par[p % 4].sub(2*(s_ & 1), 2)
        A(f"v_lshlrev_b32 {g[0]}, 16, {gcol[s_]}", f"v_and_b32 {g[1]}, {msk}, {gcol[s_]}")
        A(f"v_pk_fma_f32 {g}, {g}, {pr}, {pr} op_sel:[0,0,1] op_sel_hi:[1,0,1]")
        if s_ % 2 == 1 and p + 3 <= 30: A(pread(p + 3))
        if s_ >= 30 and s_ - 30 < 32: A.ext(uload(s_ - 30))
        for t in range(max(0, s_ - 30), min(31, s_) + 1):
            i = s_ - t; a_ = acc.sub(2*t, 2); w_ = wp.sub(2*i, 2)
            if i == 0: A(f"v_pk_mul_f32 {a_}, {g}, {w_}")
            else: A(f"v_pk_fma_f32 {a_}, {g}, {w_}, {a_}")
    stamp(A, 2)
    UCB = 1024
    A(f"v_add_u32 {vlw}, {UCB}, {vt4}")
    A("s_waitcnt vmcnt(0)")
    for t in range(32):
        g = gn[t & 1]; a_ = acc.sub(2*t, 2)
        A(f"v_lshlrev_b32 {g[0]}, 16, {gcol[t]}", f"v_and_b32 {g[1]}, {msk}, {gcol[t]}")
        A(f"v_pk_mul_f32 {a_}, {a_}, {g}")
        A(f"v_cvt_pk_bf16_f32 {gcol[t]}, {a_[0]}, {a_[1]}")
        A(f"ds_write_b32 {vlw}, {gcol[t]} offset:{t*1032}")
    A(f"v_and_b32 {t0}, 31, {l}", f"v_mul_u32_u24 {t0}, 1032, {t0}", f"v_lshrrev_b32 {t1}, 5, {l}", f"v_lshl_add_u32 {t0}, {t1}, 3, {t0}")
    A(f"s_lshl_b32 s53, s{S_W}, 8", f"s_add_u32 s53, s53, {UCB}", f"v_add_u32 {vlr}, s53, {t0}")
    A("s_waitcnt lgkmcnt(0)", "s_barrier")
    for k in range(8):
        A(f"ds_read2_b64 {wp.sub(4*k,4)}, {vlr} offset0:{4*k} offset1:{4*k+2}")
    A(f"s_lshl_b32 s53, s{S_W}, 13", f"s_add_u32 s{S_DST}, s{S_DST}, s53")
    for k in range(8):
        A(f"s_waitcnt lgkmcnt({7-k})")
        if k % 4 == 0: A(f"s_add_u32 s{S_T}, s{S_DST}, {k*1024}")
        A(f"buffer_store_dwordx4 {wp.sub(4*k,4)}, {r['l16']}, {SRDW}, s{S_T} offen offset:{(k % 4)*1024}")
    stamp_flush(A, 1, SRD_WS, ab[0], ab[1])
    A("L_EXIT_p2:")
    A("s_endpgm")
    return A, max(V.hi, hi_gemm), 128
```

```python
from common import *
import common

LDS = 163840
S_W = 28; SRD_WS = 32; SRD_X = 36; SRD_O = 40
S_WD, S_WQ, S_SRC1, S_SRC2, S_M0, S_SO, S_B = 44, 45, 46, 47, 48, 49, 50
S_T = 52
NST = 5; NCH = 12

def build():
    A = KAsm('p3')
    V = Alloc('v', 1, 256)
    r = {}
    for n in ['lane', 'l16', 't0', 't1', 't2', 't3', 'vx', 'vo', 'mg', 'li']: r[n] = V(1)
    va = V(3, 1); vb = V(3, 1)
    stt = V(16, 2)
    xr = V(8, 2)
    acc = V(16, 4); accc = V(16, 4); tmp = [V(16, 4), V(16, 4)]
    fa = [V(4), V(4)]; fb = [V(4), V(4)]
    pk = V(8, 4); xf = V(16, 2)
    l = r['lane']; t0, t1, t2, t3 = r['t0'], r['t1'], r['t2'], r['t3']
    WS = f"s[{SRD_WS}:{SRD_WS+3}]"
    prologue(A, 256)
    stamp(A, 0)
    A(f"v_and_b32 {l}, 63, v0", f"v_lshrrev_b32 {t0}, 6, v0", f"v_lshlrev_b32 {r['l16']}, 4, {l}")
    A(f"v_readfirstlane_b32 s{S_W}, {t0}")
    A("s_and_b32 s52, s2, 7", "s_lshr_b32 s53, s2, 3", f"s_lshr_b32 s{S_B}, s52, 2")
    A("s_and_b32 s54, s52, 3", "s_lshl_b32 s54, s54, 2", "s_and_b32 s55, s53, 3", "s_add_u32 s54, s54, s55")
    A("s_lshr_b32 s55, s53, 2")
    A(f"s_and_b32 s{S_WD}, s{S_W}, 1", f"s_lshr_b32 s{S_WQ}, s{S_W}, 1")
    A("s_waitcnt lgkmcnt(0)")
    stamp(A, 'karg')
    srd(A, SRD_WS, 'ws', WS_END); srd(A, SRD_X, 'x', XBYTES); srd(A, SRD_O, 'out', XBYTES)
    A(f"s_cmp_ge_u32 s{S_W}, 2", "s_cbranch_scc1 L_p3_bsrc")
    A("s_lshl_b32 s56, s55, 1", f"s_add_u32 s56, s56, s{S_W}")
    A(f"s_lshl_b32 s57, s{S_B}, 4", "s_add_u32 s57, s57, s56", "s_lshl_b32 s57, s57, 16", f"s_add_u32 s{S_SRC1}, s57, {hex(V2F)}")
    A("s_lshl_b32 s57, s56, 15", f"s_add_u32 s{S_SRC2}, s57, {hex(WDMF)}")
    A("s_branch L_p3_srcdone")
    A("L_p3_bsrc:")
    A("s_lshl_b32 s56, s54, 1", f"s_add_u32 s56, s56, s{S_W}", "s_sub_u32 s56, s56, 2", f"s_lshl_b32 s57, s{S_B}, 5", "s_add_u32 s56, s56, s57")
    A("s_lshl_b32 s57, s56, 16", f"s_add_u32 s{S_SRC1}, s57, {hex(PF)}")
    A("s_lshl_b32 s57, s56, 15", f"s_add_u32 s{S_SRC2}, s57, {hex(UCF)}")
    A("L_p3_srcdone:")
    A(f"s_lshl_b32 s{S_M0}, s{S_W}, 13")
    A(f"s_lshl_b32 s56, s{S_B}, 13", "s_lshl_b32 s57, s54, 6", "s_add_u32 s56, s56, s57", f"s_lshl_b32 s57, s{S_WQ}, 5", "s_add_u32 s56, s56, s57")
    A("s_lshl_b32 s56, s56, 3", f"s_add_u32 s56, s56, {hex(SM)}")
    A(f"v_and_b32 {t0}, 31, {l}", f"v_lshlrev_b32 {t1}, 3, {t0}")
    for j in range(8):
        A(f"s_add_u32 s57, s56, {j*8192}")
        A(f"buffer_load_dwordx2 {stt.sub(2*j,2)}, {t1}, {WS}, s57 offen")
    A("s_and_b32 s56, s54, 1", "s_lshl_b32 s56, s56, 6", f"s_lshl_b32 s57, s{S_WQ}, 5", "s_add_u32 s56, s56, s57", f"v_add_u32 {t0}, s56, {t0}")
    A(f"s_lshl_b32 s56, s{S_B}, 3", "s_lshr_b32 s57, s54, 1", "s_add_u32 s56, s56, s57", "s_mul_i32 s56, s56, 125")
    A(f"v_add_u32 {t1}, s56, {t0}", f"v_lshlrev_b32 {t1}, 10, {t1}")
    A("s_lshl_b32 s56, s55, 7", f"s_lshl_b32 s57, s{S_WD}, 6", "s_add_u32 s56, s56, s57", f"v_add_u32 {t1}, s56, {t1}")
    A(f"v_lshrrev_b32 {t2}, 5, {l}")
    A(f"v_lshl_add_u32 {r['vx']}, {t2}, 3, {t1}", f"v_lshl_add_u32 {r['vo']}, {t2}, 4, {t1}")
    A(f"v_cmp_gt_u32 vcc, 125, {t0}", f"v_mov_b32 {t3}, {hex(OOB)}")
    A(f"v_cndmask_b32 {r['vx']}, {t3}, {r['vx']}, vcc", f"v_cndmask_b32 {r['vo']}, {t3}, {r['vo']}, vcc")
    for q in range(4):
        A(f"buffer_load_dwordx2 {xr.sub(2*q,2)}, {r['vx']}, s[{SRD_X}:{SRD_X+3}], 0 offen offset:{16*q}")
    stamp(A, 'setup')
    def dma(c):
        st = c % NST
        src, off = (S_SRC1, c * 8192) if c < 8 else (S_SRC2, (c - 8) * 8192)
        G = []
        for hf in range(2):
            G.append([f"s_add_u32 s{S_SO}, s{src}, {off + hf*4096}", f"s_add_u32 m0, s{S_M0}, {st*32768 + hf*4096}"])
            for j in range(4):
                G.append([f"buffer_load_dwordx4 {r['l16']}, {WS}, s{S_SO} offen offset:{j*1024} lds"])
        return G
    vm = VM()
    for _ in range(8): vm.issue('stat')
    for _ in range(4): vm.issue('x')
    def emit(lines, tag):
        for x in lines:
            A(x)
            if is_vmem(x): vm.issue(tag)
    for c in range(2):
        for g in dma(c): emit(g, c)
    stamp(A, 'issued')
    A(f"s_lshl_b32 s56, s{S_WD}, 13", f"s_lshl_b32 s57, s{S_WQ}, 13", "s_add_u32 s57, s57, 16384")
    for k in range(3):
        A(f"s_add_u32 s58, s56, {k*65536}", f"v_add_u32 {va[k]}, s58, {r['l16']}")
        A(f"s_add_u32 s58, s57, {k*65536}", f"v_add_u32 {vb[k]}, s58, {r['l16']}")
    A(f"s_waitcnt vmcnt({vm.need('stat')})")
    mg, li = r['mg'], r['li']
    A(f"v_max3_f32 {mg}, {stt[0]}, {stt[2]}, {stt[4]}", f"v_max3_f32 {mg}, {mg}, {stt[6]}, {stt[8]}",
      f"v_max3_f32 {mg}, {mg}, {stt[10]}, {stt[12]}", f"v_max_f32 {mg}, {mg}, {stt[14]}")
    for j in range(8): A(f"v_sub_f32 {stt[2*j]}, {stt[2*j]}, {mg}")
    for j in range(8): A(f"v_exp_f32 {stt[2*j]}, {stt[2*j]}")
    A(f"v_mul_f32 {li}, {stt[0]}, {stt[1]}")
    for j in range(1, 8): A(f"v_fmac_f32 {li}, {stt[2*j]}, {stt[2*j+1]}")
    A(f"v_rcp_f32 {li}, {li}")
    for j in range(8): A(f"v_mul_f32 {stt[2*j]}, {stt[2*j]}, {li}")
    def reads(g):
        c, k = g >> 3, g & 7; st = c % NST; b = g & 1
        off = (st & 1) * 32768 + k * 1024
        return [f"ds_read_b128 {fa[b]}, {va[st >> 1]} offset:{off}", f"ds_read_b128 {fb[b]}, {vb[st >> 1]} offset:{off}"]
    def fold(c):
        if c == 0: return [f"v_mul_f32 {acc[i]}, {stt[0]}, {tmp[0][i]}" for i in range(16)]
        return [f"v_fmac_f32 {acc[i]}, {stt[2*c]}, {tmp[c & 1][i]}" for i in range(16)]
    A(f"s_waitcnt vmcnt({vm.need(0)})", "s_barrier")
    stamp(A, 1)
    A.ext(reads(0))
    pfold = []
    for c in range(NCH):
        nxt = dma(c + 2) if c + 2 < NCH else []
        share = [nxt[0:2], nxt[2:3], nxt[3:4], nxt[4:5], nxt[5:7], nxt[7:8], nxt[8:9], nxt[9:10]] if nxt else [[]] * 8
        for k in range(8):
            g = 8 * c + k; b = g & 1
            dst = tmp[c & 1] if c < 8 else accc
            first = (k == 0 and c <= 8)
            M = mfma(dst, fa[b], fb[b], '0' if first else None)
            A("s_waitcnt lgkmcnt(0)")
            rd = reads(g + 1) if g + 1 < 8 * NCH else []
            A(M)
            if k == 7 and c < NCH - 1:
                A(f"s_waitcnt vmcnt({vm.need(c + 1)})", "s_barrier")
            A.ext(rd)
            for grp in share[k]: emit(grp, c + 2)
            if k >= 3 and pfold:
                A.ext(pfold[:4]); pfold = pfold[4:]
        if c < 8: pfold = fold(c)
    assert not pfold
    stamp(A, 2)
    for i in range(8):
        A(f"v_lshlrev_b32 {xf[2*i]}, 16, {xr[i]}", f"v_and_b32 {xf[2*i+1]}, 0xffff0000, {xr[i]}")
    for i in range(8): A(f"v_pk_add_f32 {xf.sub(2*i,2)}, {xf.sub(2*i,2)}, {acc.sub(2*i,2)}")
    for i in range(8): A(f"v_pk_add_f32 {xf.sub(2*i,2)}, {xf.sub(2*i,2)}, {accc.sub(2*i,2)}")
    for i in range(8): A(f"v_cvt_pk_bf16_f32 {pk[i]}, {xf[2*i]}, {xf[2*i+1]}")
    for q in range(2):
        A(f"v_permlane32_swap_b32 {pk[4*q]}, {pk[4*q+2]}", f"v_permlane32_swap_b32 {pk[4*q+1]}, {pk[4*q+3]}")
    for q in range(2):
        A(f"buffer_store_dwordx4 {pk.sub(4*q,4)}, {r['vo']}, s[{SRD_O}:{SRD_O+3}], 0 offen offset:{32*q}")
    stamp_flush(A, 2, SRD_WS, stt[0], stt[1])
    if common.DIAG:
        A("s_mov_b64 exec, -1", "s_waitcnt vmcnt(0)", "s_cmp_lg_u32 s2, 0", "s_cbranch_scc1 L_EXIT_p3", "s_cmp_lg_u32 s28, 0", "s_cbranch_scc1 L_EXIT_p3")
        srd(A, SRD_X, 'dbg', 256)
        A(f"v_lshrrev_b32 {t0}, 2, {l}", f"v_lshlrev_b32 {t0}, 13, {t0}", f"v_and_b32 {t1}, 3, {l}", f"v_lshl_add_u32 {t0}, {t1}, 3, {t0}")
        A(f"v_add_u32 {t0}, {hex(STAMP)}, {t0}", f"v_cmp_gt_u32 vcc, 12, {l}", f"v_mov_b32 {t1}, {hex(OOB)}", f"v_cndmask_b32 {t0}, {t1}, {t0}, vcc")
        A(f"buffer_load_dword {t2}, {t0}, {WS}, 0 offen sc1", f"v_lshlrev_b32 {t1}, 2, {l}", "s_waitcnt vmcnt(0)")
        A(f"buffer_store_dword {t2}, {t1}, s[{SRD_X}:{SRD_X+3}], 0 offen", "s_waitcnt vmcnt(0)")
    A("L_EXIT_p3:")
    A("s_endpgm")
    return A, V.hi, 0
```

```python
import sys
sys.path.insert(0, 'gen')
import common
if 'diag' in sys.argv: common.DIAG = True
for a_ in sys.argv:
    if a_.startswith('rot='): common.ROT = int(a_[4:])
    if a_.startswith('points='): common.POINTS = a_[7:].split(',')
import build, p1, p2
for a_ in sys.argv:
    if a_ == 'noendwait': build.ENDWAIT = False
    if a_.startswith('stf='): build.STF = a_[4:].replace('_', ' ')
parts = []
A1, h1 = p1.build(); parts.append(('p1_kernel', (A1, h1, 0)))
A2, h2, ag = p2.build(); parts.append(('p2_kernel', (A2, h2, ag)))
try:
    import p3
    A3, h3, ag3 = p3.build(); parts.append(('p3_kernel', (A3, h3, ag3)))
except ImportError:
    pass
hdr = open('standalone__conformer_family_branchformer__speech.s.ref').read().split('; Override launch')[0]
launch = "; @launch kernel=p1_kernel grid=(256,1,1) block=(256,1,1) lds=163840\n; @launch kernel=p2_kernel grid=(256,1,1) block=(256,1,1) lds=132096\n; @launch kernel=p3_kernel grid=(256,1,1) block=(256,1,1) lds=%d\n" % (getattr(sys.modules.get('p3'), 'LDS', 0))
src = build.build(parts, hdr + launch)
out = sys.argv[1] if len(sys.argv) > 1 else 'all.s'
open(out, 'w').write(src)
```

```python
import sys, importlib
from common import *
import p1

STF = ''
ENDWAIT = True
def finish(A, name, hi, accum=None, agprs=0):
    if STF and name != 'p3_kernel':
        A.L = [(l + ' ' + STF if l.strip().startswith('buffer_store_dwordx4') and 'sc1' not in l else l) for l in A.L]
    if ENDWAIT:
        L2 = []
        for l in A.L:
            if l.strip() == 's_endpgm': L2.append('s_waitcnt vmcnt(0)')
            L2.append(l)
        A.L = L2
    lines, added = fix_hazards(A.L)
    vg = (hi + 7) // 8 * 8
    if agprs:
        acc = (hi + 3) // 4 * 4; total = acc + agprs
    else:
        acc = min(256, (hi + 3) // 4 * 4); total = hi
    head = f".globl {name}\n.p2align 8\n.type {name},@function\n{name}:\n"
    return head + "\n".join(lines) + "\n" + kd(name, total, acc), added

def build(parts, header):
    out = header + '.amdgcn_target "amdgcn-amd-amdhsa--gfx950"\n.text\n'
    for name, (A, hi, ag) in parts:
        txt, added = finish(A, name, hi, agprs=ag)
        n = sum(1 for l in A.L if l.strip() and not l.strip().endswith(':') and not l.strip().startswith(';'))
        print(f"{name}: {n} instructions, {added} hazard nops added, vgpr hi {hi}, agpr {ag}", file=sys.stderr)
        out += txt
    return out

if __name__ == '__main__':
    A, hi = p1.build()
    src = build([('p1_kernel', (A, hi, 0))], "; @launch kernel=p1_kernel grid=(256,1,1) block=(256,1,1) lds=163840\n")
    open('p1_only.s', 'w').write(src)
```

```python
from common import *
import common

S_W, S_WT, S_WF, S_T0 = 28, 29, 30, 31
SRD_X = 32; SRD_W = [36, 40, 44]; SRD_WS = 48; SRD_DBG = 52
S_KW = [56, 57, 58]; S_KSTEP = [59, 60, 61]; S_KX = 62; S_M0X = 63; S_M0W = 64
S_XM = 66
S_I = 68; S_CT = 69
S_DSTA = 70; S_DSTB = 71; S_SCA = 72
S_SH = [73, 74, 75]
S_T = 80
S_C2 = 90
S_CNT = 79

XREG, WREG = 0, 65536
XST_B, WST_B = 16384, 24576

def lane_setup(A, V, r):
    A(f"v_and_b32 {r['lane']}, 63, v0")
    A(f"v_lshrrev_b32 {r['t0']}, 6, v0")
    A("s_nop 0")
    A(f"v_readfirstlane_b32 s{S_W}, {r['t0']}")
    A(f"s_lshr_b32 s{S_WT}, s{S_W}, 1")
    A(f"s_and_b32 s{S_WF}, s{S_W}, 1")

def dma_addr_setup(A, r, nslots):
    l = r['lane']; t0, t1, t2, t3 = r['t0'], r['t1'], r['t2'], r['t3']
    A(f"v_lshrrev_b32 {t0}, 3, {l}")
    A(f"v_lshrrev_b32 {t1}, 4, {l}")
    A(f"v_and_b32 {t2}, 7, {l}")
    A(f"v_xor_b32 {t3}, {t2}, {t1}")
    A(f"s_lshl_b32 s{S_T}, s{S_W}, 5")
    A(f"v_add_u32 {t0}, s{S_T}, {t0}")
    for j in range(4):
        d = r['vx_dma'][j]
        A(f"v_add_u32 {d}, {8*j}, {t0}")
        A(f"v_lshlrev_b32 {d}, 10, {d}")
        if j % 2 == 0: A(f"v_lshl_add_u32 {d}, {t3}, 4, {d}")
        else:
            A(f"v_xor_b32 {t1}, 4, {t3}")
            A(f"v_lshl_add_u32 {d}, {t1}, 4, {d}")
    A(f"v_lshrrev_b32 {t0}, 3, {l}")
    A(f"s_lshl_b32 s{S_T}, s{S_W}, 4")
    A(f"v_add_u32 {t0}, s{S_T}, {t0}")
    A(f"v_lshrrev_b32 {t1}, 4, {l}")
    A(f"v_and_b32 {t1}, 1, {t1}")
    A(f"v_lshlrev_b32 {t1}, 2, {t1}")
    A(f"v_xor_b32 {t1}, {t1}, {t2}")
    A(f"v_lshlrev_b32 {t1}, 4, {t1}")
    for p in range(nslots):
        for j in range(2):
            d = r['vw_dma'][2*p+j]
            A(f"v_add_u32 {d}, {8*j}, {t0}")
            A(f"v_lshlrev_b32 {d}, s{S_SH[p]}, {d}")
            A(f"v_add_u32 {d}, {d}, {t1}")
    A(f"s_lshl_b32 s{S_M0X}, s{S_W}, 12")
    A(f"s_lshl_b32 s{S_M0W}, s{S_W}, 11")
    A(f"s_add_u32 s{S_M0W}, s{S_M0W}, {WREG}")
    for p in range(nslots):
        A(f"s_mov_b32 s{S_KW[p]}, 0")
        A(f"s_lshl_b32 s{S_KSTEP[p]}, 64, s{S_SH[p]}")

def read_addr_setup(A, r, frs):
    l = r['lane']; t0, t1, t2, t3 = r['t0'], r['t1'], r['t2'], r['t3']
    A(f"v_and_b32 {t0}, 31, {l}")
    A(f"v_lshrrev_b32 {t1}, 1, {t0}")
    A(f"v_and_b32 {t1}, 7, {t1}")
    A(f"v_lshrrev_b32 {t2}, 5, {l}")
    A(f"s_lshl_b32 s{S_T}, s{S_WT}, 6")
    A(f"v_add_u32 {t0}, s{S_T}, {t0}")
    A(f"v_lshlrev_b32 {t0}, 7, {t0}")
    for s_ in range(4):
        d = r['vx_rd'][s_]
        A(f"v_or_b32 {t3}, {2*s_}, {t2}")
        A(f"v_xor_b32 {t3}, {t3}, {t1}")
        A(f"v_lshl_add_u32 {d}, {t3}, 4, {t0}")
    A(f"v_and_b32 {t0}, 15, {l}")
    A(f"v_lshrrev_b32 {t1}, 2, {t0}")
    A(f"v_lshl_add_u32 {t1}, {t2}, 3, {t1}")
    A(f"v_lshlrev_b32 {t1}, 7, {t1}")
    A(f"v_and_b32 {t3}, 1, {t0}")
    A(f"v_lshl_add_u32 {t1}, {t3}, 3, {t1}")
    A(f"v_bfe_u32 {t3}, {l}, 4, 1")
    A(f"v_lshlrev_b32 {t3}, 1, {t3}")
    A(f"v_bfe_u32 {t2}, {t0}, 1, 1")
    A(f"v_or_b32 {t3}, {t3}, {t2}")
    A(f"v_bfe_u32 {t2}, {t0}, 3, 1")
    A(f"v_lshlrev_b32 {t2}, 2, {t2}")
    A(f"v_xor_b32 {t3}, {t3}, {t2}")
    for k, (slot, e) in enumerate(frs):
        for half in range(2):
            d = r['vw_rd'][2*k+half]
            if e == 'wf':
                A(f"s_lshl_b32 s{S_T}, s{S_WF}, 2")
                A(f"v_xor_b32 {d}, s{S_T}, {t3}")
            else:
                A(f"v_xor_b32 {d}, {4*e}, {t3}")
            A(f"v_lshl_add_u32 {d}, {d}, 4, {t1}")
            if slot == 'wf':
                A(f"s_lshl_b32 s{S_T}, s{S_WF}, 13")
                A(f"s_add_u32 s{S_T}, s{S_T}, {WREG + half * 2 * WST_B}")
                A(f"v_add_u32 {d}, s{S_T}, {d}")
            else:
                A(f"v_add_u32 {d}, {WREG + half * 2 * WST_B + slot * 8192}, {d}")

def dma_chunk(r, c, nslots, masked):
    st = c & 3; G = []
    G.append([f"s_mov_b32 s{S_KX}, {c*128}"])
    for j in range(4):
        g = [f"s_add_u32 m0, s{S_M0X}, {st*XST_B + j*1024}"]
        if j == 3 and masked: g.append(f"s_mov_b64 exec, s[{S_XM}:{S_XM+1}]")
        else: g.append("s_nop 0")
        g.append(f"buffer_load_dwordx4 {r['vx_dma'][j]}, s[{SRD_X}:{SRD_X+3}], s{S_KX} offen lds")
        if j == 3 and masked: g.append("s_mov_b64 exec, -1")
        G.append(g)
    for p in range(nslots):
        for j in range(2):
            G.append([f"s_add_u32 m0, s{S_M0W}, {st*WST_B + p*8192 + j*1024}", "s_nop 0",
                      f"buffer_load_dwordx4 {r['vw_dma'][2*p+j]}, s[{SRD_W[p]}:{SRD_W[p]+3}], s{S_KW[p]} offen lds"])
        G.append([f"s_add_u32 s{S_KW[p]}, s{S_KW[p]}, s{S_KSTEP[p]}"])
    return G

def frag_reads(r, g, nf):
    c, s_ = g >> 2, g & 3; st = c & 3; b = g & 1
    L = [f"ds_read_b128 {r['fx'][b][0]}, {r['vx_rd'][s_]} offset:{st*XST_B}"]
    for k in range(nf):
        for u in range(2):
            off = (st & 1) * WST_B + (16*s_ + 4*u) * 128
            L.append(f"ds_read_b64_tr_b16 {r['fw'][b][k].sub(2*u, 2)}, {r['vw_rd'][2*k + (st >> 1)]} offset:{off}")
        if k == 0:
            L.append(f"ds_read_b128 {r['fx'][b][1]}, {r['vx_rd'][s_]} offset:{st*XST_B + 4096}")
    return L

def main_loop(A, r, nf, nslots, masked, w_is_a, hooks):
    vm = hooks.get('vm') or VM()
    stamp(A, 'setup')
    def emit(lines, tag=None):
        for x in lines:
            A(x)
            if is_vmem(x): vm.issue(tag)
    for c in range(2):
        for g in dma_chunk(r, c, nslots, masked): emit(g, ('c', c))
        if c == 0 and 'mid' in hooks: emit(hooks['mid'](vm), 'mid')
    stamp(A, 'issued')
    if 'pre' in hooks: emit(hooks['pre'](vm), 'cond')
    A(f"s_waitcnt vmcnt({vm.need(('c', 0))}) lgkmcnt(0)")
    A("s_barrier")
    stamp(A, 1)
    A.ext(frag_reads(r, 0, nf))
    for c in range(8):
        dm = dma_chunk(r, c + 2, nslots, masked) if c + 2 < 8 else []
        extra = [[x] for x in hooks.get(('chunk', c), [])]
        share = [dm[(len(dm) * q) // 4:(len(dm) * (q + 1)) // 4] for q in range(4)]
        share[0] = extra + share[0]
        for s_ in range(4):
            g = 4 * c + s_; b = g & 1
            M = []
            for k in range(nf):
                for tb in range(2):
                    acc = r['acc'][k][tb]
                    x, w = r['fx'][b][tb], r['fw'][b][k]
                    M.append(mfma(acc, w if w_is_a else x, x if w_is_a else w, '0' if g == 0 else None))
            if ('step', g) in hooks: emit(hooks[('step', g)](vm), ('step', g))
            A("s_waitcnt lgkmcnt(0)")
            rd = [[x] for x in frag_reads(r, g + 1, nf)] if g + 1 < 32 else []
            if s_ == 3 and c < 7:
                A(M[0]); A(M[1])
                A(f"s_waitcnt vmcnt({vm.need(('c', c + 1))})")
                A("s_barrier")
                seq = spread(M[2:], rd + share[3])
            else:
                nm = len(M)
                seq = spread(M, rd, 0, nm - 2)
                pos = [i for i, x in enumerate(seq) if x.startswith('v_mfma')]
                groups = share[s_]; out = []; k = 0
                for i, x in enumerate(seq):
                    out.append(x)
                    if i + 1 in pos or i == len(seq) - 1:
                        done = sum(1 for p in pos if p <= i)
                        tgt = (len(groups) * done + nm - 1) // nm
                        while k < tgt: out += groups[k]; k += 1
                for gq in groups[k:]: out += gq
                seq = out
            tagc = ('c', c + 2)
            for x in seq:
                A(x)
                if is_vmem(x): vm.issue(tagc if ' lds' in x else 'other')
    stamp(A, 2)

def gelu_block(A, r, y):
    t = r['tmp']; one = r['one2']; c1 = r['c1']
    P = range(8)
    for i in P: A(f"v_pk_mul_f32 {t.sub(2*i,2)}, {y.sub(2*i,2)}, {y.sub(2*i,2)}")
    for i in P: A(f"v_pk_fma_f32 {t.sub(2*i,2)}, {t.sub(2*i,2)}, s[{S_C2}:{S_C2+1}], {c1}")
    for i in P: A(f"v_pk_mul_f32 {t.sub(2*i,2)}, {t.sub(2*i,2)}, {y.sub(2*i,2)}")
    for i in range(16): A(f"v_exp_f32 {t[i]}, {t[i]}")
    for i in P: A(f"v_pk_add_f32 {t.sub(2*i,2)}, {t.sub(2*i,2)}, {one}")
    for i in range(16): A(f"v_rcp_f32 {t[i]}, {t[i]}")
    for i in P: A(f"v_pk_mul_f32 {y.sub(2*i,2)}, {y.sub(2*i,2)}, {t.sub(2*i,2)}")

def correct_block(A, r, acc, ab):
    cs = r['cs']
    for i in range(8):
        A(f"v_pk_mul_f32 {acc.sub(2*i,2)}, {acc.sub(2*i,2)}, {ab} op_sel:[0,0] op_sel_hi:[1,0]")
    for i in range(8):
        A(f"v_pk_fma_f32 {acc.sub(2*i,2)}, {cs.sub(2*i,2)}, {ab}, {acc.sub(2*i,2)} op_sel:[0,1,0] op_sel_hi:[1,1,1]")

def pack_block(A, r, acc, dst):
    for i in range(8): A(f"v_cvt_pk_bf16_f32 {dst[i]}, {acc[2*i]}, {acc[2*i+1]}")

def read_cs(A, r, k):
    base = r['vcsA'] if k < 2 else r['vcsB']
    for q in range(4):
        A(f"ds_read_b128 {r['cs'].sub(4*q,4)}, {base} offset:{(128*k if k < 2 else 0) + 32*q}")
    A("s_waitcnt lgkmcnt(0)")

def epi_lin(A, r, k, pk):
    read_cs(A, r, k)
    for tb in range(2):
        acc = r['acc'][k][tb]; ab = r['abs'][tb]; d = pk[tb]
        correct_block(A, r, acc, ab)
        pack_block(A, r, acc, d)
        A(f"s_add_u32 s{S_T}, s{S_DSTA}, {k*2048 + tb*32768}")
        for hf in range(2):
            A(f"buffer_store_dwordx4 {d.sub(4*hf,4)}, {r['vlin']}, s[{SRD_WS}:{SRD_WS+3}], s{S_T} offen offset:{hf*1024}")

def epi_gel(A, r, k, pk, sdst, extra):
    read_cs(A, r, k)
    for tb in range(2):
        acc = r['acc'][k][tb]; ab = r['ab'][tb]; d = pk[tb]
        correct_block(A, r, acc, ab)
        gelu_block(A, r, acc)
        pack_block(A, r, acc, d)
        for q in range(2):
            A(f"v_permlane32_swap_b32 {d[4*q]}, {d[4*q+2]}")
            A(f"v_permlane32_swap_b32 {d[4*q+1]}, {d[4*q+3]}")
        A(f"s_add_u32 s{S_T}, s{sdst}, {extra}")
        for q in range(2):
            A(f"buffer_store_dwordx4 {d.sub(4*q,4)}, {r['vgel'][tb]}, s[{SRD_WS}:{SRD_WS+3}], s{S_T} offen offset:{q*32}")

def build(name='p1_kernel'):
    A = KAsm('p1')
    V = Alloc('v', 1, 256)
    r = {}
    for n in ['lane', 't0', 't1', 't2', 't3', 'vlin', 'vcsA', 'vcsB', 'vpoll', 'vz']: r[n] = V(1)
    r['vx_dma'] = V(4, 1); r['vw_dma'] = V(6, 1); r['vx_rd'] = V(4, 1); r['vw_rd'] = V(6, 1)
    r['vgel'] = V(2, 1)
    r['ab'] = [V(2), V(2)]; r['abs'] = [V(2), V(2)]
    r['one2'] = V(2); r['c1'] = V(2)
    r['acc'] = [[V(16, 4), V(16, 4)] for _ in range(3)]
    r['fx'] = [[V(4), V(4)] for _ in range(2)]
    r['fw'] = [[V(4) for _ in range(3)] for _ in range(2)]
    r['cs'] = V(16, 4); r['tmp'] = V(16, 4)
    pk = [V(8, 4), V(8, 4)]
    st64 = V(0 + 16, 4)
    prologue(A, 256)
    stamp(A, 0)
    lane_setup(A, V, r)
    A("s_and_b32 s80, s2, 7")
    A("s_lshr_b32 s81, s2, 3")
    A("s_waitcnt lgkmcnt(0)")
    stamp(A, 'karg')
    srd(A, SRD_WS, 'ws', WS_END)
    srd(A, SRD_DBG, 'dbg', 256)
    A("s_cmp_lt_u32 s81, 4")
    A("s_cbranch_scc1 L_p1_weights")
    A("s_sub_u32 s81, s81, 4")
    A("s_and_b32 s82, s80, 3", "s_lshl_b32 s82, s82, 2", "s_and_b32 s83, s81, 3", f"s_add_u32 s{S_I}, s82, s83")
    A("s_lshr_b32 s82, s80, 2", "s_mul_i32 s82, s82, 7", "s_lshr_b32 s83, s81, 2", f"s_add_u32 s{S_CT}, s82, s83")
    A(f"s_mul_i32 s82, s{S_I}, {125*1024}")
    srd(A, SRD_X, 'x', 125*1024, off_sgpr='s82')
    A(f"s_cmp_ge_u32 s{S_CT}, 12")
    A("s_cbranch_scc1 L_p1_setup_g")
    for p in range(2):
        A(f"s_lshl_b32 s82, s{S_CT}, 1", f"s_add_u32 s82, s82, {p}")
        A("s_cmp_lt_u32 s82, 16", f"s_cselect_b64 s[84:85], s[{SP['wk']}:{SP['wk']+1}], s[{SP['wv']}:{SP['wv']+1}]")
        A("s_cmp_lt_u32 s82, 8", f"s_cselect_b64 s[84:85], s[{SP['wq']}:{SP['wq']+1}], s[84:85]")
        A("s_and_b32 s83, s82, 7", "s_lshl_b32 s83, s83, 7")
        A("s_sub_u32 s86, 0x80000, s83")
        srd(A, SRD_W[p], 84, 's86', off_sgpr='s83')
        A(f"s_mov_b32 s{S_SH[p]}, 10")
    A(f"s_lshl_b32 s83, s{S_CT}, 7", "s_sub_u32 s86, 0x100000, s83")
    srd(A, SRD_W[2], 'wup', 's86', off_sgpr='s83')
    A(f"s_mov_b32 s{S_SH[2]}, 11")
    A(f"s_lshl_b32 s82, s{S_CT}, 1", f"s_add_u32 s82, s82, s{S_WF}")
    A("s_lshr_b32 s83, s82, 3", "s_lshl_b32 s83, s83, 21", "s_and_b32 s84, s82, 7", "s_lshl_b32 s84, s84, 12")
    A(f"s_add_u32 s{S_DSTA}, s83, s84")
    A("s_cmp_lt_u32 s82, 8", f"s_cselect_b32 s{S_SCA}, {hexf(QSCALE)}, 1.0")
    A(f"s_lshr_b32 s83, s{S_CT}, 3", f"s_mul_i32 s83, s83, {GB - UB}", f"s_and_b32 s84, s{S_CT}, 7", "s_lshl_b32 s84, s84, 7")
    A("s_add_u32 s83, s83, s84", f"s_lshl_b32 s84, s{S_WF}, 6", "s_add_u32 s83, s83, s84", f"s_add_u32 s{S_DSTB}, s83, {hex(UB)}")
    A("s_branch L_p1_setup_done")
    A("L_p1_setup_g:")
    for p in range(3):
        pp = p if p < 2 else 0
        A(f"s_sub_u32 s82, s{S_CT}, 12", "s_lshl_b32 s82, s82, 1", f"s_add_u32 s82, s82, {12 + pp}", "s_lshl_b32 s83, s82, 7")
        A("s_sub_u32 s86, 0x100000, s83")
        srd(A, SRD_W[p], 'wup', 's86', off_sgpr='s83')
        A(f"s_mov_b32 s{S_SH[p]}, 11")
    A(f"s_sub_u32 s82, s{S_CT}, 12", "s_lshl_b32 s82, s82, 1", f"s_add_u32 s82, s82, s{S_WF}", "s_add_u32 s82, s82, 12")
    A("s_and_b32 s84, s82, 7", "s_lshl_b32 s84, s84, 7", f"s_add_u32 s{S_DSTA}, s84, {hex(GB)}")
    A(f"s_mov_b32 s{S_DSTB}, 0", f"s_mov_b32 s{S_SCA}, 1.0")
    A("L_p1_setup_done:")
    dma_addr_setup(A, r, 3)
    A(f"s_mov_b32 s{S_XM}, -1", f"s_cmp_eq_u32 s{S_W}, 3", f"s_cselect_b32 s{S_XM+1}, 0xff, -1")
    l = r['lane']; t0, t1 = r['t0'], r['t1']
    A(f"v_lshrrev_b32 {t0}, 3, {l}", f"v_add_u32 {t0}, 125, {t0}", f"v_lshlrev_b32 {t0}, 7, {t0}")
    A(f"v_and_b32 {t1}, 7, {l}", f"v_lshl_add_u32 {t0}, {t1}, 4, {t0}")
    A(f"s_lshl_b32 s{S_T}, s{S_W}, 14", f"v_add_u32 {t0}, s{S_T}, {t0}")
    ones = r['tmp'].sub(0, 4)
    for q in range(4): A(f"v_mov_b32 {ones[q]}, 0x3f803f80")
    pre = [f"v_cmp_gt_u32 vcc, 24, {l}", "s_and_saveexec_b64 s[92:93], vcc", f"ds_write_b128 {t0}, {ones}", "s_mov_b64 exec, s[92:93]"]
    A.ext(pre)
    read_addr_setup(A, r, [('wf', 0), ('wf', 1), (2, 'wf')])
    t2, t3 = r['t2'], r['t3']
    A(f"s_lshl_b32 s82, s{S_I}, 2", f"s_lshl_b32 s83, s{S_WT}, 1", "s_add_u32 s82, s82, s83", "s_lshl_b32 s82, s82, 15")
    A(f"v_lshlrev_b32 {r['vlin']}, 4, {l}", f"v_add_u32 {r['vlin']}, s82, {r['vlin']}")
    A(f"v_lshrrev_b32 {t2}, 5, {l}", f"v_lshlrev_b32 {t2}, 4, {t2}")
    A(f"s_lshl_b32 s82, s{S_WF}, 8", f"v_add_u32 {r['vcsA']}, s82, {t2}")
    A(f"s_lshl_b32 s82, s{S_WF}, 7", "s_add_u32 s82, s82, 512", f"v_add_u32 {r['vcsB']}, s82, {t2}")
    A(f"v_and_b32 {t0}, 31, {l}", f"s_lshl_b32 s82, s{S_WT}, 6", f"v_add_u32 {t0}, s82, {t0}")
    A(f"s_mul_i32 s83, s{S_I}, 125")
    for tb in range(2):
        A(f"v_add_u32 {t1}, {32*tb}, {t0}")
        A(f"v_add_u32 {t3}, s83, {t1}", f"v_lshlrev_b32 {t3}, 10, {t3}", f"v_add_u32 {t3}, {t3}, {t2}")
        A(f"v_cmp_gt_u32 vcc, 125, {t1}", f"v_mov_b32 {r['vgel'][tb]}, {hex(OOB)}", f"v_cndmask_b32 {r['vgel'][tb]}, {r['vgel'][tb]}, {t3}, vcc")
    A(f"s_lshl_b32 s82, s{S_I}, 10", f"s_add_u32 s82, s82, {hex(XST)}", f"v_lshlrev_b32 {r['vz']}, 3, {t0}", f"v_add_u32 {r['vz']}, s82, {r['vz']}")
    A(f"s_lshl_b32 s82, s{S_I}, 2", f"v_mov_b32 {r['vpoll']}, s82")
    A(f"v_mov_b32 {r['one2'][0]}, 1.0", f"v_mov_b32 {r['one2'][1]}, 1.0")
    c1 = -2.0 * LOG2E * 0.7978845608028654
    A(f"v_mov_b32 {r['c1'][0]}, {hexf(c1)}", f"v_mov_b32 {r['c1'][1]}, {hexf(c1)}")
    A(f"s_mov_b32 s{S_C2}, {hexf(c1*0.044715)}", f"s_mov_b32 s{S_C2+1}, {hexf(c1*0.044715)}")
    pollv = r['t0']
    poll = [f"buffer_load_dword {pollv}, {r['vpoll']}, s[{SRD_DBG}:{SRD_DBG+3}], 0 offen sc1"]
    lp, lq = A.label('poll'), A.label('pollok')
    check = ["s_waitcnt vmcnt(0)", f"v_readfirstlane_b32 s{S_T+1}, {pollv}", "s_nop 3", f"s_cmp_ge_u32 s{S_T+1}, 2", f"s_cbranch_scc1 {lq}",
             f"s_mov_b32 s{S_CNT}, 0x40000", f"{lp}:", "s_sleep 4",
             f"buffer_load_dword {pollv}, {r['vpoll']}, s[{SRD_DBG}:{SRD_DBG+3}], 0 offen sc1", "s_waitcnt vmcnt(0)",
             f"v_readfirstlane_b32 s{S_T+1}, {pollv}", f"s_sub_u32 s{S_CNT}, s{S_CNT}, 1", "s_nop 2", f"s_cmp_eq_u32 s{S_CNT}, 0", f"s_cbranch_scc1 {lq}",
             f"s_cmp_ge_u32 s{S_T+1}, 2", f"s_cbranch_scc0 {lp}", f"{lq}:",
             f"buffer_load_dwordx2 {r['ab'][0]}, {r['vz']}, s[{SRD_WS}:{SRD_WS+3}], 0 offen sc1",
             f"buffer_load_dwordx2 {r['ab'][1]}, {r['vz']}, s[{SRD_WS}:{SRD_WS+3}], 0 offen offset:256 sc1"]
    main_loop(A, r, 3, 3, True, True, {('chunk', 6): poll, ('step', 29): lambda vm: check})
    A(f"s_cmp_eq_u32 s{S_WT}, 0", "s_cbranch_scc1 L_p1_nocs")
    A("s_mov_b32 exec_lo, 0x20000000", "s_mov_b32 exec_hi, 0x20000000", "s_nop 7")
    for k in range(3):
        base = r['vcsA'] if k < 2 else r['vcsB']
        for q in range(4):
            A(f"ds_write_b128 {base}, {r['acc'][k][1].sub(4*q,4)} offset:{(128*k if k < 2 else 0) + 32*q}")
    A("s_mov_b64 exec, -1")
    A("L_p1_nocs:")
    A("s_waitcnt lgkmcnt(0)", "s_barrier", "s_waitcnt vmcnt(0)")
    stamp(A, 'cs')
    for tb in range(2):
        A(f"v_pk_mul_f32 {r['abs'][tb]}, {r['ab'][tb]}, s[{S_SCA}:{S_SCA+1}] op_sel_hi:[1,0]")
    A(f"s_cmp_ge_u32 s{S_CT}, 12", "s_cbranch_scc1 L_p1_epi_g")
    epi_lin(A, r, 0, pk); epi_lin(A, r, 1, pk); stamp(A, 'lin'); epi_gel(A, r, 2, pk, S_DSTB, 0); stamp(A, 'gel')
    stamp_flush(A, 0, SRD_WS, r['ab'][0][0], r['ab'][0][1])
    A("s_endpgm")
    A("L_p1_epi_g:")
    epi_gel(A, r, 0, pk, S_DSTA, 0); epi_gel(A, r, 1, pk, S_DSTA, 64)
    stamp_flush(A, 0, SRD_WS, r['ab'][0][0], r['ab'][0][1])
    A("s_endpgm")
    A("L_p1_weights:")
    A("s_lshl_b32 s81, s81, 3", "s_add_u32 s81, s81, s80")
    J = 78
    A(f"s_mov_b32 s{J}, s81")
    A(f"s_lshr_b32 s82, s{J}, 1", f"s_mov_b32 s{S_I}, s82", f"s_mul_i32 s82, s82, {125*1024}")
    srd(A, SRD_W[2], 'x', 125*1024, off_sgpr='s82')
    stv = [r['cs'], r['tmp'], R('v', pk[0].idx, 16), st64]
    assert pk[1].idx == pk[0].idx + 8
    A(f"s_and_b32 s83, s{J}, 1", "s_lshl_b32 s83, s83, 6", f"s_lshl_b32 s84, s{S_W}, 4", "s_add_u32 s83, s83, s84")
    rowv = r['vgel']
    for g2 in range(2):
        A(f"v_lshrrev_b32 {rowv[g2]}, 3, {l}", f"v_add_u32 {rowv[g2]}, s83, {rowv[g2]}")
        if g2: A(f"v_add_u32 {rowv[g2]}, 8, {rowv[g2]}")
    for g2 in range(2):
        A(f"v_lshlrev_b32 {t0}, 10, {rowv[g2]}", f"v_and_b32 {t1}, 7, {l}", f"v_lshl_add_u32 {t0}, {t1}, 4, {t0}")
        for jj in range(8):
            q = g2 * 8 + jj
            A(f"buffer_load_dwordx4 {stv[q//4].sub(4*(q%4),4)}, {t0}, s[{SRD_W[2]}:{SRD_W[2]+3}], 0 offen offset:{jj*128}")
        A("s_nop 0")
    A(f"s_lshr_b32 s82, s{J}, 4")
    A("s_cmp_eq_u32 s82, 0", f"s_cselect_b64 s[84:85], s[{SP['wao']}:{SP['wao']+1}], s[{SP['wdn']}:{SP['wdn']+1}]")
    A(f"s_lshr_b32 s83, s{J}, 2", "s_and_b32 s83, s83, 3", "s_lshl_b32 s83, s83, 17")
    srd(A, SRD_X, 84, 131072, off_sgpr='s83')
    for p in range(2):
        A(f"s_lshr_b32 s82, s{J}, 4", "s_lshl_b32 s82, s82, 19", f"s_and_b32 s83, s{J}, 3", "s_lshl_b32 s83, s83, 8")
        A(f"s_add_u32 s83, s83, {128*p}", "s_sub_u32 s86, 0x80000, s83", "s_add_u32 s83, s83, s82")
        srd(A, SRD_W[p], 'wm', 's86', off_sgpr='s83')
        A(f"s_mov_b32 s{S_SH[p]}, 10")
    dma_addr_setup(A, r, 2)
    read_addr_setup(A, r, [('wf', 0), ('wf', 1)])
    st = []
    a1, a2 = r['ab'][0], r['ab'][1]
    onesb = r['one2'][0]
    st.append(f"v_mov_b32 {onesb}, 0x3f803f80")
    st.append("WAITSTAT")
    for g2 in range(2):
        sm, sq = (a1[0], a1[1]) if g2 == 0 else (a2[0], a2[1])
        first = True
        for jj in range(8):
            q = g2 * 8 + jj
            for d in range(4):
                x = stv[q//4][4*(q%4) + d]
                st.append(f"v_dot2_f32_bf16 {sm}, {x}, {onesb}, {'0' if first else sm}")
                st.append(f"v_dot2_f32_bf16 {sq}, {x}, {x}, {'0' if first else sq}")
                first = False
    for mod in ["quad_perm:[1,0,3,2]", "quad_perm:[2,3,0,1]", "row_half_mirror"]:
        for x in (a1[0], a1[1], a2[0], a2[1]):
            st.append(f"v_add_f32_dpp {x}, {x}, {x} {mod} row_mask:0xf bank_mask:0xf")
    for g2, ab in enumerate((a1, a2)):
        st += [f"v_mul_f32 {ab[0]}, {hexf(1/512)}, {ab[0]}",
               f"v_mul_f32 {ab[1]}, {hexf(1/512)}, {ab[1]}",
               f"v_fma_f32 {ab[1]}, -{ab[0]}, {ab[0]}, {ab[1]}",
               f"v_max_f32 {ab[1]}, 0, {ab[1]}",
               f"v_add_f32 {ab[1]}, {hexf(1e-5)}, {ab[1]}",
               f"v_rsq_f32 {ab[1]}, {ab[1]}",
               f"v_mul_f32 {t1}, -{ab[0]}, {ab[1]}" if False else f"v_mul_f32 {t1}, {ab[0]}, {ab[1]}",
               f"v_sub_f32 {t1}, 0, {t1}",
               f"v_cmp_gt_u32 vcc, 125, {rowv[g2]}",
               f"v_cndmask_b32 {ab[0]}, 0, {ab[1]}, vcc",
               f"v_cndmask_b32 {ab[1]}, 0, {t1}, vcc",
               f"s_lshl_b32 s82, s{S_I}, 10", f"s_add_u32 s82, s82, {hex(XST)}",
               f"v_lshlrev_b32 {t0}, 3, {rowv[g2]}", f"v_add_u32 {t0}, s82, {t0}",
               f"v_and_b32 {t1}, 7, {l}", f"v_cmp_eq_u32 vcc, 0, {t1}", f"v_mov_b32 {t1}, {hex(OOB)}",
               f"v_cndmask_b32 {t0}, {t1}, {t0}, vcc",
               f"buffer_store_dwordx2 {ab}, {t0}, s[{SRD_WS}:{SRD_WS+3}], 0 offen sc1", "s_nop 1"]
    pub = [f"s_lshl_b32 s82, s{S_I}, 2", f"v_mov_b32 {t0}, s82", f"v_mov_b32 {t1}, 1",
           f"s_cmp_lg_u32 s{S_W}, 0", "s_cbranch_scc1 L_p1_nopub", "s_mov_b64 exec, 1",
           f"buffer_atomic_add {t1}, {t0}, s[{SRD_DBG}:{SRD_DBG+3}], 0 offen", "s_mov_b64 exec, -1", "L_p1_nopub:"]
    weights_loop(A, r, st, pub)
    A(f"s_lshr_b32 s82, s{J}, 4", "s_lshl_b32 s82, s82, 19", f"s_add_u32 s82, s82, {hex(WAMF)}")
    A(f"s_and_b32 s83, s{J}, 3", "s_lshl_b32 s83, s83, 2", f"s_lshl_b32 s84, s{S_WF}, 1", "s_add_u32 s83, s83, s84", "s_lshl_b32 s83, s83, 15")
    A("s_add_u32 s82, s82, s83")
    A(f"s_lshr_b32 s83, s{J}, 2", "s_and_b32 s83, s83, 3", "s_lshl_b32 s83, s83, 2", f"s_lshl_b32 s84, s{S_WT}, 1", "s_add_u32 s83, s83, s84", "s_lshl_b32 s83, s83, 11")
    A("s_add_u32 s82, s82, s83")
    A(f"v_lshlrev_b32 {r['vlin']}, 4, {l}")
    for k in range(2):
        for tb in range(2):
            d = pk[tb]
            pack_block(A, r, r['acc'][k][tb], d)
            A(f"s_add_u32 s{S_T}, s82, {k*32768 + tb*2048}")
            for hf in range(2):
                A(f"buffer_store_dwordx4 {d.sub(4*hf,4)}, {r['vlin']}, s[{SRD_WS}:{SRD_WS+3}], s{S_T} offen offset:{hf*1024}")
    stamp_flush(A, 0, SRD_WS, r['ab'][0][0], r['ab'][0][1])
    A("L_EXIT_p1:")
    A("s_endpgm")
    return A, V.hi

def weights_loop(A, r, st, pub):
    vm = VM()
    for _ in range(16): vm.issue('stat')
    mid = lambda vm: [f"s_waitcnt vmcnt({vm.need('stat')})" if x == 'WAITSTAT' else x for x in st]
    pre = lambda vm: [f"s_waitcnt vmcnt({vm.need('mid')})", "s_barrier"] + list(pub)
    main_loop(A, r, 2, 2, False, False, {'mid': mid, 'pre': pre, 'vm': vm})
```

```python
from common import *
import common

S_W = 28; SRD_WS = 32; SRD_DW = 36
S_B, S_A0, S_B0, S_DST, S_STAT = 40, 41, 42, 43, 44
S_T = 48
S_M0 = 60; S_SA = 61; S_SB = 62; S_RO = 63

def gemm(A, r, extra_after=None):
    l16 = r['l16']
    def group(g):
        G = [[f"s_add_u32 s{S_SA}, s{S_A0}, s{S_RO}", f"s_add_u32 s{S_SB}, s{S_B0}, s{S_RO}", f"s_add_u32 m0, s{S_M0}, {g*4096}",
              f"s_add_u32 s{S_RO}, s{S_RO}, 4096", f"s_and_b32 s{S_RO}, s{S_RO}, 0x7fff"]]
        for j in range(4):
            G.append([f"buffer_load_dwordx4 {l16}, s[{SRD_WS}:{SRD_WS+3}], s{S_SA} offen offset:{j*1024} lds"])
            G.append([f"buffer_load_dwordx4 {R('a', 4*(4*g+j), 4)}, {l16}, s[{SRD_WS}:{SRD_WS+3}], s{S_SB} offen offset:{j*1024}"])
        return G
    def reads(ks):
        b = ks & 1
        return [f"ds_read_b128 {r['fa'][b][mb]}, {r['va'][mb >> 1]} offset:{(mb & 1)*32768 + ks*1024}" for mb in range(4)]
    vm = VM()
    def emit(lines, tag):
        for x in lines:
            A(x)
            if is_vmem(x): vm.issue(tag)
    stamp(A, 'setup')
    for g in range(2):
        for x in group(g): emit(x, g)
    stamp(A, 'issued')
    A(f"s_waitcnt vmcnt({vm.need(0)})", "s_barrier")
    stamp(A, 1)
    A.ext(reads(0))
    for g in range(8):
        nxt = group(g + 2) if g + 2 < 8 else []
        share = [nxt[0:3], nxt[3:5], nxt[5:7], nxt[7:9]]
        for q in range(4):
            ks = 4 * g + q; b = ks & 1
            M = [mfma(r['acc'][mb], r['fa'][b][mb], R('a', 4*ks, 4), '0' if ks == 0 else None) for mb in range(4)]
            A("s_waitcnt lgkmcnt(0)")
            rd = [[x] for x in reads(ks + 1)] if ks < 31 else []
            if q == 3 and g < 7:
                A(M[0])
                A(f"s_waitcnt vmcnt({vm.need(g + 1)})", "s_barrier")
                emit(spread(M[1:], rd + share[3]), g + 2)
            else:
                emit(spread(M, rd[:2] + share[q][:1] + rd[2:] + share[q][1:]), g + 2)
    stamp(A, 2)

def rot(A, sidx):
    if common.ROT == 4: A(f"s_and_b32 {sidx}, {sidx}, 3", f"s_lshl_b32 s{S_RO}, {sidx}, 13")
    elif common.ROT == 2: A(f"s_and_b32 {sidx}, {sidx}, 1", f"s_lshl_b32 s{S_RO}, {sidx}, 14")
    else: A(f"s_mov_b32 s{S_RO}, 0")

def store_frags(A, r, pk):
    for mb in range(4):
        d = pk[mb & 1]; acc = r['acc'][mb]
        for i in range(8): A(f"v_cvt_pk_bf16_f32 {d[i]}, {acc[2*i]}, {acc[2*i+1]}")
        if mb % 2 == 0: A(f"s_add_u32 s{S_T}, s{S_DST}, {mb*2048}")
        for hf in range(2):
            A(f"buffer_store_dwordx4 {d.sub(4*hf,4)}, {r['l16']}, s[{SRD_WS}:{SRD_WS+3}], s{S_T} offen offset:{(mb & 1)*2048 + hf*1024}")

def build():
    A = KAsm('p2')
    V = Alloc('v', 1, 256)
    r = {}
    for n in ['lane', 'l16', 't0', 'tpad', 't1', 't2', 't3']: r[n] = V(1)
    base = V.mark()
    r['va'] = V(2, 1)
    r['acc'] = [V(16, 4) for _ in range(4)]
    r['fa'] = [[V(4) for _ in range(4)] for _ in range(2)]
    pk = [V(8, 4), V(8, 4)]
    mx = V(2); sm = V(4); st2 = V(2)
    hi_gemm = V.hi
    l = r['lane']; t0, t1, t2, t3 = r['t0'], r['t1'], r['t2'], r['t3']
    prologue(A, 256)
    stamp(A, 0)
    A(f"v_and_b32 {l}, 63, v0", f"v_lshrrev_b32 {t0}, 6, v0", f"v_lshlrev_b32 {r['l16']}, 4, {l}")
    A(f"v_readfirstlane_b32 s{S_W}, {t0}")
    A("s_and_b32 s48, s2, 7", "s_lshr_b32 s49, s2, 3", f"s_lshr_b32 s{S_B}, s48, 2")
    A("s_cmp_ge_u32 s49, 24", "s_cbranch_scc1 L_p2_conv")
    A(f"v_add_u32 {r['va'][1]}, 0x10000, {r['l16']}", f"v_mov_b32 {r['va'][0]}, {r['l16']}")
    A(f"s_lshl_b32 s{S_M0}, s{S_W}, 15")
    A("s_cmp_ge_u32 s49, 16", "s_cbranch_scc1 L_p2_vsetup")
    A("s_and_b32 s50, s48, 1", "s_lshl_b32 s50, s50, 2", "s_and_b32 s51, s49, 3", "s_add_u32 s50, s50, s51")
    A("s_lshr_b32 s51, s48, 1", "s_and_b32 s51, s51, 1", "s_lshl_b32 s51, s51, 2", "s_lshr_b32 s52, s49, 2", "s_add_u32 s51, s51, s52")
    A("s_add_u32 s53, s50, s51")
    rot(A, 's53')
    A(f"s_lshl_b32 s52, s{S_B}, 3", "s_add_u32 s53, s52, s51", "s_lshl_b32 s53, s53, 2", f"s_add_u32 s53, s53, s{S_W}", "s_lshl_b32 s53, s53, 15")
    A(f"s_add_u32 s{S_A0}, s53, {hex(KF)}")
    A("s_add_u32 s53, s52, s50", "s_lshl_b32 s53, s53, 2", f"s_add_u32 s53, s53, s{S_W}")
    A("s_lshl_b32 s54, s53, 15", f"s_add_u32 s{S_B0}, s54, {hex(QF)}")
    A("s_lshl_b32 s54, s53, 16", "s_lshl_b32 s55, s51, 13", "s_add_u32 s54, s54, s55", f"s_add_u32 s{S_DST}, s54, {hex(PF)}")
    A("s_add_u32 s54, s52, s51", "s_lshl_b32 s54, s54, 10", "s_lshl_b32 s55, s50, 7", "s_add_u32 s54, s54, s55", f"s_lshl_b32 s55, s{S_W}, 5", "s_add_u32 s54, s54, s55")
    A("s_lshl_b32 s54, s54, 3", f"s_add_u32 s{S_STAT}, s54, {hex(SM)}")
    A("s_waitcnt lgkmcnt(0)")
    stamp(A, 'karg')
    srd(A, SRD_WS, 'ws', WS_END)
    gemm(A, r)
    acc = r['acc']
    A(f"v_cmp_lt_u32 vcc, 31, {l}", f"v_mov_b32 {t0}, 0xff800000")
    for q in (13, 14, 15): A(f"v_cndmask_b32 {acc[3][q]}, {acc[3][q]}, {t0}, vcc")
    flat = [acc[mb][i] for mb in range(4) for i in range(16)]
    A(f"v_max3_f32 {mx[0]}, {flat[0]}, {flat[1]}, {flat[2]}", f"v_max3_f32 {mx[1]}, {flat[3]}, {flat[4]}, {flat[5]}")
    k = 6
    while k + 3 < 64:
        A(f"v_max3_f32 {mx[0]}, {mx[0]}, {flat[k]}, {flat[k+1]}", f"v_max3_f32 {mx[1]}, {mx[1]}, {flat[k+2]}, {flat[k+3]}")
        k += 4
    A(f"v_max3_f32 {mx[0]}, {mx[0]}, {flat[62]}, {flat[63]}")
    A(f"v_max_f32 {mx[0]}, {mx[0]}, {mx[1]}", f"v_mov_b32 {mx[1]}, {mx[0]}")
    A(f"v_permlane32_swap_b32 {mx[0]}, {mx[1]}", f"v_max_f32 {mx[0]}, {mx[0]}, {mx[1]}")
    for mb in range(4):
        a_ = acc[mb]
        for i in range(8):
            A(f"v_pk_add_f32 {a_.sub(2*i,2)}, {a_.sub(2*i,2)}, {mx} op_sel_hi:[1,0] neg_lo:[0,1] neg_hi:[0,1]")
        for i in range(16): A(f"v_exp_f32 {a_[i]}, {a_[i]}")
        for i in range(8):
            s_ = sm.sub(2*(i & 1), 2)
            if mb == 0 and i < 2: A(f"v_pk_add_f32 {s_}, {a_.sub(2*i,2)}, {a_.sub(2*(i+2),2)}")
            elif mb == 0 and i < 4: continue
            else: A(f"v_pk_add_f32 {s_}, {s_}, {a_.sub(2*i,2)}")
        d = pk[mb & 1]
        for i in range(8): A(f"v_cvt_pk_bf16_f32 {d[i]}, {a_[2*i]}, {a_[2*i+1]}")
        if mb % 2 == 0: A(f"s_add_u32 s{S_T}, s{S_DST}, {mb*2048}")
        for hf in range(2):
            A(f"buffer_store_dwordx4 {d.sub(4*hf,4)}, {r['l16']}, s[{SRD_WS}:{SRD_WS+3}], s{S_T} offen offset:{(mb & 1)*2048 + hf*1024}")
    A(f"v_pk_add_f32 {sm.sub(0,2)}, {sm.sub(0,2)}, {sm.sub(2,2)}", f"v_add_f32 {sm[0]}, {sm[0]}, {sm[1]}", f"v_mov_b32 {sm[1]}, {sm[0]}")
    A(f"v_permlane32_swap_b32 {sm[0]}, {sm[1]}", f"v_add_f32 {st2[1]}, {sm[0]}, {sm[1]}", f"v_mov_b32 {st2[0]}, {mx[0]}")
    A(f"v_lshlrev_b32 {t0}, 3, {l}", f"v_mov_b32 {t1}, {hex(OOB)}", f"v_cmp_gt_u32 vcc, 32, {l}", f"v_cndmask_b32 {t0}, {t1}, {t0}, vcc")
    A(f"buffer_store_dwordx2 {st2}, {t0}, s[{SRD_WS}:{SRD_WS+3}], s{S_STAT} offen")
    stamp_flush(A, 1, SRD_WS, mx[0], mx[1])
    A("s_endpgm")
    A("L_p2_vsetup:")
    A("s_sub_u32 s49, s49, 16", "s_and_b32 s50, s48, 3", "s_lshl_b32 s50, s50, 1", "s_and_b32 s51, s49, 1", "s_add_u32 s50, s50, s51")
    A("s_lshr_b32 s51, s49, 1")
    A(f"s_lshl_b32 s52, s{S_B}, 3", "s_add_u32 s53, s52, s50", "s_lshl_b32 s53, s53, 2", f"s_add_u32 s53, s53, s{S_W}", "s_lshl_b32 s53, s53, 15")
    A(f"s_add_u32 s{S_A0}, s53, {hex(VF)}")
    A("s_lshl_b32 s53, s51, 2", f"s_add_u32 s53, s53, s{S_W}")
    A("s_lshl_b32 s54, s53, 15", f"s_add_u32 s{S_B0}, s54, {hex(WAMF)}")
    A(f"s_lshl_b32 s54, s{S_B}, 4", "s_add_u32 s54, s54, s53", "s_lshl_b32 s54, s54, 16", "s_lshl_b32 s55, s50, 13", "s_add_u32 s54, s54, s55")
    A(f"s_add_u32 s{S_DST}, s54, {hex(V2F)}")
    A("s_mov_b32 s53, s51")
    rot(A, 's53')
    A("s_waitcnt lgkmcnt(0)")
    stamp(A, 'karg')
    srd(A, SRD_WS, 'ws', WS_END)
    gemm(A, r)
    store_frags(A, r, pk)
    stamp_flush(A, 1, SRD_WS, mx[0], mx[1])
    A("s_endpgm")
    A("L_p2_conv:")
    V.reset(base)
    acc = V(64, 4); stg = V(64, 4); wp = V(62, 2); par = [V(4) for _ in range(4)]; gn = [V(2), V(2)]
    gr = V(8, 1); ab = V(2); vt4 = V(4, 1); vlw = V(1); vlr = V(1); msk = V(1); vz = V(1); fin = [V(2), V(2)]
    SRDW = f"s[{SRD_WS}:{SRD_WS+3}]"
    LG, LW, LU, LP = 0, 65536, 98304, 131072
    UCB = LW - 256
    A("s_sub_u32 s49, s49, 24", "s_and_b32 s50, s48, 3", "s_lshl_b32 s50, s50, 1", "s_lshr_b32 s51, s49, 2", "s_add_u32 s50, s50, s51")
    A("s_and_b32 s51, s49, 3")
    A("s_mul_i32 s52, s50, 125", "s_lshl_b32 s53, s51, 5", "s_add_u32 s52, s52, s53")
    A(f"s_mul_i32 s53, s{S_B}, 1000", "s_add_u32 s53, s53, s52", "s_lshl_b32 s53, s53, 10")
    S_G, S_U, S_T0 = 56, 57, 58
    A(f"s_add_u32 s{S_G}, s53, {hex(GB - 15*1024)}", f"s_add_u32 s{S_U}, s53, {hex(UB)}", f"s_mov_b32 s{S_T0}, s52")
    A(f"s_lshl_b32 s53, s{S_B}, 3", "s_add_u32 s53, s53, s50", "s_lshl_b32 s53, s53, 2", "s_add_u32 s53, s53, s51", "s_lshl_b32 s53, s53, 15")
    A(f"s_add_u32 s{S_DST}, s53, {hex(UCF)}")
    for k in range(4):
        A(f"v_xor_b32 {vt4[k]}, {4*k}, {l}", f"v_lshlrev_b32 {vt4[k]}, 4, {vt4[k]}")
    A(f"s_lshl_b32 s53, s{S_W}, 14", f"s_add_u32 s{S_SA}, s{S_G}, s53", f"s_mov_b32 s{S_M0}, s53")
    A("s_waitcnt lgkmcnt(0)")
    stamp(A, 'karg')
    srd(A, SRD_WS, 'ws', WS_END)
    vm = VM()
    for rr in range(16):
        A(f"s_add_u32 m0, s{S_M0}, {LG + rr*1024}", f"s_add_u32 s{S_SB}, s{S_SA}, {rr*1024}")
        A(f"buffer_load_dwordx4 {vt4[rr & 3]}, {SRDW}, s{S_SB} offen lds"); vm.issue('g')
    stamp(A, 'issued')
    srd(A, SRD_DW, 'dw', 31 * 1024)
    late = []
    for hf in range(2):
        g = [f"s_lshl_b32 s53, s{S_W}, 13", f"s_add_u32 s{S_SB}, s53, {hf*4096}", f"s_add_u32 m0, s{S_SB}, {LW}", f"v_add_u32 {vz}, s{S_SB}, {r['l16']}"]
        late.append(g)
        for k in range(4): late.append([f"buffer_load_dwordx4 {vz}, s[{SRD_DW}:{SRD_DW+3}], 0 offen offset:{k*1024} lds"])
    for hf in range(2):
        late.append([f"s_lshl_b32 s53, s{S_W}, 13", f"s_add_u32 s{S_SB}, s53, {hf*4096}", f"s_add_u32 m0, s{S_SB}, {LU}", f"s_add_u32 s{S_SB}, s{S_SB}, s{S_U}", "s_nop 0"])
        for k in range(4): late.append([f"buffer_load_dwordx4 {r['l16']}, {SRDW}, s{S_SB} offen offset:{k*1024} lds"])
    A(f"v_lshrrev_b32 {t0}, 2, {l}", f"s_lshl_b32 s53, s{S_W}, 4", f"v_add_u32 {t0}, s53, {t0}")
    A(f"v_and_b32 {t1}, 3, {l}", f"v_and_b32 {t2}, 3, {t0}", f"v_lshlrev_b32 {t2}, 6, {t2}")
    A(f"v_lshlrev_b32 {t3}, 10, {t0}", f"v_lshl_add_u32 {t3}, {t1}, 4, {t3}")
    for k in range(4):
        A(f"v_xor_b32 {gr[k]}, {64*k}, {t2}", f"v_add_u32 {gr[k]}, {gr[k]}, {t3}")
    A(f"v_mov_b32 {msk}, 0x3f803f80")
    A(f"s_waitcnt vmcnt({vm.need('g')})")
    stamp(A, 'statld')
    for jj in range(16):
        A(f"ds_read_b128 {stg.sub(4*jj,4)}, {gr[jj & 3]} offset:{(jj >> 2)*256}")
        if jj == 7: A("s_waitcnt lgkmcnt(4)")
    dots = []
    for jj in range(16):
        grp = []
        if jj % 4 == 0: grp.append(f"s_waitcnt lgkmcnt({max(0, 12 - jj)})")
        for d in range(4):
            x = stg[4*jj + d]; first = jj == 0 and d == 0
            grp.append(f"v_dot2_f32_bf16 {ab[0]}, {x}, {msk}, {'0' if first else ab[0]}")
            grp.append(f"v_dot2_f32_bf16 {ab[1]}, {x}, {x}, {'0' if first else ab[1]}")
        dots.append(grp)
    k = 0
    for jj, grp in enumerate(dots):
        A.ext(grp)
        tgt = (len(late) * (jj + 1) + 15) // 16
        while k < tgt: A.ext(late[k]); k += 1
    for mod in ["quad_perm:[1,0,3,2]", "quad_perm:[2,3,0,1]"]:
        for x in (ab[0], ab[1]): A(f"v_add_f32_dpp {x}, {x}, {x} {mod} row_mask:0xf bank_mask:0xf")
    A(f"v_mul_f32 {ab[0]}, {hexf(1/512)}, {ab[0]}", f"v_mul_f32 {ab[1]}, {hexf(1/512)}, {ab[1]}",
      f"v_fma_f32 {ab[1]}, -{ab[0]}, {ab[0]}, {ab[1]}", f"v_max_f32 {ab[1]}, 0, {ab[1]}", f"v_add_f32 {ab[1]}, {hexf(1e-5)}, {ab[1]}",
      f"v_rsq_f32 {ab[1]}, {ab[1]}", f"v_mul_f32 {t2}, {ab[0]}, {ab[1]}", f"v_sub_f32 {t2}, 0, {t2}")
    A(f"s_sub_u32 s53, s{S_T0}, 15", f"v_add_u32 {t3}, s53, {t0}", f"v_cmp_gt_u32 vcc, 1000, {t3}")
    A(f"v_cndmask_b32 {ab[0]}, 0, {ab[1]}, vcc", f"v_cndmask_b32 {ab[1]}, 0, {t2}, vcc")
    A(f"v_lshlrev_b32 {t2}, 3, {t0}", f"v_add_u32 {t2}, {LP}, {t2}", f"v_cmp_eq_u32 vcc, 0, {t1}", "s_and_saveexec_b64 s[54:55], vcc")
    A(f"ds_write_b64 {t2}, {ab}", "s_mov_b64 exec, s[54:55]")
    stamp(A, 'statdone')
    A(f"v_lshrrev_b32 {t1}, 2, v0", f"v_and_b32 {t2}, 3, v0", f"v_lshlrev_b32 {t2}, 2, {t2}")
    for k in range(4):
        A(f"v_xor_b32 {vt4[k]}, {4*k}, {t1}", f"v_lshl_add_u32 {vt4[k]}, {vt4[k]}, 4, {t2}")
    A(f"v_lshlrev_b32 {vlw}, 2, v0", f"v_add_u32 {vz}, {LW}, {vlw}", f"v_mov_b32 {msk}, 0xffff0000", f"v_mov_b32 {t0}, {LP}")
    A(f"v_add_u32 {vlr}, {LU}, {vlw}", f"v_add_u32 {vlw}, {UCB}, {vlw}")
    A("s_waitcnt vmcnt(0) lgkmcnt(0)", "s_barrier")
    stamp(A, 1)
    def pread(p): return f"ds_read_b128 {par[p % 4]}, {t0} offset:{p*16}"
    def gread(s_): return f"ds_read_b32 {gr[s_ % 8]}, {vt4[s_ & 3]} offset:{LG + s_*1024}"
    def uread(t): return f"ds_read_b32 {stg[t]}, {vlr} offset:{t*1024}"
    for i in range(31):
        A(f"ds_read_b32 {wp[2*i+1]}, {vz} offset:{i*1024}")
        if i == 14: A("s_waitcnt lgkmcnt(0)")
    A("s_waitcnt lgkmcnt(0)", "s_barrier")
    for p in range(2): A(pread(p))
    for s_ in range(6): A(gread(s_))
    for i in range(31):
        A(f"v_lshlrev_b32 {wp[2*i]}, 16, {wp[2*i+1]}", f"v_and_b32 {wp[2*i+1]}, {msk}, {wp[2*i+1]}")
    ds = [('p', 0), ('p', 1)] + [('g', k) for k in range(6)]
    def need(tag): return sum(1 for t in ds[ds.index(tag) + 1:])
    def finish(t):
        g = fin[t & 1]; a_ = acc.sub(2*t, 2)
        return [f"v_lshlrev_b32 {g[0]}, 16, {stg[t]}", f"v_and_b32 {g[1]}, {msk}, {stg[t]}", f"v_pk_mul_f32 {a_}, {a_}, {g}",
                f"v_cvt_pk_bf16_f32 {stg[t]}, {a_[0]}, {a_[1]}", f"ds_write_b32 {vlw}, {stg[t]} offset:{t*1032}"]
    for s_ in range(62):
        p = s_ >> 1
        tags = [('g', s_), ('p', p)]
        tfin = s_ - 31
        if tfin >= 0: tags.append(('u', tfin))
        n = min(need(x) for x in tags)
        A(f"s_waitcnt lgkmcnt({min(n, 15)})")
        g = gn[s_ & 1]; pr = par[p % 4].sub(2*(s_ & 1), 2); raw = gr[s_ % 8]
        A(f"v_lshlrev_b32 {g[0]}, 16, {raw}", f"v_and_b32 {g[1]}, {msk}, {raw}")
        A(f"v_pk_fma_f32 {g}, {g}, {pr}, {pr} op_sel:[0,0,1] op_sel_hi:[1,0,1]")
        if s_ % 2 == 0 and p + 2 <= 30: A(pread(p + 2)); ds.append(('p', p + 2))
        if s_ + 6 < 62: A(gread(s_ + 6)); ds.append(('g', s_ + 6))
        if 27 <= s_ < 59: A(uread(s_ - 27)); ds.append(('u', s_ - 27))
        fl = finish(tfin) if tfin >= 0 else []
        body = []
        for t in range(max(0, s_ - 30), min(31, s_) + 1):
            i = s_ - t; a_ = acc.sub(2*t, 2); w_ = wp.sub(2*i, 2)
            body.append(f"v_pk_mul_f32 {a_}, {g}, {w_}" if i == 0 else f"v_pk_fma_f32 {a_}, {g}, {w_}, {a_}")
        if fl:
            A.ext(interleave(body, fl) if len(body) >= 2 else body + fl); ds.append(('w', tfin))
        else: A.ext(body)
    A("s_waitcnt lgkmcnt(0)")
    A.ext(finish(31))
    stamp(A, 2)
    A(f"v_and_b32 {t0}, 31, {l}", f"v_mul_u32_u24 {t0}, 1032, {t0}", f"v_lshrrev_b32 {t1}, 5, {l}", f"v_lshl_add_u32 {t0}, {t1}, 3, {t0}")
    A(f"s_lshl_b32 s53, s{S_W}, 8", f"s_add_u32 s53, s53, {UCB}", f"v_add_u32 {vlr}, s53, {t0}")
    A("s_waitcnt lgkmcnt(0)", "s_barrier")
    for k in range(8):
        A(f"ds_read2_b64 {wp.sub(4*k,4)}, {vlr} offset0:{4*k} offset1:{4*k+2}")
    A(f"s_lshl_b32 s53, s{S_W}, 13", f"s_add_u32 s{S_DST}, s{S_DST}, s53")
    for k in range(8):
        A(f"s_waitcnt lgkmcnt({7-k})")
        if k % 4 == 0: A(f"s_add_u32 s{S_T}, s{S_DST}, {k*1024}")
        A(f"buffer_store_dwordx4 {wp.sub(4*k,4)}, {r['l16']}, {SRDW}, s{S_T} offen offset:{(k % 4)*1024}")
    stamp_flush(A, 1, SRD_WS, ab[0], ab[1])
    A("L_EXIT_p2:")
    A("s_endpgm")
    return A, max(V.hi, hi_gemm), 128
```

```python
import sys, importlib
from common import *
import p1

STMAP = {}
ENDWAIT = True
def finish(A, name, hi, accum=None, agprs=0):
    L2 = []
    for l in A.L:
        if '; st:' in l:
            body, cls = l.split('; st:')
            l = body.rstrip() + (' ' + STMAP[cls.strip()] if STMAP.get(cls.strip()) else '')
        L2.append(l)
    A.L = L2
    if ENDWAIT:
        L2 = []
        for l in A.L:
            if l.strip() == 's_endpgm': L2.append('s_waitcnt vmcnt(0)')
            L2.append(l)
        A.L = L2
    lines, added = fix_hazards(A.L)
    vg = (hi + 7) // 8 * 8
    if agprs:
        acc = (hi + 3) // 4 * 4; total = acc + agprs
    else:
        acc = min(256, (hi + 3) // 4 * 4); total = hi
    head = f".globl {name}\n.p2align 8\n.type {name},@function\n{name}:\n"
    return head + "\n".join(lines) + "\n" + kd(name, total, acc), added

def build(parts, header):
    out = header + '.amdgcn_target "amdgcn-amd-amdhsa--gfx950"\n.text\n'
    for name, (A, hi, ag) in parts:
        txt, added = finish(A, name, hi, agprs=ag)
        n = sum(1 for l in A.L if l.strip() and not l.strip().endswith(':') and not l.strip().startswith(';'))
        print(f"{name}: {n} instructions, {added} hazard nops added, vgpr hi {hi}, agpr {ag}", file=sys.stderr)
        out += txt
    return out

if __name__ == '__main__':
    A, hi = p1.build()
    src = build([('p1_kernel', (A, hi, 0))], "; @launch kernel=p1_kernel grid=(256,1,1) block=(256,1,1) lds=163840\n")
    open('p1_only.s', 'w').write(src)
```

```python
from common import *
import common

S_W, S_WT, S_WF, S_T0 = 28, 29, 30, 31
SRD_X = 32; SRD_W = [36, 40, 44]; SRD_WS = 48; SRD_DBG = 52
S_KW = [56, 57, 58]; S_KSTEP = [59, 60, 61]; S_KX = 62; S_M0X = 63; S_M0W = 64
S_XM = 66
S_I = 68; S_CT = 69
S_DSTA = 70; S_DSTB = 71; S_SCA = 72
S_SH = [73, 74, 75]
S_T = 80
S_C2 = 90
S_CNT = 79
S_GST = 76

XREG, WREG = 0, 65536
XST_B, WST_B = 16384, 24576

def lane_setup(A, V, r):
    A(f"v_and_b32 {r['lane']}, 63, v0")
    A(f"v_lshrrev_b32 {r['t0']}, 6, v0")
    A("s_nop 0")
    A(f"v_readfirstlane_b32 s{S_W}, {r['t0']}")
    A(f"s_lshr_b32 s{S_WT}, s{S_W}, 1")
    A(f"s_and_b32 s{S_WF}, s{S_W}, 1")

def dma_addr_setup(A, r, nslots):
    l = r['lane']; t0, t1, t2, t3 = r['t0'], r['t1'], r['t2'], r['t3']
    A(f"v_lshrrev_b32 {t0}, 3, {l}")
    A(f"v_lshrrev_b32 {t1}, 4, {l}")
    A(f"v_and_b32 {t2}, 7, {l}")
    A(f"v_xor_b32 {t3}, {t2}, {t1}")
    A(f"s_lshl_b32 s{S_T}, s{S_W}, 5")
    A(f"v_add_u32 {t0}, s{S_T}, {t0}")
    for j in range(4):
        d = r['vx_dma'][j]
        A(f"v_add_u32 {d}, {8*j}, {t0}")
        A(f"v_lshlrev_b32 {d}, 10, {d}")
        if j % 2 == 0: A(f"v_lshl_add_u32 {d}, {t3}, 4, {d}")
        else:
            A(f"v_xor_b32 {t1}, 4, {t3}")
            A(f"v_lshl_add_u32 {d}, {t1}, 4, {d}")
    A(f"v_lshrrev_b32 {t0}, 3, {l}")
    A(f"s_lshl_b32 s{S_T}, s{S_W}, 4")
    A(f"v_add_u32 {t0}, s{S_T}, {t0}")
    A(f"v_lshrrev_b32 {t1}, 4, {l}")
    A(f"v_and_b32 {t1}, 1, {t1}")
    A(f"v_lshlrev_b32 {t1}, 2, {t1}")
    A(f"v_xor_b32 {t1}, {t1}, {t2}")
    A(f"v_lshlrev_b32 {t1}, 4, {t1}")
    for p in range(nslots):
        for j in range(2):
            d = r['vw_dma'][2*p+j]
            A(f"v_add_u32 {d}, {8*j}, {t0}")
            A(f"v_lshlrev_b32 {d}, s{S_SH[p]}, {d}")
            A(f"v_add_u32 {d}, {d}, {t1}")
    A(f"s_lshl_b32 s{S_M0X}, s{S_W}, 12")
    A(f"s_lshl_b32 s{S_M0W}, s{S_W}, 11")
    A(f"s_add_u32 s{S_M0W}, s{S_M0W}, {WREG}")
    for p in range(nslots):
        A(f"s_mov_b32 s{S_KW[p]}, 0")
        A(f"s_lshl_b32 s{S_KSTEP[p]}, 64, s{S_SH[p]}")

def read_addr_setup(A, r, frs):
    l = r['lane']; t0, t1, t2, t3 = r['t0'], r['t1'], r['t2'], r['t3']
    A(f"v_and_b32 {t0}, 31, {l}")
    A(f"v_lshrrev_b32 {t1}, 1, {t0}")
    A(f"v_and_b32 {t1}, 7, {t1}")
    A(f"v_lshrrev_b32 {t2}, 5, {l}")
    A(f"s_lshl_b32 s{S_T}, s{S_WT}, 6")
    A(f"v_add_u32 {t0}, s{S_T}, {t0}")
    A(f"v_lshlrev_b32 {t0}, 7, {t0}")
    for s_ in range(4):
        d = r['vx_rd'][s_]
        A(f"v_or_b32 {t3}, {2*s_}, {t2}")
        A(f"v_xor_b32 {t3}, {t3}, {t1}")
        A(f"v_lshl_add_u32 {d}, {t3}, 4, {t0}")
    A(f"v_and_b32 {t0}, 15, {l}")
    A(f"v_lshrrev_b32 {t1}, 2, {t0}")
    A(f"v_lshl_add_u32 {t1}, {t2}, 3, {t1}")
    A(f"v_lshlrev_b32 {t1}, 7, {t1}")
    A(f"v_and_b32 {t3}, 1, {t0}")
    A(f"v_lshl_add_u32 {t1}, {t3}, 3, {t1}")
    A(f"v_bfe_u32 {t3}, {l}, 4, 1")
    A(f"v_lshlrev_b32 {t3}, 1, {t3}")
    A(f"v_bfe_u32 {t2}, {t0}, 1, 1")
    A(f"v_or_b32 {t3}, {t3}, {t2}")
    A(f"v_bfe_u32 {t2}, {t0}, 3, 1")
    A(f"v_lshlrev_b32 {t2}, 2, {t2}")
    A(f"v_xor_b32 {t3}, {t3}, {t2}")
    for k, (slot, e) in enumerate(frs):
        for half in range(2):
            d = r['vw_rd'][2*k+half]
            if e == 'wf':
                A(f"s_lshl_b32 s{S_T}, s{S_WF}, 2")
                A(f"v_xor_b32 {d}, s{S_T}, {t3}")
            else:
                A(f"v_xor_b32 {d}, {4*e}, {t3}")
            A(f"v_lshl_add_u32 {d}, {d}, 4, {t1}")
            if slot == 'wf':
                A(f"s_lshl_b32 s{S_T}, s{S_WF}, 13")
                A(f"s_add_u32 s{S_T}, s{S_T}, {WREG + half * 2 * WST_B}")
                A(f"v_add_u32 {d}, s{S_T}, {d}")
            else:
                A(f"v_add_u32 {d}, {WREG + half * 2 * WST_B + slot * 8192}, {d}")

def dma_chunk(r, c, nslots, masked):
    st = c & 3; G = []
    G.append([f"s_mov_b32 s{S_KX}, {c*128}"])
    for j in range(4):
        g = [f"s_add_u32 m0, s{S_M0X}, {st*XST_B + j*1024}"]
        if j == 3 and masked: g.append(f"s_mov_b64 exec, s[{S_XM}:{S_XM+1}]")
        else: g.append("s_nop 0")
        g.append(f"buffer_load_dwordx4 {r['vx_dma'][j]}, s[{SRD_X}:{SRD_X+3}], s{S_KX} offen lds")
        if j == 3 and masked: g.append("s_mov_b64 exec, -1")
        G.append(g)
    for p in range(nslots):
        for j in range(2):
            G.append([f"s_add_u32 m0, s{S_M0W}, {st*WST_B + p*8192 + j*1024}", "s_nop 0",
                      f"buffer_load_dwordx4 {r['vw_dma'][2*p+j]}, s[{SRD_W[p]}:{SRD_W[p]+3}], s{S_KW[p]} offen lds"])
        G.append([f"s_add_u32 s{S_KW[p]}, s{S_KW[p]}, s{S_KSTEP[p]}"])
    return G

def frag_reads(r, g, nf):
    c, s_ = g >> 2, g & 3; st = c & 3; b = g & 1
    L = [f"ds_read_b128 {r['fx'][b][0]}, {r['vx_rd'][s_]} offset:{st*XST_B}"]
    for k in range(nf):
        for u in range(2):
            off = (st & 1) * WST_B + (16*s_ + 4*u) * 128
            L.append(f"ds_read_b64_tr_b16 {r['fw'][b][k].sub(2*u, 2)}, {r['vw_rd'][2*k + (st >> 1)]} offset:{off}")
        if k == 0:
            L.append(f"ds_read_b128 {r['fx'][b][1]}, {r['vx_rd'][s_]} offset:{st*XST_B + 4096}")
    return L

def main_loop(A, r, nf, nslots, masked, w_is_a, hooks):
    vm = hooks.get('vm') or VM()
    stamp(A, 'setup')
    def emit(lines, tag=None):
        for x in lines:
            A(x)
            if is_vmem(x): vm.issue(tag)
    for c in range(2):
        for g in dma_chunk(r, c, nslots, masked): emit(g, ('c', c))
        if c == 0 and 'mid' in hooks: emit(hooks['mid'](vm), 'mid')
    stamp(A, 'issued')
    if 'pre' in hooks: emit(hooks['pre'](vm), 'cond')
    A(f"s_waitcnt vmcnt({vm.need(('c', 0))}) lgkmcnt(0)")
    A("s_barrier")
    stamp(A, 1)
    A.ext(frag_reads(r, 0, nf))
    for c in range(8):
        dm = dma_chunk(r, c + 2, nslots, masked) if c + 2 < 8 else []
        extra = [[x] for x in hooks.get(('chunk', c), [])]
        share = [dm[(len(dm) * q) // 4:(len(dm) * (q + 1)) // 4] for q in range(4)]
        share[0] = extra + share[0]
        for s_ in range(4):
            g = 4 * c + s_; b = g & 1
            M = []
            for k in range(nf):
                for tb in range(2):
                    acc = r['acc'][k][tb]
                    x, w = r['fx'][b][tb], r['fw'][b][k]
                    M.append(mfma(acc, w if w_is_a else x, x if w_is_a else w, '0' if g == 0 else None))
            if ('step', g) in hooks: emit(hooks[('step', g)](vm), ('step', g))
            A("s_waitcnt lgkmcnt(0)")
            rd = [[x] for x in frag_reads(r, g + 1, nf)] if g + 1 < 32 else []
            if s_ == 3 and c < 7:
                A(M[0]); A(M[1])
                A(f"s_waitcnt vmcnt({vm.need(('c', c + 1))})")
                A("s_barrier")
                seq = spread(M[2:], rd + share[3])
            else:
                nm = len(M)
                seq = spread(M, rd, 0, nm - 2)
                pos = [i for i, x in enumerate(seq) if x.startswith('v_mfma')]
                groups = share[s_]; out = []; k = 0
                for i, x in enumerate(seq):
                    out.append(x)
                    if i + 1 in pos or i == len(seq) - 1:
                        done = sum(1 for p in pos if p <= i)
                        tgt = (len(groups) * done + nm - 1) // nm
                        while k < tgt: out += groups[k]; k += 1
                for gq in groups[k:]: out += gq
                seq = out
            tagc = ('c', c + 2)
            for x in seq:
                A(x)
                if is_vmem(x): vm.issue(tagc if ' lds' in x else 'other')
    stamp(A, 2)

def cs_reads(r, k, dst):
    base = r['vcsA'] if k < 2 else r['vcsB']
    return [f"ds_read_b128 {dst.sub(4*q,4)}, {base} offset:{(128*k if k < 2 else 0) + 32*q}" for q in range(4)]

def correct_lines(acc, ab, cs):
    L = [f"v_pk_mul_f32 {acc.sub(2*i,2)}, {acc.sub(2*i,2)}, {ab} op_sel:[0,0] op_sel_hi:[1,0]" for i in range(8)]
    L += [f"v_pk_fma_f32 {acc.sub(2*i,2)}, {cs.sub(2*i,2)}, {ab}, {acc.sub(2*i,2)} op_sel:[0,1,0] op_sel_hi:[1,1,1]" for i in range(8)]
    return L

def gelu_lines(r, y):
    t = r['tmp']; one = r['one2']; c1 = r['c1']; P = range(8)
    L = [f"v_pk_mul_f32 {t.sub(2*i,2)}, {y.sub(2*i,2)}, {y.sub(2*i,2)}" for i in P]
    L += [f"v_pk_fma_f32 {t.sub(2*i,2)}, {t.sub(2*i,2)}, s[{S_C2}:{S_C2+1}], {c1}" for i in P]
    L += [f"v_pk_mul_f32 {t.sub(2*i,2)}, {t.sub(2*i,2)}, {y.sub(2*i,2)}" for i in P]
    L += [f"v_exp_f32 {t[i]}, {t[i]}" for i in range(16)]
    L += [f"v_pk_add_f32 {t.sub(2*i,2)}, {t.sub(2*i,2)}, {one}" for i in P]
    L += [f"v_rcp_f32 {t[i]}, {t[i]}" for i in range(16)]
    L += [f"v_pk_mul_f32 {y.sub(2*i,2)}, {y.sub(2*i,2)}, {t.sub(2*i,2)}" for i in P]
    return L

def pack_lines(acc, dst):
    return [f"v_cvt_pk_bf16_f32 {dst[i]}, {acc[2*i]}, {acc[2*i+1]}" for i in range(8)]

def gstat_lines(y, st, first):
    s1, s2 = st.sub(0, 2), st.sub(2, 2); L = []
    for i in range(8):
        p = y.sub(2*i, 2)
        if first and i == 0:
            L.append(f"v_pk_mul_f32 {s2}, {p}, {p}")
        elif first and i == 1:
            L += [f"v_pk_add_f32 {s1}, {y.sub(0,2)}, {p}", f"v_pk_fma_f32 {s2}, {p}, {p}, {s2}"]
        else:
            L += [f"v_pk_add_f32 {s1}, {s1}, {p}", f"v_pk_fma_f32 {s2}, {p}, {p}, {s2}"]
    return L

def gstat_store(r, st, tb):
    a, b = st.sub(0, 2), st.sub(2, 2)
    return [f"v_add_f32 {a[0]}, {a[0]}, {a[1]}", f"v_add_f32 {a[1]}, {b[0]}, {b[1]}",
            f"v_mov_b32 {b[0]}, {a[0]}", f"v_mov_b32 {b[1]}, {a[1]}",
            f"v_permlane32_swap_b32 {a[0]}, {b[0]}", f"v_permlane32_swap_b32 {a[1]}, {b[1]}",
            f"v_pk_add_f32 {a}, {a}, {b}",
            f"buffer_store_dwordx2 {a}, {r['vgst'][tb]}, s[{SRD_WS}:{SRD_WS+3}], s{S_GST} offen"]

def gel_stores(r, d, tb, sdst, extra):
    L = []
    for q in range(2):
        L += [f"v_permlane32_swap_b32 {d[4*q]}, {d[4*q+2]}", f"v_permlane32_swap_b32 {d[4*q+1]}, {d[4*q+3]}"]
    L.append(f"s_add_u32 s{S_T}, s{sdst}, {extra}")
    for q in range(2):
        L.append(f"buffer_store_dwordx4 {d.sub(4*q,4)}, {r['vgel'][tb]}, s[{SRD_WS}:{SRD_WS+3}], s{S_T} offen offset:{q*32} ; st:ug")
    return L

def epilogue_mixed(A, r, pk):
    pool = r['pool']; cs, tmp = r['cs'], r['tmp']
    A.ext(cs_reads(r, 0, cs)); A.ext(cs_reads(r, 1, tmp))
    deferred = []
    for k in range(2):
        A(f"s_waitcnt lgkmcnt({4 if k == 0 else 4})")
        for tb in range(2):
            acc = r['acc'][k][tb]; d = pool.sub(8 * (2*k + tb), 8)
            A.ext(correct_lines(acc, r['abs'][tb], cs if k == 0 else tmp))
            A.ext(pack_lines(acc, d))
            for hf in range(2):
                deferred.append([f"s_add_u32 s{S_T+2}, s{S_DSTA}, {k*2048 + tb*32768}",
                                 f"buffer_store_dwordx4 {d.sub(4*hf,4)}, {r['vlin']}, s[{SRD_WS}:{SRD_WS+3}], s{S_T+2} offen offset:{hf*1024} ; st:lin"])
        if k == 0: A.ext(cs_reads(r, 2, cs))
    stamp(A, 'lin')
    A("s_waitcnt lgkmcnt(0)")
    lab = A.label('nog')
    for tb in range(2):
        acc = r['acc'][2][tb]; d = pk[tb]
        body = correct_lines(acc, r['ab'][tb], cs) + gelu_lines(r, acc)
        A.ext(spread(body, deferred[4*tb:4*tb+4]))
        A.ext(pack_lines(acc, d))
        A.ext(gel_stores(r, d, tb, S_DSTB, 0))
    A(f"s_cmp_lt_u32 s{S_CT}, 8", f"s_cbranch_scc1 {lab}")
    for tb in range(2):
        st = r['gst'][tb]
        A.ext(gstat_lines(r['acc'][2][tb], st, True)); A.ext(gstat_store(r, st, tb))
    A(f"{lab}:")
    stamp(A, 'gel')

def epilogue_g(A, r, pk):
    cs, cs2 = r['cs'], r['pool'].sub(0, 16)
    A.ext(cs_reads(r, 0, cs)); A.ext(cs_reads(r, 1, cs2))
    for k in range(2):
        A(f"s_waitcnt lgkmcnt({4 if k == 0 else 0})")
        for tb in range(2):
            acc = r['acc'][k][tb]; d = pk[tb]
            A.ext(correct_lines(acc, r['ab'][tb], cs if k == 0 else cs2)); A.ext(gelu_lines(r, acc))
            A.ext(pack_lines(acc, d))
            A.ext(gel_stores(r, d, tb, S_DSTA, 64 * k))
            A.ext(gstat_lines(acc, r['gst'][tb], k == 0))
    for tb in range(2): A.ext(gstat_store(r, r['gst'][tb], tb))

def build(name='p1_kernel'):
    A = KAsm('p1')
    V = Alloc('v', 1, 256)
    r = {}
    for n in ['lane', 't0', 't1', 't2', 't3', 'vlin', 'vcsA', 'vcsB', 'vpoll', 'vz']: r[n] = V(1)
    r['vx_dma'] = V(4, 1); r['vw_dma'] = V(6, 1); r['vx_rd'] = V(4, 1); r['vw_rd'] = V(6, 1)
    r['vgel'] = V(2, 1)
    r['ab'] = [V(2), V(2)]; r['abs'] = [V(2), V(2)]
    r['one2'] = V(2); r['c1'] = V(2)
    r['acc'] = [[V(16, 4), V(16, 4)] for _ in range(3)]
    r['fx'] = [[V(4), V(4)] for _ in range(2)]
    r['fw'] = [[V(4) for _ in range(3)] for _ in range(2)]
    r['pool'] = R('v', r['fx'][0][0].idx, 40)
    assert r['fw'][1][2].idx + 4 == r['pool'].idx + 40
    r['gst'] = [r['pool'].sub(32, 4), r['pool'].sub(36, 4)]
    r['vgst'] = V(2, 1)
    r['cs'] = V(16, 4); r['tmp'] = V(16, 4)
    pk = [V(8, 4), V(8, 4)]
    st64 = V(0 + 16, 4)
    prologue(A, 256)
    stamp(A, 0)
    lane_setup(A, V, r)
    A("s_and_b32 s80, s2, 7")
    A("s_lshr_b32 s81, s2, 3")
    A("s_cmp_lt_u32 s81, 4")
    A("s_cbranch_scc1 L_p1_weights")
    A("s_sub_u32 s81, s81, 4")
    A("s_and_b32 s82, s80, 3", "s_lshl_b32 s82, s82, 2", "s_and_b32 s83, s81, 3", f"s_add_u32 s{S_I}, s82, s83")
    A("s_lshr_b32 s82, s80, 2", "s_mul_i32 s82, s82, 7", "s_lshr_b32 s83, s81, 2", f"s_add_u32 s{S_CT}, s82, s83")
    A(f"s_cmp_lt_u32 s{S_CT}, 12", f"s_cselect_b32 s{S_SH[0]}, 10, 11", f"s_mov_b32 s{S_SH[1]}, s{S_SH[0]}", f"s_mov_b32 s{S_SH[2]}, 11")
    dma_addr_setup(A, r, 3)
    A(f"s_mov_b32 s{S_XM}, -1", f"s_cmp_eq_u32 s{S_W}, 3", f"s_cselect_b32 s{S_XM+1}, 0xff, -1")
    A(f"s_mul_i32 s82, s{S_I}, {125*1024}")
    A("s_waitcnt lgkmcnt(0)")
    stamp(A, 'karg')
    srd(A, SRD_X, 'x', 125*1024, off_sgpr='s82')
    A(f"s_cmp_ge_u32 s{S_CT}, 12")
    A("s_cbranch_scc1 L_p1_setup_g")
    for p in range(2):
        A(f"s_lshl_b32 s82, s{S_CT}, 1", f"s_add_u32 s82, s82, {p}")
        A("s_cmp_lt_u32 s82, 16", f"s_cselect_b64 s[84:85], s[{SP['wk']}:{SP['wk']+1}], s[{SP['wv']}:{SP['wv']+1}]")
        A("s_cmp_lt_u32 s82, 8", f"s_cselect_b64 s[84:85], s[{SP['wq']}:{SP['wq']+1}], s[84:85]")
        A("s_and_b32 s83, s82, 7", "s_lshl_b32 s83, s83, 7")
        A("s_sub_u32 s86, 0x80000, s83")
        srd(A, SRD_W[p], 84, 's86', off_sgpr='s83')
    A(f"s_lshl_b32 s83, s{S_CT}, 7", "s_sub_u32 s86, 0x100000, s83")
    srd(A, SRD_W[2], 'wup', 's86', off_sgpr='s83')
    A("s_branch L_p1_srd_done")
    A("L_p1_setup_g:")
    for p in range(3):
        pp = p if p < 2 else 0
        A(f"s_sub_u32 s82, s{S_CT}, 12", "s_lshl_b32 s82, s82, 1", f"s_add_u32 s82, s82, {12 + pp}", "s_lshl_b32 s83, s82, 7")
        A("s_sub_u32 s86, 0x100000, s83")
        srd(A, SRD_W[p], 'wup', 's86', off_sgpr='s83')
    A("L_p1_srd_done:")
    l = r['lane']; t0, t1, t2, t3 = r['t0'], r['t1'], r['t2'], r['t3']
    def late_setup():
        B = KAsm('p1x')
        srd(B, SRD_WS, 'ws', WS_END)
        srd(B, SRD_DBG, 'dbg', 256)
        B(f"s_cmp_ge_u32 s{S_CT}, 12", "s_cbranch_scc1 L_p1_dst_g")
        B(f"s_lshl_b32 s82, s{S_CT}, 1", f"s_add_u32 s82, s82, s{S_WF}")
        B("s_lshr_b32 s83, s82, 3", "s_lshl_b32 s83, s83, 21", "s_and_b32 s84, s82, 7", "s_lshl_b32 s84, s84, 12")
        B(f"s_add_u32 s{S_DSTA}, s83, s84")
        B("s_cmp_lt_u32 s82, 8", f"s_cselect_b32 s{S_SCA}, {hexf(QSCALE)}, 1.0")
        B(f"s_lshr_b32 s83, s{S_CT}, 3", f"s_mul_i32 s83, s83, {GB - UB}", f"s_and_b32 s84, s{S_CT}, 7", "s_lshl_b32 s84, s84, 7")
        B("s_add_u32 s83, s83, s84", f"s_lshl_b32 s84, s{S_WF}, 6", "s_add_u32 s83, s83, s84", f"s_add_u32 s{S_DSTB}, s83, {hex(UB)}")
        B(f"s_sub_u32 s83, s{S_CT}, 8", "s_lshl_b32 s83, s83, 1", f"s_add_u32 s83, s83, s{S_WF}", "s_lshl_b32 s83, s83, 14", f"s_add_u32 s{S_GST}, s83, {hex(GST)}")
        B("s_branch L_p1_dst_done")
        B("L_p1_dst_g:")
        B(f"s_sub_u32 s82, s{S_CT}, 12", "s_lshl_b32 s82, s82, 1", f"s_add_u32 s82, s82, s{S_WF}", "s_add_u32 s82, s82, 12")
        B("s_and_b32 s84, s82, 7", "s_lshl_b32 s84, s84, 7", f"s_add_u32 s{S_DSTA}, s84, {hex(GB)}")
        B(f"s_mov_b32 s{S_DSTB}, 0", f"s_mov_b32 s{S_SCA}, 1.0")
        B(f"s_sub_u32 s83, s{S_CT}, 12", "s_lshl_b32 s83, s83, 1", f"s_add_u32 s83, s83, s{S_WF}", "s_add_u32 s83, s83, 8", "s_lshl_b32 s83, s83, 14", f"s_add_u32 s{S_GST}, s83, {hex(GST)}")
        B("L_p1_dst_done:")
        B(f"v_lshrrev_b32 {t0}, 3, {l}", f"v_add_u32 {t0}, 125, {t0}", f"v_lshlrev_b32 {t0}, 7, {t0}")
        B(f"v_and_b32 {t1}, 7, {l}", f"v_lshl_add_u32 {t0}, {t1}, 4, {t0}")
        B(f"s_lshl_b32 s{S_T}, s{S_W}, 14", f"v_add_u32 {t0}, s{S_T}, {t0}")
        ones = r['tmp'].sub(0, 4)
        for q in range(4): B(f"v_mov_b32 {ones[q]}, 0x3f803f80")
        B(f"v_cmp_gt_u32 vcc, 24, {l}", "s_and_saveexec_b64 s[92:93], vcc", f"ds_write_b128 {t0}, {ones}", "s_mov_b64 exec, s[92:93]")
        read_addr_setup(B, r, [('wf', 0), ('wf', 1), (2, 'wf')])
        B(f"s_lshl_b32 s82, s{S_I}, 2", f"s_lshl_b32 s83, s{S_WT}, 1", "s_add_u32 s82, s82, s83", "s_lshl_b32 s82, s82, 15")
        B(f"v_lshlrev_b32 {r['vlin']}, 4, {l}", f"v_add_u32 {r['vlin']}, s82, {r['vlin']}")
        B(f"v_lshrrev_b32 {t2}, 5, {l}", f"v_lshlrev_b32 {t2}, 4, {t2}")
        B(f"s_lshl_b32 s82, s{S_WF}, 8", f"v_add_u32 {r['vcsA']}, s82, {t2}")
        B(f"s_lshl_b32 s82, s{S_WF}, 7", "s_add_u32 s82, s82, 512", f"v_add_u32 {r['vcsB']}, s82, {t2}")
        B(f"v_and_b32 {t0}, 31, {l}", f"s_lshl_b32 s82, s{S_WT}, 6", f"v_add_u32 {t0}, s82, {t0}")
        B(f"s_mul_i32 s83, s{S_I}, 125")
        for tb in range(2):
            B(f"v_add_u32 {t1}, {32*tb}, {t0}")
            B(f"v_add_u32 {t3}, s83, {t1}", f"v_lshlrev_b32 {t3}, 10, {t3}", f"v_add_u32 {t3}, {t3}, {t2}")
            B(f"v_cmp_gt_u32 vcc, 125, {t1}", f"v_mov_b32 {r['vgel'][tb]}, {hex(OOB)}", f"v_cndmask_b32 {r['vgel'][tb]}, {r['vgel'][tb]}, {t3}, vcc")
            B(f"v_add_u32 {t3}, s83, {t1}", f"v_lshlrev_b32 {t3}, 3, {t3}", f"v_cmp_eq_u32 s[84:85], 0, {t2}", "s_and_b64 vcc, vcc, s[84:85]")
            B(f"v_mov_b32 {r['vgst'][tb]}, {hex(OOB)}", f"v_cndmask_b32 {r['vgst'][tb]}, {r['vgst'][tb]}, {t3}, vcc")
        B(f"s_lshl_b32 s82, s{S_I}, 10", f"s_add_u32 s82, s82, {hex(XST)}", f"v_lshlrev_b32 {r['vz']}, 3, {t0}", f"v_add_u32 {r['vz']}, s82, {r['vz']}")
        B(f"s_lshl_b32 s82, s{S_I}, 2", f"v_mov_b32 {r['vpoll']}, s82")
        B(f"v_mov_b32 {r['one2'][0]}, 1.0", f"v_mov_b32 {r['one2'][1]}, 1.0")
        c1 = -2.0 * LOG2E * 0.7978845608028654
        B(f"v_mov_b32 {r['c1'][0]}, {hexf(c1)}", f"v_mov_b32 {r['c1'][1]}, {hexf(c1)}")
        B(f"s_mov_b32 s{S_C2}, {hexf(c1*0.044715)}", f"s_mov_b32 s{S_C2+1}, {hexf(c1*0.044715)}")
        return B.L
    pollv = r['t0']
    poll = [f"buffer_load_dword {pollv}, {r['vpoll']}, s[{SRD_DBG}:{SRD_DBG+3}], 0 offen sc1"]
    lp, lq = A.label('poll'), A.label('pollok')
    check = ["s_waitcnt vmcnt(0)", f"v_readfirstlane_b32 s{S_T+1}, {pollv}", "s_nop 3", f"s_cmp_ge_u32 s{S_T+1}, 2", f"s_cbranch_scc1 {lq}",
             f"s_mov_b32 s{S_CNT}, 0x40000", f"{lp}:", "s_sleep 4",
             f"buffer_load_dword {pollv}, {r['vpoll']}, s[{SRD_DBG}:{SRD_DBG+3}], 0 offen sc1", "s_waitcnt vmcnt(0)",
             f"v_readfirstlane_b32 s{S_T+1}, {pollv}", f"s_sub_u32 s{S_CNT}, s{S_CNT}, 1", "s_nop 2", f"s_cmp_eq_u32 s{S_CNT}, 0", f"s_cbranch_scc1 {lq}",
             f"s_cmp_ge_u32 s{S_T+1}, 2", f"s_cbranch_scc0 {lp}", f"{lq}:",
             f"buffer_load_dwordx2 {r['ab'][0]}, {r['vz']}, s[{SRD_WS}:{SRD_WS+3}], 0 offen sc1",
             f"buffer_load_dwordx2 {r['ab'][1]}, {r['vz']}, s[{SRD_WS}:{SRD_WS+3}], 0 offen offset:256 sc1"]
    main_loop(A, r, 3, 3, True, True, {('chunk', 6): poll, ('step', 29): lambda vm: check, 'mid': lambda vm: late_setup()})
    A(f"s_cmp_eq_u32 s{S_WT}, 0", "s_cbranch_scc1 L_p1_nocs")
    A("s_mov_b32 exec_lo, 0x20000000", "s_mov_b32 exec_hi, 0x20000000", "s_nop 7")
    for k in range(3):
        base = r['vcsA'] if k < 2 else r['vcsB']
        for q in range(4):
            A(f"ds_write_b128 {base}, {r['acc'][k][1].sub(4*q,4)} offset:{(128*k if k < 2 else 0) + 32*q}")
    A("s_mov_b64 exec, -1")
    A("L_p1_nocs:")
    A("s_waitcnt lgkmcnt(0)", "s_barrier", "s_waitcnt vmcnt(0)")
    stamp(A, 'cs')
    for tb in range(2):
        A(f"v_pk_mul_f32 {r['abs'][tb]}, {r['ab'][tb]}, s[{S_SCA}:{S_SCA+1}] op_sel_hi:[1,0]")
    A(f"s_cmp_ge_u32 s{S_CT}, 12", "s_cbranch_scc1 L_p1_epi_g")
    epilogue_mixed(A, r, pk)
    stamp_flush(A, 0, SRD_WS, r['ab'][0][0], r['ab'][0][1])
    A("s_endpgm")
    A("L_p1_epi_g:")
    epilogue_g(A, r, pk)
    stamp_flush(A, 0, SRD_WS, r['ab'][0][0], r['ab'][0][1])
    A("s_endpgm")
    A("L_p1_weights:")
    A("s_waitcnt lgkmcnt(0)")
    stamp(A, 'karg')
    srd(A, SRD_WS, 'ws', WS_END)
    srd(A, SRD_DBG, 'dbg', 256)
    A("s_lshl_b32 s81, s81, 3", "s_add_u32 s81, s81, s80")
    J = 78
    A(f"s_mov_b32 s{J}, s81")
    A(f"s_lshr_b32 s82, s{J}, 1", f"s_mov_b32 s{S_I}, s82", f"s_mul_i32 s82, s82, {125*1024}")
    srd(A, SRD_W[2], 'x', 125*1024, off_sgpr='s82')
    stv = [r['cs'], r['tmp'], R('v', pk[0].idx, 16), st64]
    assert pk[1].idx == pk[0].idx + 8
    A(f"s_and_b32 s83, s{J}, 1", "s_lshl_b32 s83, s83, 6", f"s_lshl_b32 s84, s{S_W}, 4", "s_add_u32 s83, s83, s84")
    rowv = r['vgel']
    for g2 in range(2):
        A(f"v_lshrrev_b32 {rowv[g2]}, 3, {l}", f"v_add_u32 {rowv[g2]}, s83, {rowv[g2]}")
        if g2: A(f"v_add_u32 {rowv[g2]}, 8, {rowv[g2]}")
    for g2 in range(2):
        A(f"v_lshlrev_b32 {t0}, 10, {rowv[g2]}", f"v_and_b32 {t1}, 7, {l}", f"v_lshl_add_u32 {t0}, {t1}, 4, {t0}")
        for jj in range(8):
            q = g2 * 8 + jj
            A(f"buffer_load_dwordx4 {stv[q//4].sub(4*(q%4),4)}, {t0}, s[{SRD_W[2]}:{SRD_W[2]+3}], 0 offen offset:{jj*128}")
        A("s_nop 0")
    A(f"s_lshr_b32 s82, s{J}, 4")
    A("s_cmp_eq_u32 s82, 0", f"s_cselect_b64 s[84:85], s[{SP['wao']}:{SP['wao']+1}], s[{SP['wdn']}:{SP['wdn']+1}]")
    A(f"s_lshr_b32 s83, s{J}, 2", "s_and_b32 s83, s83, 3", "s_lshl_b32 s83, s83, 17")
    srd(A, SRD_X, 84, 131072, off_sgpr='s83')
    for p in range(2):
        A(f"s_lshr_b32 s82, s{J}, 4", "s_lshl_b32 s82, s82, 19", f"s_and_b32 s83, s{J}, 3", "s_lshl_b32 s83, s83, 8")
        A(f"s_add_u32 s83, s83, {128*p}", "s_sub_u32 s86, 0x80000, s83", "s_add_u32 s83, s83, s82")
        srd(A, SRD_W[p], 'wm', 's86', off_sgpr='s83')
        A(f"s_mov_b32 s{S_SH[p]}, 10")
    dma_addr_setup(A, r, 2)
    read_addr_setup(A, r, [('wf', 0), ('wf', 1)])
    st = []
    a1, a2 = r['ab'][0], r['ab'][1]
    onesb = r['one2'][0]
    st.append(f"v_mov_b32 {onesb}, 0x3f803f80")
    st.append("WAITSTAT")
    for g2 in range(2):
        sm, sq = (a1[0], a1[1]) if g2 == 0 else (a2[0], a2[1])
        first = True
        for jj in range(8):
            q = g2 * 8 + jj
            for d in range(4):
                x = stv[q//4][4*(q%4) + d]
                st.append(f"v_dot2_f32_bf16 {sm}, {x}, {onesb}, {'0' if first else sm}")
                st.append(f"v_dot2_f32_bf16 {sq}, {x}, {x}, {'0' if first else sq}")
                first = False
    for mod in ["quad_perm:[1,0,3,2]", "quad_perm:[2,3,0,1]", "row_half_mirror"]:
        for x in (a1[0], a1[1], a2[0], a2[1]):
            st.append(f"v_add_f32_dpp {x}, {x}, {x} {mod} row_mask:0xf bank_mask:0xf")
    for g2, ab in enumerate((a1, a2)):
        st += [f"v_mul_f32 {ab[0]}, {hexf(1/512)}, {ab[0]}",
               f"v_mul_f32 {ab[1]}, {hexf(1/512)}, {ab[1]}",
               f"v_fma_f32 {ab[1]}, -{ab[0]}, {ab[0]}, {ab[1]}",
               f"v_max_f32 {ab[1]}, 0, {ab[1]}",
               f"v_add_f32 {ab[1]}, {hexf(1e-5)}, {ab[1]}",
               f"v_rsq_f32 {ab[1]}, {ab[1]}",
               f"v_mul_f32 {t1}, -{ab[0]}, {ab[1]}" if False else f"v_mul_f32 {t1}, {ab[0]}, {ab[1]}",
               f"v_sub_f32 {t1}, 0, {t1}",
               f"v_cmp_gt_u32 vcc, 125, {rowv[g2]}",
               f"v_cndmask_b32 {ab[0]}, 0, {ab[1]}, vcc",
               f"v_cndmask_b32 {ab[1]}, 0, {t1}, vcc",
               f"s_lshl_b32 s82, s{S_I}, 10", f"s_add_u32 s82, s82, {hex(XST)}",
               f"v_lshlrev_b32 {t0}, 3, {rowv[g2]}", f"v_add_u32 {t0}, s82, {t0}",
               f"v_and_b32 {t1}, 7, {l}", f"v_cmp_eq_u32 vcc, 0, {t1}", f"v_mov_b32 {t1}, {hex(OOB)}",
               f"v_cndmask_b32 {t0}, {t1}, {t0}, vcc",
               f"buffer_store_dwordx2 {ab}, {t0}, s[{SRD_WS}:{SRD_WS+3}], 0 offen sc1", "s_nop 1"]
    pub = [f"s_lshl_b32 s82, s{S_I}, 2", f"v_mov_b32 {t0}, s82", f"v_mov_b32 {t1}, 1",
           f"s_cmp_lg_u32 s{S_W}, 0", "s_cbranch_scc1 L_p1_nopub", "s_mov_b64 exec, 1",
           f"buffer_atomic_add {t1}, {t0}, s[{SRD_DBG}:{SRD_DBG+3}], 0 offen", "s_mov_b64 exec, -1", "L_p1_nopub:"]
    weights_loop(A, r, st, pub)
    A(f"s_lshr_b32 s82, s{J}, 4", "s_lshl_b32 s82, s82, 19", f"s_add_u32 s82, s82, {hex(WAMF)}")
    A(f"s_and_b32 s83, s{J}, 3", "s_lshl_b32 s83, s83, 2", f"s_lshl_b32 s84, s{S_WF}, 1", "s_add_u32 s83, s83, s84", "s_lshl_b32 s83, s83, 15")
    A("s_add_u32 s82, s82, s83")
    A(f"s_lshr_b32 s83, s{J}, 2", "s_and_b32 s83, s83, 3", "s_lshl_b32 s83, s83, 2", f"s_lshl_b32 s84, s{S_WT}, 1", "s_add_u32 s83, s83, s84", "s_lshl_b32 s83, s83, 11")
    A("s_add_u32 s82, s82, s83")
    A(f"v_lshlrev_b32 {r['vlin']}, 4, {l}")
    for k in range(2):
        for tb in range(2):
            d = pk[tb]
            A.ext(pack_lines(r['acc'][k][tb], d))
            A(f"s_add_u32 s{S_T}, s82, {k*32768 + tb*2048}")
            for hf in range(2):
                A(f"buffer_store_dwordx4 {d.sub(4*hf,4)}, {r['vlin']}, s[{SRD_WS}:{SRD_WS+3}], s{S_T} offen offset:{hf*1024} ; st:w")
    stamp_flush(A, 0, SRD_WS, r['ab'][0][0], r['ab'][0][1])
    A("L_EXIT_p1:")
    A("s_endpgm")
    return A, V.hi

def weights_loop(A, r, st, pub):
    vm = VM()
    for _ in range(16): vm.issue('stat')
    mid = lambda vm: [f"s_waitcnt vmcnt({vm.need('stat')})" if x == 'WAITSTAT' else x for x in st]
    pre = lambda vm: [f"s_waitcnt vmcnt({vm.need('mid')})", "s_barrier"] + list(pub)
    main_loop(A, r, 2, 2, False, False, {'mid': mid, 'pre': pre, 'vm': vm})
```

```python
from common import *
import common

S_W = 28; SRD_WS = 32; SRD_DW = 36
S_B, S_A0, S_B0, S_DST, S_STAT = 40, 41, 42, 43, 44
S_T = 48
S_M0 = 60; S_SA = 61; S_SB = 62; S_RO = 63

def gemm(A, r, extra_after=None):
    l16 = r['l16']
    def group(g):
        G = [[f"s_add_u32 s{S_SA}, s{S_A0}, s{S_RO}", f"s_add_u32 s{S_SB}, s{S_B0}, s{S_RO}", f"s_add_u32 m0, s{S_M0}, {g*4096}",
              f"s_add_u32 s{S_RO}, s{S_RO}, 4096", f"s_and_b32 s{S_RO}, s{S_RO}, 0x7fff"]]
        for j in range(4):
            G.append([f"buffer_load_dwordx4 {l16}, s[{SRD_WS}:{SRD_WS+3}], s{S_SA} offen offset:{j*1024} lds"])
            G.append([f"buffer_load_dwordx4 {R('a', 4*(4*g+j), 4)}, {l16}, s[{SRD_WS}:{SRD_WS+3}], s{S_SB} offen offset:{j*1024}"])
        return G
    def reads(ks):
        b = ks & 1
        return [f"ds_read_b128 {r['fa'][b][mb]}, {r['va'][mb >> 1]} offset:{(mb & 1)*32768 + ks*1024}" for mb in range(4)]
    vm = VM()
    def emit(lines, tag):
        for x in lines:
            A(x)
            if is_vmem(x): vm.issue(tag)
    stamp(A, 'setup')
    for g in range(2):
        for x in group(g): emit(x, g)
    stamp(A, 'issued')
    A(f"s_waitcnt vmcnt({vm.need(0)})", "s_barrier")
    stamp(A, 1)
    A.ext(reads(0))
    for g in range(8):
        nxt = group(g + 2) if g + 2 < 8 else []
        share = [nxt[0:3], nxt[3:5], nxt[5:7], nxt[7:9]]
        for q in range(4):
            ks = 4 * g + q; b = ks & 1
            M = [mfma(r['acc'][mb], r['fa'][b][mb], R('a', 4*ks, 4), '0' if ks == 0 else None) for mb in range(4)]
            A("s_waitcnt lgkmcnt(0)")
            rd = [[x] for x in reads(ks + 1)] if ks < 31 else []
            if q == 3 and g < 7:
                A(M[0])
                A(f"s_waitcnt vmcnt({vm.need(g + 1)})", "s_barrier")
                emit(spread(M[1:], rd + share[3]), g + 2)
            else:
                emit(spread(M, rd[:2] + share[q][:1] + rd[2:] + share[q][1:]), g + 2)
    stamp(A, 2)

def rot(A, sidx):
    if common.ROT == 4: A(f"s_and_b32 {sidx}, {sidx}, 3", f"s_lshl_b32 s{S_RO}, {sidx}, 13")
    elif common.ROT == 2: A(f"s_and_b32 {sidx}, {sidx}, 1", f"s_lshl_b32 s{S_RO}, {sidx}, 14")
    else: A(f"s_mov_b32 s{S_RO}, 0")

def store_frags(A, r, pk):
    for mb in range(4):
        d = pk[mb & 1]; acc = r['acc'][mb]
        for i in range(8): A(f"v_cvt_pk_bf16_f32 {d[i]}, {acc[2*i]}, {acc[2*i+1]}")
        if mb % 2 == 0: A(f"s_add_u32 s{S_T}, s{S_DST}, {mb*2048}")
        for hf in range(2):
            A(f"buffer_store_dwordx4 {d.sub(4*hf,4)}, {r['l16']}, s[{SRD_WS}:{SRD_WS+3}], s{S_T} offen offset:{(mb & 1)*2048 + hf*1024} ; st:p")

def build():
    A = KAsm('p2')
    V = Alloc('v', 1, 256)
    r = {}
    for n in ['lane', 'l16', 't0', 'tpad', 't1', 't2', 't3']: r[n] = V(1)
    base = V.mark()
    r['va'] = V(2, 1)
    r['acc'] = [V(16, 4) for _ in range(4)]
    r['fa'] = [[V(4) for _ in range(4)] for _ in range(2)]
    pk = [V(8, 4), V(8, 4)]
    mx = V(2); sm = V(4); st2 = V(2)
    hi_gemm = V.hi
    l = r['lane']; t0, t1, t2, t3 = r['t0'], r['t1'], r['t2'], r['t3']
    prologue(A, 256)
    stamp(A, 0)
    A(f"v_and_b32 {l}, 63, v0", f"v_lshrrev_b32 {t0}, 6, v0", f"v_lshlrev_b32 {r['l16']}, 4, {l}")
    A(f"v_readfirstlane_b32 s{S_W}, {t0}")
    A("s_and_b32 s48, s2, 7", "s_lshr_b32 s49, s2, 3", f"s_lshr_b32 s{S_B}, s48, 2")
    A("s_cmp_ge_u32 s49, 24", "s_cbranch_scc1 L_p2_conv")
    A(f"v_add_u32 {r['va'][1]}, 0x10000, {r['l16']}", f"v_mov_b32 {r['va'][0]}, {r['l16']}")
    A(f"s_lshl_b32 s{S_M0}, s{S_W}, 15")
    A("s_cmp_ge_u32 s49, 16", "s_cbranch_scc1 L_p2_vsetup")
    A("s_and_b32 s50, s48, 1", "s_lshl_b32 s50, s50, 2", "s_and_b32 s51, s49, 3", "s_add_u32 s50, s50, s51")
    A("s_lshr_b32 s51, s48, 1", "s_and_b32 s51, s51, 1", "s_lshl_b32 s51, s51, 2", "s_lshr_b32 s52, s49, 2", "s_add_u32 s51, s51, s52")
    A("s_add_u32 s53, s50, s51")
    rot(A, 's53')
    A(f"s_lshl_b32 s52, s{S_B}, 3", "s_add_u32 s53, s52, s51", "s_lshl_b32 s53, s53, 2", f"s_add_u32 s53, s53, s{S_W}", "s_lshl_b32 s53, s53, 15")
    A(f"s_add_u32 s{S_A0}, s53, {hex(KF)}")
    A("s_add_u32 s53, s52, s50", "s_lshl_b32 s53, s53, 2", f"s_add_u32 s53, s53, s{S_W}")
    A("s_lshl_b32 s54, s53, 15", f"s_add_u32 s{S_B0}, s54, {hex(QF)}")
    A("s_lshl_b32 s54, s53, 16", "s_lshl_b32 s55, s51, 13", "s_add_u32 s54, s54, s55", f"s_add_u32 s{S_DST}, s54, {hex(PF)}")
    A("s_add_u32 s54, s52, s51", "s_lshl_b32 s54, s54, 10", "s_lshl_b32 s55, s50, 7", "s_add_u32 s54, s54, s55", f"s_lshl_b32 s55, s{S_W}, 5", "s_add_u32 s54, s54, s55")
    A("s_lshl_b32 s54, s54, 3", f"s_add_u32 s{S_STAT}, s54, {hex(SM)}")
    A("s_waitcnt lgkmcnt(0)")
    stamp(A, 'karg')
    srd(A, SRD_WS, 'ws', WS_END)
    gemm(A, r)
    acc = r['acc']
    A(f"v_cmp_lt_u32 vcc, 31, {l}", f"v_mov_b32 {t0}, 0xff800000")
    for q in (13, 14, 15): A(f"v_cndmask_b32 {acc[3][q]}, {acc[3][q]}, {t0}, vcc")
    flat = [acc[mb][i] for mb in range(4) for i in range(16)]
    A(f"v_max3_f32 {mx[0]}, {flat[0]}, {flat[1]}, {flat[2]}", f"v_max3_f32 {mx[1]}, {flat[3]}, {flat[4]}, {flat[5]}")
    k = 6
    while k + 3 < 64:
        A(f"v_max3_f32 {mx[0]}, {mx[0]}, {flat[k]}, {flat[k+1]}", f"v_max3_f32 {mx[1]}, {mx[1]}, {flat[k+2]}, {flat[k+3]}")
        k += 4
    A(f"v_max3_f32 {mx[0]}, {mx[0]}, {flat[62]}, {flat[63]}")
    A(f"v_max_f32 {mx[0]}, {mx[0]}, {mx[1]}", f"v_mov_b32 {mx[1]}, {mx[0]}")
    A(f"v_permlane32_swap_b32 {mx[0]}, {mx[1]}", f"v_max_f32 {mx[0]}, {mx[0]}, {mx[1]}")
    for mb in range(4):
        a_ = acc[mb]
        for i in range(8):
            A(f"v_pk_add_f32 {a_.sub(2*i,2)}, {a_.sub(2*i,2)}, {mx} op_sel_hi:[1,0] neg_lo:[0,1] neg_hi:[0,1]")
        for i in range(16): A(f"v_exp_f32 {a_[i]}, {a_[i]}")
        for i in range(8):
            s_ = sm.sub(2*(i & 1), 2)
            if mb == 0 and i < 2: A(f"v_pk_add_f32 {s_}, {a_.sub(2*i,2)}, {a_.sub(2*(i+2),2)}")
            elif mb == 0 and i < 4: continue
            else: A(f"v_pk_add_f32 {s_}, {s_}, {a_.sub(2*i,2)}")
        d = pk[mb & 1]
        for i in range(8): A(f"v_cvt_pk_bf16_f32 {d[i]}, {a_[2*i]}, {a_[2*i+1]}")
        if mb % 2 == 0: A(f"s_add_u32 s{S_T}, s{S_DST}, {mb*2048}")
        for hf in range(2):
            A(f"buffer_store_dwordx4 {d.sub(4*hf,4)}, {r['l16']}, s[{SRD_WS}:{SRD_WS+3}], s{S_T} offen offset:{(mb & 1)*2048 + hf*1024} ; st:p")
    A(f"v_pk_add_f32 {sm.sub(0,2)}, {sm.sub(0,2)}, {sm.sub(2,2)}", f"v_add_f32 {sm[0]}, {sm[0]}, {sm[1]}", f"v_mov_b32 {sm[1]}, {sm[0]}")
    A(f"v_permlane32_swap_b32 {sm[0]}, {sm[1]}", f"v_add_f32 {st2[1]}, {sm[0]}, {sm[1]}", f"v_mov_b32 {st2[0]}, {mx[0]}")
    A(f"v_lshlrev_b32 {t0}, 3, {l}", f"v_mov_b32 {t1}, {hex(OOB)}", f"v_cmp_gt_u32 vcc, 32, {l}", f"v_cndmask_b32 {t0}, {t1}, {t0}, vcc")
    A(f"buffer_store_dwordx2 {st2}, {t0}, s[{SRD_WS}:{SRD_WS+3}], s{S_STAT} offen")
    stamp_flush(A, 1, SRD_WS, mx[0], mx[1])
    A("s_endpgm")
    A("L_p2_vsetup:")
    A("s_sub_u32 s49, s49, 16", "s_and_b32 s50, s48, 3", "s_lshl_b32 s50, s50, 1", "s_and_b32 s51, s49, 1", "s_add_u32 s50, s50, s51")
    A("s_lshr_b32 s51, s49, 1")
    A(f"s_lshl_b32 s52, s{S_B}, 3", "s_add_u32 s53, s52, s50", "s_lshl_b32 s53, s53, 2", f"s_add_u32 s53, s53, s{S_W}", "s_lshl_b32 s53, s53, 15")
    A(f"s_add_u32 s{S_A0}, s53, {hex(VF)}")
    A("s_lshl_b32 s53, s51, 2", f"s_add_u32 s53, s53, s{S_W}")
    A("s_lshl_b32 s54, s53, 15", f"s_add_u32 s{S_B0}, s54, {hex(WAMF)}")
    A(f"s_lshl_b32 s54, s{S_B}, 4", "s_add_u32 s54, s54, s53", "s_lshl_b32 s54, s54, 16", "s_lshl_b32 s55, s50, 13", "s_add_u32 s54, s54, s55")
    A(f"s_add_u32 s{S_DST}, s54, {hex(V2F)}")
    A("s_mov_b32 s53, s51")
    rot(A, 's53')
    A("s_waitcnt lgkmcnt(0)")
    stamp(A, 'karg')
    srd(A, SRD_WS, 'ws', WS_END)
    gemm(A, r)
    store_frags(A, r, pk)
    stamp_flush(A, 1, SRD_WS, mx[0], mx[1])
    A("s_endpgm")
    A("L_p2_conv:")
    V.reset(base)
    acc = V(64, 4); stg = V(32, 4); wp = V(62, 2); par = [V(4) for _ in range(4)]; gn = [V(2), V(2)]
    gr = V(8, 2); ab = V(2); sp = V(24, 2); vd = V(1); vl4 = V(1); vlw = V(1); vlr = V(1); msk = V(1); vpar = V(1); vu = V(1); vw = V(1); vuc = V(1); fin = [V(2), V(2)]
    SRDW = f"s[{SRD_WS}:{SRD_WS+3}]"
    WB = 32768
    LG, LW, LU, LP = 0, 16384, 24576, 131072
    S_G, S_U, S_T0, S_LB, S_GS = 56, 57, 58, 59, 64
    A("s_sub_u32 s49, s49, 24", "s_and_b32 s50, s48, 3", "s_lshl_b32 s50, s50, 1", "s_lshr_b32 s51, s49, 2", "s_add_u32 s50, s50, s51")
    A("s_and_b32 s51, s49, 3")
    A("s_mul_i32 s52, s50, 125", "s_lshl_b32 s53, s51, 5", "s_add_u32 s52, s52, s53")
    A(f"s_mul_i32 s53, s{S_B}, 1000", "s_add_u32 s53, s53, s52", f"s_mov_b32 s{S_GS}, s53", "s_lshl_b32 s53, s53, 10")
    A(f"s_add_u32 s{S_G}, s53, {hex(GB - 15*1024)}", f"s_add_u32 s{S_U}, s53, {hex(UB)}", f"s_mov_b32 s{S_T0}, s52")
    A(f"s_lshl_b32 s53, s{S_B}, 3", "s_add_u32 s53, s53, s50", "s_lshl_b32 s53, s53, 2", "s_add_u32 s53, s53, s51", "s_lshl_b32 s53, s53, 15")
    A(f"s_add_u32 s{S_DST}, s53, {hex(UCF)}")
    A(f"s_lshl_b32 s{S_LB}, s{S_W}, 15")
    A(f"v_lshrrev_b32 {t0}, 4, {l}", f"v_lshlrev_b32 {t0}, 10, {t0}", f"v_and_b32 {t1}, 15, {l}", f"v_lshl_add_u32 {vd}, {t1}, 4, {t0}")
    A(f"s_lshl_b32 s53, s{S_W}, 8", f"v_add_u32 {vd}, s53, {vd}")
    A(f"v_lshrrev_b32 {t0}, 2, {l}", f"s_lshl_b32 s53, s{S_W}, 4", f"v_add_u32 {t0}, s53, {t0}", f"v_and_b32 {t1}, 3, {l}")
    A(f"s_sub_u32 s53, s{S_GS}, 15", f"v_add_u32 {t2}, s53, {t0}", f"v_lshlrev_b32 {t2}, 3, {t2}", f"v_mul_u32_u24 {t3}, {3*16384}, {t1}", f"v_add_u32 {t2}, {t2}, {t3}")
    A("s_waitcnt lgkmcnt(0)")
    stamp(A, 'karg')
    srd(A, SRD_WS, 'ws', WS_END)
    srd(A, SRD_DW, 'dw', 31 * 1024)
    vm = VM()
    def stage(j, lds, srdreg, sbase):
        L = [f"s_add_u32 m0, s{S_LB}, {lds + j*1024}"]
        L.append(f"s_add_u32 s{S_SB}, s{sbase}, {j*4096}" if sbase is not None else f"s_mov_b32 s{S_SB}, {j*4096}")
        L.append(f"buffer_load_dwordx4 {vd}, s[{srdreg}:{srdreg+3}], s{S_SB} offen lds")
        return L
    for p in range(3):
        A(f"s_mov_b32 s53, {hex(GST + p*16384)}")
        A(f"buffer_load_dwordx2 {sp.sub(2*p,2)}, {t2}, {SRDW}, s53 offen"); vm.issue('st')
    for j in range(8):
        if j == 7: A("s_mov_b32 exec_hi, 0xffff")
        A.ext(stage(j, LW, SRD_DW, None)); vm.issue('w')
        if j == 7: A("s_mov_b32 exec_hi, -1")
    porder = [15]
    for d_ in range(1, 16): porder += [15 + d_, 15 - d_]
    porder = [p_ for p_ in porder if 0 <= p_ <= 30]
    jorder = []
    for p_ in porder:
        if (p_ >> 1) not in jorder: jorder.append(p_ >> 1)
    NG0 = 3
    for j in jorder[:NG0]: A.ext(stage(j, LG, SRD_WS, S_G)); vm.issue(('g', j))
    stamp(A, 'issued')
    A(f"s_waitcnt vmcnt({vm.need('st')})")
    A(f"v_pk_add_f32 {sp.sub(0,2)}, {sp.sub(0,2)}, {sp.sub(2,2)}", f"v_pk_add_f32 {sp.sub(0,2)}, {sp.sub(0,2)}, {sp.sub(4,2)}")
    for mod in ["quad_perm:[1,0,3,2]", "quad_perm:[2,3,0,1]"]:
        for x in (sp[0], sp[1]): A(f"v_add_f32_dpp {x}, {x}, {x} {mod} row_mask:0xf bank_mask:0xf")
    A(f"v_mul_f32 {ab[0]}, {hexf(1/512)}, {sp[0]}", f"v_mul_f32 {ab[1]}, {hexf(1/512)}, {sp[1]}",
      f"v_fma_f32 {ab[1]}, -{ab[0]}, {ab[0]}, {ab[1]}", f"v_max_f32 {ab[1]}, 0, {ab[1]}", f"v_add_f32 {ab[1]}, {hexf(1e-5)}, {ab[1]}",
      f"v_rsq_f32 {ab[1]}, {ab[1]}", f"v_mul_f32 {t2}, {ab[0]}, {ab[1]}", f"v_sub_f32 {t2}, 0, {t2}")
    A(f"s_sub_u32 s53, s{S_T0}, 15", f"v_add_u32 {t3}, s53, {t0}", f"v_cmp_gt_u32 vcc, 1000, {t3}")
    A(f"v_cndmask_b32 {ab[0]}, 0, {ab[1]}, vcc", f"v_cndmask_b32 {ab[1]}, 0, {t2}, vcc")
    A(f"v_lshlrev_b32 {t2}, 3, {t0}", f"v_add_u32 {t2}, {LP}, {t2}", f"v_cmp_eq_u32 vcc, 0, {t1}", "s_and_saveexec_b64 s[54:55], vcc")
    A(f"ds_write_b64 {t2}, {ab}", "s_mov_b64 exec, s[54:55]")
    A(f"v_mov_b32 {vpar}, {LP}")
    A(f"v_lshlrev_b32 {vl4}, 2, {l}", f"v_add_u32 {vl4}, s{S_LB}, {vl4}")
    UCB = LW - 256
    A(f"v_add_u32 {vw}, {LW}, {vl4}", f"v_add_u32 {vu}, {LU}, {vl4}", f"v_mov_b32 {msk}, 0xffff0000", f"v_add_u32 {vuc}, {UCB}, {vl4}")
    stamp(A, 'statdone')
    A(f"s_waitcnt vmcnt({vm.need('w')})")
    for i in range(0, 32, 2):
        A(f"ds_read2st64_b32 {stg.sub(i,2)}, {vw} offset0:{i} offset1:{i+1}")
        if i == 14: A("s_waitcnt lgkmcnt(2)")
    A("s_waitcnt lgkmcnt(0)", "s_barrier")
    def pread(n): return f"ds_read_b128 {par[n % 4]}, {vpar} offset:{porder[n]*16}"
    def gread(n): return f"ds_read2st64_b32 {gr.sub(2*(n % 4), 2)}, {vl4} offset0:{2*porder[n]} offset1:{2*porder[n]+1}"
    def uread(t): return f"ds_read2st64_b32 {stg.sub(t, 2)}, {vu} offset0:{t} offset1:{t+1}"
    for i in range(31):
        A(f"v_lshlrev_b32 {wp[2*i]}, 16, {stg[i]}", f"v_and_b32 {wp[2*i+1]}, {msk}, {stg[i]}")
    stamp(A, 1)
    NP = len(porder)
    gdone = set()
    def gwait(n):
        jn = porder[n] >> 1
        if jn not in gdone:
            A(f"s_waitcnt vmcnt({vm.need(('g', jn))})")
            for jj in jorder[:jorder.index(jn) + 1]: gdone.add(jj)
    ds = []
    for n in range(3):
        gwait(n)
        if n < 2: A(pread(n)); ds.append(('p', n))
        A(gread(n)); ds.append(('g', n))
    def need(tag): return sum(1 for t in ds[ds.index(tag) + 1:])
    def finish(t):
        g = fin[t & 1]; a_ = acc.sub(2*t, 2)
        return [f"v_lshlrev_b32 {g[0]}, 16, {stg[t]}", f"v_and_b32 {g[1]}, {msk}, {stg[t]}", f"v_pk_mul_f32 {a_}, {a_}, {g}",
                f"v_cvt_pk_bf16_f32 {stg[t]}, {a_[0]}, {a_[1]}", f"ds_write_b32 {vuc}, {stg[t]} offset:{t*264}"]
    late = [(('g', j), stage(j, LG, SRD_WS, S_G)) for j in jorder[NG0:]] + [('u', stage(j, LU, SRD_WS, S_U)) for j in range(8)]
    late = late[:5] + late[-8:] + late[5:-8]
    rows_done = set(); inited = set(); finished = set(); ureads = [t for t in range(0, 32, 2)]
    def done_at(t):
        return max(porder.index(s2 >> 1) for s2 in range(t, t + 31))
    ureads.sort(key=lambda t: min(done_at(t), done_at(t + 1)))
    uissued = {}; udone = False; pending_fin = []
    for n in range(NP):
        p = porder[n]
        stamp(A, f'cv{n}')
        for _ in range(2 if n < 8 else 1):
            if late:
                tag, code = late.pop(0); A.ext(code); vm.issue(tag)
        tags = [('g', n), ('p', n)] + [('u', t & ~1) for t in pending_fin]
        A(f"s_waitcnt lgkmcnt({min(min(need(x) for x in tags), 15)})")
        fl = []
        for t in pending_fin: fl += finish(t)
        nfin = list(pending_fin); pending_fin = []
        body = []
        for hh in range(2):
            s_ = 2 * p + hh
            g = gn[hh]; pr = par[n % 4].sub(2*hh, 2); raw = gr[2*(n % 4) + hh]
            body += [f"v_lshlrev_b32 {g[0]}, 16, {raw}", f"v_and_b32 {g[1]}, {msk}, {raw}",
                     f"v_pk_fma_f32 {g}, {g}, {pr}, {pr} op_sel:[0,0,1] op_sel_hi:[1,0,1]"]
        A.ext(body)
        if n + 2 < NP: A(pread(n + 2)); ds.append(('p', n + 2))
        if n + 3 < NP:
            gwait(n + 3); A(gread(n + 3)); ds.append(('g', n + 3))
        while ureads and min(done_at(ureads[0]), done_at(ureads[0] + 1)) <= n + 2:
            if not udone: A(f"s_waitcnt vmcnt({vm.need('u')})"); udone = True
            t = ureads.pop(0); A(uread(t)); ds.append(('u', t))
        body = []
        for hh in range(2):
            s_ = 2 * p + hh; g = gn[hh]
            for t in range(max(0, s_ - 30), min(31, s_) + 1):
                i = s_ - t; a_ = acc.sub(2*t, 2); w_ = wp.sub(2*i, 2)
                if t not in inited: body.append(f"v_pk_mul_f32 {a_}, {g}, {w_}"); inited.add(t)
                else: body.append(f"v_pk_fma_f32 {a_}, {g}, {w_}, {a_}")
            rows_done.add(s_)
        if fl:
            A.ext(interleave(body, fl) if len(body) >= 2 else body + fl)
            for t in nfin: ds.append(('w', t))
        else: A.ext(body)
        for t in range(32):
            if t not in finished and all(s2 in rows_done for s2 in range(t, t + 31)):
                finished.add(t); pending_fin.append(t)
    assert not late and not ureads
    A("s_waitcnt lgkmcnt(0)")
    for t in pending_fin: A.ext(finish(t))
    assert len(finished) == 32
    stamp(A, 2)
    A(f"v_and_b32 {t0}, 31, {l}", f"v_mul_u32_u24 {t0}, 264, {t0}", f"v_lshrrev_b32 {t1}, 5, {l}", f"v_lshl_add_u32 {t0}, {t1}, 3, {t0}")
    A(f"s_add_u32 s53, s{S_LB}, {UCB}", f"v_add_u32 {vlr}, s53, {t0}")
    A("s_waitcnt lgkmcnt(0)")
    for k in range(8):
        A(f"ds_read2_b64 {wp.sub(4*k,4)}, {vlr} offset0:{4*k} offset1:{4*k+2}")
    A(f"s_lshl_b32 s53, s{S_W}, 13", f"s_add_u32 s{S_DST}, s{S_DST}, s53")
    for k in range(8):
        A(f"s_waitcnt lgkmcnt({7-k})")
        if k % 4 == 0: A(f"s_add_u32 s{S_T}, s{S_DST}, {k*1024}")
        A(f"buffer_store_dwordx4 {wp.sub(4*k,4)}, {r['l16']}, {SRDW}, s{S_T} offen offset:{(k % 4)*1024} ; st:uc")
    stamp_flush(A, 1, SRD_WS, ab[0], ab[1])
    A("L_EXIT_p2:")
    A("s_endpgm")
    return A, max(V.hi, hi_gemm), 128
```

```python
from common import *
import common

LDS = 163840
S_W = 28; SRD_WS = 32; SRD_X = 36; SRD_O = 40
S_WD, S_WQ, S_SRC1, S_SRC2, S_M0, S_SO, S_B = 44, 45, 46, 47, 48, 49, 50
S_T = 52
NST = 5; NCH = 12

def build():
    A = KAsm('p3')
    V = Alloc('v', 1, 256)
    r = {}
    for n in ['lane', 'l16', 't0', 't1', 't2', 't3', 'vx', 'vo', 'mg', 'li']: r[n] = V(1)
    va = V(3, 1); vb = V(3, 1)
    stt = V(16, 2)
    xr = V(8, 2)
    acc = V(16, 4); accc = V(16, 4); tmp = [V(16, 4), V(16, 4)]
    fa = [V(4), V(4)]; fb = [V(4), V(4)]
    pk = V(8, 4); xf = V(16, 2)
    l = r['lane']; t0, t1, t2, t3 = r['t0'], r['t1'], r['t2'], r['t3']
    WS = f"s[{SRD_WS}:{SRD_WS+3}]"
    prologue(A, 256)
    stamp(A, 0)
    A(f"v_and_b32 {l}, 63, v0", f"v_lshrrev_b32 {t0}, 6, v0", f"v_lshlrev_b32 {r['l16']}, 4, {l}")
    A(f"v_readfirstlane_b32 s{S_W}, {t0}")
    A("s_and_b32 s52, s2, 7", "s_lshr_b32 s53, s2, 3", f"s_lshr_b32 s{S_B}, s52, 2")
    A("s_and_b32 s54, s52, 3", "s_lshl_b32 s54, s54, 2", "s_and_b32 s55, s53, 3", "s_add_u32 s54, s54, s55")
    A("s_lshr_b32 s55, s53, 2")
    A(f"s_and_b32 s{S_WD}, s{S_W}, 1", f"s_lshr_b32 s{S_WQ}, s{S_W}, 1")
    A(f"s_cmp_ge_u32 s{S_W}, 2", "s_cbranch_scc1 L_p3_bsrc")
    A("s_lshl_b32 s56, s55, 1", f"s_add_u32 s56, s56, s{S_W}")
    A(f"s_lshl_b32 s57, s{S_B}, 4", "s_add_u32 s57, s57, s56", "s_lshl_b32 s57, s57, 16", f"s_add_u32 s{S_SRC1}, s57, {hex(V2F)}")
    A("s_lshl_b32 s57, s56, 15", f"s_add_u32 s{S_SRC2}, s57, {hex(WDMF)}")
    A("s_branch L_p3_srcdone")
    A("L_p3_bsrc:")
    A("s_lshl_b32 s56, s54, 1", f"s_add_u32 s56, s56, s{S_W}", "s_sub_u32 s56, s56, 2", f"s_lshl_b32 s57, s{S_B}, 5", "s_add_u32 s56, s56, s57")
    A("s_lshl_b32 s57, s56, 16", f"s_add_u32 s{S_SRC1}, s57, {hex(PF)}")
    A("s_lshl_b32 s57, s56, 15", f"s_add_u32 s{S_SRC2}, s57, {hex(UCF)}")
    A("L_p3_srcdone:")
    A(f"s_lshl_b32 s{S_M0}, s{S_W}, 13")
    A("s_waitcnt lgkmcnt(0)")
    stamp(A, 'karg')
    srd(A, SRD_WS, 'ws', WS_END)
    def dma(c):
        st = c % NST
        src, off = (S_SRC1, c * 8192) if c < 8 else (S_SRC2, (c - 8) * 8192)
        G = []
        for hf in range(2):
            G.append([f"s_add_u32 s{S_SO}, s{src}, {off + hf*4096}", f"s_add_u32 m0, s{S_M0}, {st*32768 + hf*4096}"])
            for j in range(4):
                G.append([f"buffer_load_dwordx4 {r['l16']}, {WS}, s{S_SO} offen offset:{j*1024} lds"])
        return G
    vm = VM()
    def emit(lines, tag):
        for x in lines:
            A(x)
            if is_vmem(x): vm.issue(tag)
    for c in range(2):
        for g in dma(c): emit(g, c)
    stamp(A, 'issued')
    srd(A, SRD_X, 'x', XBYTES); srd(A, SRD_O, 'out', XBYTES)
    A(f"s_lshl_b32 s56, s{S_B}, 13", "s_lshl_b32 s57, s54, 6", "s_add_u32 s56, s56, s57", f"s_lshl_b32 s57, s{S_WQ}, 5", "s_add_u32 s56, s56, s57")
    A("s_lshl_b32 s56, s56, 3", f"s_add_u32 s56, s56, {hex(SM)}")
    A(f"v_and_b32 {t0}, 31, {l}", f"v_lshlrev_b32 {t1}, 3, {t0}")
    for j in range(8):
        A(f"s_add_u32 s57, s56, {j*8192}")
        A(f"buffer_load_dwordx2 {stt.sub(2*j,2)}, {t1}, {WS}, s57 offen"); vm.issue('stat')
    A("s_and_b32 s56, s54, 1", "s_lshl_b32 s56, s56, 6", f"s_lshl_b32 s57, s{S_WQ}, 5", "s_add_u32 s56, s56, s57", f"v_add_u32 {t0}, s56, {t0}")
    A(f"s_lshl_b32 s56, s{S_B}, 3", "s_lshr_b32 s57, s54, 1", "s_add_u32 s56, s56, s57", "s_mul_i32 s56, s56, 125")
    A(f"v_add_u32 {t1}, s56, {t0}", f"v_lshlrev_b32 {t1}, 10, {t1}")
    A("s_lshl_b32 s56, s55, 7", f"s_lshl_b32 s57, s{S_WD}, 6", "s_add_u32 s56, s56, s57", f"v_add_u32 {t1}, s56, {t1}")
    A(f"v_lshrrev_b32 {t2}, 5, {l}")
    A(f"v_lshl_add_u32 {r['vx']}, {t2}, 3, {t1}", f"v_lshl_add_u32 {r['vo']}, {t2}, 4, {t1}")
    A(f"v_cmp_gt_u32 vcc, 125, {t0}", f"v_mov_b32 {t3}, {hex(OOB)}")
    A(f"v_cndmask_b32 {r['vx']}, {t3}, {r['vx']}, vcc", f"v_cndmask_b32 {r['vo']}, {t3}, {r['vo']}, vcc")
    A(f"s_lshl_b32 s56, s{S_WD}, 13", f"s_lshl_b32 s57, s{S_WQ}, 13", "s_add_u32 s57, s57, 16384")
    for k in range(3):
        A(f"s_add_u32 s58, s56, {k*65536}", f"v_add_u32 {va[k]}, s58, {r['l16']}")
        A(f"s_add_u32 s58, s57, {k*65536}", f"v_add_u32 {vb[k]}, s58, {r['l16']}")
    mg, li = r['mg'], r['li']
    scales = [f"v_max3_f32 {mg}, {stt[0]}, {stt[2]}, {stt[4]}", f"v_max3_f32 {mg}, {mg}, {stt[6]}, {stt[8]}",
              f"v_max3_f32 {mg}, {mg}, {stt[10]}, {stt[12]}", f"v_max_f32 {mg}, {mg}, {stt[14]}"]
    scales += [f"v_sub_f32 {stt[2*j]}, {stt[2*j]}, {mg}" for j in range(8)]
    scales += [f"v_exp_f32 {stt[2*j]}, {stt[2*j]}" for j in range(8)]
    scales += [f"v_mul_f32 {li}, {stt[0]}, {stt[1]}"] + [f"v_fmac_f32 {li}, {stt[2*j]}, {stt[2*j+1]}" for j in range(1, 8)]
    scales += [f"v_rcp_f32 {li}, {li}", "s_nop 0"] + [f"v_mul_f32 {stt[2*j]}, {stt[2*j]}, {li}" for j in range(8)]
    xloads = [f"buffer_load_dwordx2 {xr.sub(2*q,2)}, {r['vx']}, s[{SRD_X}:{SRD_X+3}], 0 offen offset:{16*q}" for q in range(4)]
    def reads(g):
        c, k = g >> 3, g & 7; st = c % NST; b = g & 1
        off = (st & 1) * 32768 + k * 1024
        return [f"ds_read_b128 {fa[b]}, {va[st >> 1]} offset:{off}", f"ds_read_b128 {fb[b]}, {vb[st >> 1]} offset:{off}"]
    def fold(c):
        if c == 0: return [f"v_mul_f32 {acc[i]}, {stt[0]}, {tmp[0][i]}" for i in range(16)]
        return [f"v_fmac_f32 {acc[i]}, {stt[2*c]}, {tmp[c & 1][i]}" for i in range(16)]
    A(f"s_waitcnt vmcnt({vm.need(0)})", "s_barrier")
    stamp(A, 1)
    A.ext(reads(0))
    pfold = []
    for c in range(NCH):
        nxt = dma(c + 2) if c + 2 < NCH else []
        share = [nxt[0:2], nxt[2:3], nxt[3:4], nxt[4:5], nxt[5:7], nxt[7:8], nxt[8:9], nxt[9:10]] if nxt else [[]] * 8
        for k in range(8):
            g = 8 * c + k; b = g & 1
            dst = tmp[c & 1] if c < 8 else accc
            first = (k == 0 and c <= 8)
            M = mfma(dst, fa[b], fb[b], '0' if first else None)
            A("s_waitcnt lgkmcnt(0)")
            rd = reads(g + 1) if g + 1 < 8 * NCH else []
            A(M)
            if k == 7 and c < NCH - 1:
                A(f"s_waitcnt vmcnt({vm.need(c + 1)})", "s_barrier")
            A.ext(rd)
            for grp in share[k]: emit(grp, c + 2)
            if c == 1 and k == 0: A(f"s_waitcnt vmcnt({vm.need('stat')})")
            if c == 1 and k < 3:
                n3 = (len(scales) + 2) // 3
                A.ext(scales[k*n3:(k+1)*n3])
            if c == 10 and k < 4: emit([xloads[k]], 'x')
            if k >= 3 and pfold:
                A.ext(pfold[:4]); pfold = pfold[4:]
        if c < 8: pfold = fold(c)
    assert not pfold
    stamp(A, 2)
    A(f"s_waitcnt vmcnt({vm.need('x')})")
    for i in range(8):
        A(f"v_lshlrev_b32 {xf[2*i]}, 16, {xr[i]}", f"v_and_b32 {xf[2*i+1]}, 0xffff0000, {xr[i]}")
    for i in range(8): A(f"v_pk_add_f32 {xf.sub(2*i,2)}, {xf.sub(2*i,2)}, {acc.sub(2*i,2)}")
    for i in range(8): A(f"v_pk_add_f32 {xf.sub(2*i,2)}, {xf.sub(2*i,2)}, {accc.sub(2*i,2)}")
    for i in range(8): A(f"v_cvt_pk_bf16_f32 {pk[i]}, {xf[2*i]}, {xf[2*i+1]}")
    for q in range(2):
        A(f"v_permlane32_swap_b32 {pk[4*q]}, {pk[4*q+2]}", f"v_permlane32_swap_b32 {pk[4*q+1]}, {pk[4*q+3]}")
    for q in range(2):
        A(f"buffer_store_dwordx4 {pk.sub(4*q,4)}, {r['vo']}, s[{SRD_O}:{SRD_O+3}], 0 offen offset:{32*q} ; st:out")
    stamp_flush(A, 2, SRD_WS, stt[0], stt[1])
    if common.DIAG:
        A("s_mov_b64 exec, -1", "s_waitcnt vmcnt(0)", "s_cmp_lg_u32 s2, 0", "s_cbranch_scc1 L_EXIT_p3", "s_cmp_lg_u32 s28, 0", "s_cbranch_scc1 L_EXIT_p3")
        srd(A, SRD_X, 'dbg', 256)
        A(f"v_lshrrev_b32 {t0}, 2, {l}", f"v_lshlrev_b32 {t0}, 13, {t0}", f"v_and_b32 {t1}, 3, {l}", f"v_lshl_add_u32 {t0}, {t1}, 3, {t0}")
        A(f"v_add_u32 {t0}, {hex(STAMP)}, {t0}", f"v_cmp_gt_u32 vcc, 12, {l}", f"v_mov_b32 {t1}, {hex(OOB)}", f"v_cndmask_b32 {t0}, {t1}, {t0}, vcc")
        A(f"buffer_load_dword {t2}, {t0}, {WS}, 0 offen sc1", f"v_lshlrev_b32 {t1}, 2, {l}", "s_waitcnt vmcnt(0)")
        A(f"buffer_store_dword {t2}, {t1}, s[{SRD_X}:{SRD_X+3}], 0 offen", "s_waitcnt vmcnt(0)")
    A("L_EXIT_p3:")
    A("s_endpgm")
    return A, V.hi, 0
```

```python
import sys
import os; sys.path.insert(0, os.path.dirname(os.path.abspath(__file__)))
import common
if 'diag' in sys.argv: common.DIAG = True
for a_ in sys.argv:
    if a_.startswith('rot1='): common.ROT1 = tuple(int(x) for x in a_[5:].split(','))
    if a_.startswith('wg='): common.DIAGWG = int(a_[3:])
    if a_.startswith('pd='): common.PD1, common.PD2, common.PD3 = [int(x) for x in a_[3:].split(',')]
    if a_ == 'nowarm': common.WARMDW = False
    if a_ == 'nocode': common.WARMCODE = False
    if a_ == 'noself': common.WARMSELF = False
    if a_.startswith('rot='): common.ROT = int(a_[4:])
    if a_.startswith('points='): common.POINTS = a_[7:].split(',')
import build, p1, p2
for a_ in sys.argv:
    if a_ == 'noendwait': build.ENDWAIT = False
    if a_.startswith('fake16='): build.FAKE16 = tuple(x + '_kernel' for x in a_[7:].split(','))
    if a_.startswith('st='):
        for kv in a_[3:].split(','):
            k_, v_ = kv.split(':'); build.STMAP[k_] = v_.replace('_', ' ')
parts = []
A1, h1 = p1.build(); parts.append(('p1_kernel', (A1, h1, 0)))
A2, h2, ag = p2.build(); parts.append(('p2_kernel', (A2, h2, ag)))
try:
    import p3
    A3, h3, ag3 = p3.build(); parts.append(('p3_kernel', (A3, h3, ag3)))
except ImportError:
    pass
hdr = open('standalone__conformer_family_branchformer__speech.s.ref').read().split('; Override launch')[0]
launch = "; @launch kernel=p1_kernel grid=(256,1,1) block=(256,1,1) lds=163840\n; @launch kernel=p2_kernel grid=(256,1,1) block=(256,1,1) lds=133120\n; @launch kernel=p3_kernel grid=(256,1,1) block=(256,1,1) lds=%d\n" % (getattr(sys.modules.get('p3'), 'LDS', 0))
src = build.build(parts, hdr + launch)
out = sys.argv[1] if len(sys.argv) > 1 else 'all.s'
open(out, 'w').write(src)
```

```python
from asmlib import *

KA = dict(x=0, wq=8, wk=16, wv=24, wao=32, wup=40, dw=48, wdn=56, wm=64, out=72, dbg=80, ws=88)
SP = dict(x=4, wq=6, wk=8, wv=10, wao=12, wup=14, dw=16, wdn=18, wm=20, out=22, dbg=24, ws=26)

QF   = 0x000000
KF   = 0x200000
VF   = 0x400000
UB   = 0x600000
GB   = UB + 2000 * 1024
WAMF = GB + 2000 * 1024
WDMF = WAMF + 0x80000
XST  = 0xB00000
GST  = 0xB10000
PF   = 0xC00000
V2F  = 0x1000000
UCF  = 0x1200000
SM   = 0x1400000
WS_END = 0x1440000
OOB  = 0x7ff00000

XBYTES = 2000 * 1024
LOG2E = 1.4426950408889634
QSCALE = 512 ** -0.5 * LOG2E

import struct
def f2u(x): return struct.unpack('<I', struct.pack('<f', x))[0]
def hexf(x): return hex(f2u(x))

def prologue(A, nwg):
    A(f"s_cmp_ge_u32 s2, {nwg}")
    A("s_cbranch_scc1 L_EXIT_%s" % A.tag)
    A("s_load_dwordx16 s[4:19], s[0:1], 0")
    A("s_load_dwordx8 s[20:27], s[0:1], 64")

def srd(A, dst, ptr, size, off_sgpr=None, off_imm=0):
    p = SP[ptr] if isinstance(ptr, str) else ptr
    if off_sgpr is None and off_imm == 0:
        A(f"s_mov_b32 s{dst}, s{p}")
        A(f"s_and_b32 s{dst+1}, s{p+1}, 0xffff")
    else:
        if off_sgpr is not None:
            A(f"s_add_u32 s{dst}, s{p}, {off_sgpr}")
            A(f"s_addc_u32 s{dst+1}, s{p+1}, 0")
            if off_imm:
                A(f"s_add_u32 s{dst}, s{dst}, {hex(off_imm)}")
                A(f"s_addc_u32 s{dst+1}, s{dst+1}, 0")
        else:
            A(f"s_add_u32 s{dst}, s{p}, {hex(off_imm)}")
            A(f"s_addc_u32 s{dst+1}, s{p+1}, 0")
        A(f"s_and_b32 s{dst+1}, s{dst+1}, 0xffff")
    A(f"s_mov_b32 s{dst+2}, {hex(size) if isinstance(size, int) else size}")
    A(f"s_mov_b32 s{dst+3}, 0x20000")

def mfma(d, a_, b_, c=None):
    return f"v_mfma_f32_32x32x16_bf16 {d}, {a_}, {b_}, {d if c is None else c}"

class KAsm(Asm):
    def __init__(self, tag): super().__init__(); self.tag = tag; self._n = 0
    def label(self, base):
        self._n += 1
        return f"L_{self.tag}_{base}_{self._n}"

STAMP = 0x1420000
DIAG = False
ROT1 = None
DIAGWG = 0
PD1, PD2, PD3 = 2, 2, 2
P1_BYTES, P2_BYTES, P3_BYTES = 21000, 21000, 5700
WARMDW = True
ROT = 0
PROLOG = False
POINTS = ['entry', 'b0', 'mainend', 'end']
def stamp(A, name):
    if isinstance(name, int): name = ['entry', 'b0', 'mainend', 'end'][name]
    if DIAG and name in POINTS:
        k = POINTS.index(name)
        A("s_memrealtime s[92:93]", "s_waitcnt lgkmcnt(0)", f"s_mov_b32 s{94+2*k}, s92")
        A("s_memtime s[92:93]", "s_waitcnt lgkmcnt(0)", f"s_mov_b32 s{95+2*k}, s92")
def stamp_flush(A, kidx, srd_ws, vt0, vt1, novm=False):
    if not DIAG: return
    lab = A.label('nostamp')
    if not novm: A("s_waitcnt vmcnt(0)")
    stamp(A, 3)
    A("s_cmp_lg_u32 s28, 0", f"s_cbranch_scc1 {lab}")
    A(f"s_lshl_b32 s93, s2, 5", f"s_add_u32 s93, s93, {hex(STAMP + kidx*8192)}")
    A("s_mov_b64 exec, 1")
    for k in range(4):
        A(f"v_mov_b32 {vt0}, s{94+2*k}", f"v_mov_b32 {vt1}, s{95+2*k}", f"v_mov_b32 v0, 0")
        A(f"buffer_store_dwordx2 v[{vt0.idx}:{vt0.idx+1}], v0, s[{srd_ws}:{srd_ws+3}], s93 offen offset:{8*k}", "s_nop 1")
    A(f"{lab}:")

WARMCODE = True
WARMSELF = True
def warm_code(A, target, end, nbytes, sb, vtid16, vtmp, dst, back=False):
    if not WARMCODE: return
    lab = A.label('pc')
    A(f"s_getpc_b64 s[{sb}:{sb+1}]")
    A(f"{lab}:")
    if back: A(f"s_sub_u32 s{sb}, s{sb}, {lab}-{target}", f"s_subb_u32 s{sb+1}, s{sb+1}, 0")
    else: A(f"s_add_u32 s{sb}, s{sb}, {target}-{lab}", f"s_addc_u32 s{sb+1}, s{sb+1}, 0")
    for j in range((nbytes + 4095) // 4096):
        A(f"v_add_u32 {vtmp}, {j*4096}, {vtid16}")
        A(f"v_min_u32 {vtmp}, {end}-{target}-16, {vtmp}")
        A(f"global_load_dwordx4 {dst}, {vtmp}, s[{sb}:{sb+1}]")
```

```python
from common import *
import common

S_W, S_WT, S_WF, S_T0 = 28, 29, 30, 31
SRD_X = 32; SRD_W = [36, 40, 44]; SRD_WS = 48; SRD_DBG = 52
S_KW = [56, 57, 58]; S_KSTEP = [59, 60, 61]; S_KX = 62; S_M0X = 63; S_M0W = 64
S_XM = 66
S_I = 68; S_CT = 69
S_DSTA = 70; S_DSTB = 71; S_SCA = 72
S_SH = [73, 74, 75]
S_T = 80
S_C2 = 90
S_CNT = 79
S_GST = 76

XREG, WREG = 0, 65536
XST_B, WST_B = 16384, 24576

def lane_setup(A, V, r):
    A(f"v_and_b32 {r['lane']}, 63, v0")
    A(f"v_lshrrev_b32 {r['t0']}, 6, v0")
    A("s_nop 0")
    A(f"v_readfirstlane_b32 s{S_W}, {r['t0']}")
    A(f"s_lshr_b32 s{S_WT}, s{S_W}, 1")
    A(f"s_and_b32 s{S_WF}, s{S_W}, 1")

def dma_addr_setup(A, r, nslots):
    l = r['lane']; t0, t1, t2, t3 = r['t0'], r['t1'], r['t2'], r['t3']
    A(f"v_lshrrev_b32 {t0}, 3, {l}")
    A(f"v_lshrrev_b32 {t1}, 4, {l}")
    A(f"v_and_b32 {t2}, 7, {l}")
    A(f"v_xor_b32 {t3}, {t2}, {t1}")
    A(f"s_lshl_b32 s{S_T}, s{S_W}, 5")
    A(f"v_add_u32 {t0}, s{S_T}, {t0}")
    for j in range(4):
        d = r['vx_dma'][j]
        A(f"v_add_u32 {d}, {8*j}, {t0}")
        A(f"v_lshlrev_b32 {d}, 10, {d}")
        if j % 2 == 0: A(f"v_lshl_add_u32 {d}, {t3}, 4, {d}")
        else:
            A(f"v_xor_b32 {t1}, 4, {t3}")
            A(f"v_lshl_add_u32 {d}, {t1}, 4, {d}")
    A(f"v_lshrrev_b32 {t0}, 3, {l}")
    A(f"s_lshl_b32 s{S_T}, s{S_W}, 4")
    A(f"v_add_u32 {t0}, s{S_T}, {t0}")
    A(f"v_lshrrev_b32 {t1}, 4, {l}")
    A(f"v_and_b32 {t1}, 1, {t1}")
    A(f"v_lshlrev_b32 {t1}, 2, {t1}")
    A(f"v_xor_b32 {t1}, {t1}, {t2}")
    A(f"v_lshlrev_b32 {t1}, 4, {t1}")
    for p in range(nslots):
        for j in range(2):
            d = r['vw_dma'][2*p+j]
            A(f"v_add_u32 {d}, {8*j}, {t0}")
            A(f"v_lshlrev_b32 {d}, s{S_SH[p]}, {d}")
            A(f"v_add_u32 {d}, {d}, {t1}")
    A(f"s_lshl_b32 s{S_M0X}, s{S_W}, 12")
    A(f"s_lshl_b32 s{S_M0W}, s{S_W}, 11")
    A(f"s_add_u32 s{S_M0W}, s{S_M0W}, {WREG}")
    for p in range(nslots):
        A(f"s_mov_b32 s{S_KW[p]}, 0")
        A(f"s_lshl_b32 s{S_KSTEP[p]}, 64, s{S_SH[p]}")

def read_addr_setup(A, r, frs):
    l = r['lane']; t0, t1, t2, t3 = r['t0'], r['t1'], r['t2'], r['t3']
    A(f"v_and_b32 {t0}, 31, {l}")
    A(f"v_lshrrev_b32 {t1}, 1, {t0}")
    A(f"v_and_b32 {t1}, 7, {t1}")
    A(f"v_lshrrev_b32 {t2}, 5, {l}")
    A(f"s_lshl_b32 s{S_T}, s{S_WT}, 6")
    A(f"v_add_u32 {t0}, s{S_T}, {t0}")
    A(f"v_lshlrev_b32 {t0}, 7, {t0}")
    for s_ in range(4):
        d = r['vx_rd'][s_]
        A(f"v_or_b32 {t3}, {2*s_}, {t2}")
        A(f"v_xor_b32 {t3}, {t3}, {t1}")
        A(f"v_lshl_add_u32 {d}, {t3}, 4, {t0}")
    A(f"v_and_b32 {t0}, 15, {l}")
    A(f"v_lshrrev_b32 {t1}, 2, {t0}")
    A(f"v_lshl_add_u32 {t1}, {t2}, 3, {t1}")
    A(f"v_lshlrev_b32 {t1}, 7, {t1}")
    A(f"v_and_b32 {t3}, 1, {t0}")
    A(f"v_lshl_add_u32 {t1}, {t3}, 3, {t1}")
    A(f"v_bfe_u32 {t3}, {l}, 4, 1")
    A(f"v_lshlrev_b32 {t3}, 1, {t3}")
    A(f"v_bfe_u32 {t2}, {t0}, 1, 1")
    A(f"v_or_b32 {t3}, {t3}, {t2}")
    A(f"v_bfe_u32 {t2}, {t0}, 3, 1")
    A(f"v_lshlrev_b32 {t2}, 2, {t2}")
    A(f"v_xor_b32 {t3}, {t3}, {t2}")
    for k, (slot, e) in enumerate(frs):
        for half in range(2):
            d = r['vw_rd'][2*k+half]
            if e == 'wf':
                A(f"s_lshl_b32 s{S_T}, s{S_WF}, 2")
                A(f"v_xor_b32 {d}, s{S_T}, {t3}")
            else:
                A(f"v_xor_b32 {d}, {4*e}, {t3}")
            A(f"v_lshl_add_u32 {d}, {d}, 4, {t1}")
            if slot == 'wf':
                A(f"s_lshl_b32 s{S_T}, s{S_WF}, 13")
                A(f"s_add_u32 s{S_T}, s{S_T}, {WREG + half * 2 * WST_B}")
                A(f"v_add_u32 {d}, s{S_T}, {d}")
            else:
                A(f"v_add_u32 {d}, {WREG + half * 2 * WST_B + slot * 8192}, {d}")

def dma_chunk(r, c, nslots, masked):
    st = c & 3; G = []
    G.append([f"s_mov_b32 s{S_KX}, {c*128}"])
    for j in range(4):
        g = [f"s_add_u32 m0, s{S_M0X}, {st*XST_B + j*1024}"]
        if j == 3 and masked: g.append(f"s_mov_b64 exec, s[{S_XM}:{S_XM+1}]")
        else: g.append("s_nop 0")
        g.append(f"buffer_load_dwordx4 {r['vx_dma'][j]}, s[{SRD_X}:{SRD_X+3}], s{S_KX} offen lds")
        if j == 3 and masked: g.append("s_mov_b64 exec, -1")
        G.append(g)
    for p in range(nslots):
        for j in range(2):
            G.append([f"s_add_u32 m0, s{S_M0W}, {st*WST_B + p*8192 + j*1024}", "s_nop 0",
                      f"buffer_load_dwordx4 {r['vw_dma'][2*p+j]}, s[{SRD_W[p]}:{SRD_W[p]+3}], s{S_KW[p]} offen lds"])
        G.append([f"s_add_u32 s{S_KW[p]}, s{S_KW[p]}, s{S_KSTEP[p]}"])
    return G

def frag_reads(r, g, nf):
    c, s_ = g >> 2, g & 3; st = c & 3; b = g & 1
    L = [f"ds_read_b128 {r['fx'][b][0]}, {r['vx_rd'][s_]} offset:{st*XST_B}"]
    for k in range(nf):
        for u in range(2):
            off = (st & 1) * WST_B + (16*s_ + 4*u) * 128
            L.append(f"ds_read_b64_tr_b16 {r['fw'][b][k].sub(2*u, 2)}, {r['vw_rd'][2*k + (st >> 1)]} offset:{off}")
        if k == 0:
            L.append(f"ds_read_b128 {r['fx'][b][1]}, {r['vx_rd'][s_]} offset:{st*XST_B + 4096}")
    return L

def main_loop(A, r, nf, nslots, masked, w_is_a, hooks):
    vm = hooks.get('vm') or VM()
    stamp(A, 'setup')
    def emit(lines, tag=None):
        for x in lines:
            A(x)
            if is_vmem(x): vm.issue(tag)
    for c in range(2):
        for g in dma_chunk(r, c, nslots, masked): emit(g, ('c', c))
        if c == 0 and 'mid' in hooks: emit(hooks['mid'](vm), 'mid')
    stamp(A, 'issued')
    if 'pre' in hooks: emit(hooks['pre'](vm), 'cond')
    A(f"s_waitcnt vmcnt({vm.need(('c', 0))}) lgkmcnt(0)")
    A("s_barrier")
    stamp(A, 1)
    A.ext(frag_reads(r, 0, nf))
    for c in range(8):
        dm = dma_chunk(r, c + 2, nslots, masked) if c + 2 < 8 else []
        extra = [[x] for x in hooks.get(('chunk', c), [])]
        share = [dm[(len(dm) * q) // 4:(len(dm) * (q + 1)) // 4] for q in range(4)]
        share[0] = extra + share[0]
        for s_ in range(4):
            g = 4 * c + s_; b = g & 1
            M = []
            for k in range(nf):
                for tb in range(2):
                    acc = r['acc'][k][tb]
                    x, w = r['fx'][b][tb], r['fw'][b][k]
                    M.append(mfma(acc, w if w_is_a else x, x if w_is_a else w, '0' if g == 0 else None))
            if ('step', g) in hooks: emit(hooks[('step', g)](vm), ('step', g))
            A("s_waitcnt lgkmcnt(0)")
            rd = [[x] for x in frag_reads(r, g + 1, nf)] if g + 1 < 32 else []
            if s_ == 3 and c < 7:
                A(M[0]); A(M[1])
                A(f"s_waitcnt vmcnt({vm.need(('c', c + 1))})")
                A("s_barrier")
                seq = spread(M[2:], rd + share[3])
            else:
                nm = len(M)
                seq = spread(M, rd, 0, nm - 2)
                pos = [i for i, x in enumerate(seq) if x.startswith('v_mfma')]
                groups = share[s_]; out = []; k = 0
                for i, x in enumerate(seq):
                    out.append(x)
                    if i + 1 in pos or i == len(seq) - 1:
                        done = sum(1 for p in pos if p <= i)
                        tgt = (len(groups) * done + nm - 1) // nm
                        while k < tgt: out += groups[k]; k += 1
                for gq in groups[k:]: out += gq
                seq = out
            tagc = ('c', c + 2)
            for x in seq:
                A(x)
                if is_vmem(x): vm.issue(tagc if ' lds' in x else 'other')
    stamp(A, 2)

def cs_reads(r, k, dst):
    base = r['vcsA'] if k < 2 else r['vcsB']
    return [f"ds_read_b128 {dst.sub(4*q,4)}, {base} offset:{(128*k if k < 2 else 0) + 32*q}" for q in range(4)]

def correct_lines(acc, ab, cs):
    L = [f"v_pk_mul_f32 {acc.sub(2*i,2)}, {acc.sub(2*i,2)}, {ab} op_sel:[0,0] op_sel_hi:[1,0]" for i in range(8)]
    L += [f"v_pk_fma_f32 {acc.sub(2*i,2)}, {cs.sub(2*i,2)}, {ab}, {acc.sub(2*i,2)} op_sel:[0,1,0] op_sel_hi:[1,1,1]" for i in range(8)]
    return L

def gelu_lines(r, y):
    t = r['tmp']; one = r['one2']; c1 = r['c1']; P = range(8)
    L = [f"v_pk_mul_f32 {t.sub(2*i,2)}, {y.sub(2*i,2)}, {y.sub(2*i,2)}" for i in P]
    L += [f"v_pk_fma_f32 {t.sub(2*i,2)}, {t.sub(2*i,2)}, s[{S_C2}:{S_C2+1}], {c1}" for i in P]
    L += [f"v_pk_mul_f32 {t.sub(2*i,2)}, {t.sub(2*i,2)}, {y.sub(2*i,2)}" for i in P]
    L += [f"v_exp_f32 {t[i]}, {t[i]}" for i in range(16)]
    L += [f"v_pk_add_f32 {t.sub(2*i,2)}, {t.sub(2*i,2)}, {one}" for i in P]
    L += [f"v_rcp_f32 {t[i]}, {t[i]}" for i in range(16)]
    L += [f"v_pk_mul_f32 {y.sub(2*i,2)}, {y.sub(2*i,2)}, {t.sub(2*i,2)}" for i in P]
    return L

def pack_lines(acc, dst):
    return [f"v_cvt_pk_bf16_f32 {dst[i]}, {acc[2*i]}, {acc[2*i+1]}" for i in range(8)]

def gstat_lines(y, st, first):
    s1, s2 = st.sub(0, 2), st.sub(2, 2); L = []
    for i in range(8):
        p = y.sub(2*i, 2)
        if first and i == 0:
            L.append(f"v_pk_mul_f32 {s2}, {p}, {p}")
        elif first and i == 1:
            L += [f"v_pk_add_f32 {s1}, {y.sub(0,2)}, {p}", f"v_pk_fma_f32 {s2}, {p}, {p}, {s2}"]
        else:
            L += [f"v_pk_add_f32 {s1}, {s1}, {p}", f"v_pk_fma_f32 {s2}, {p}, {p}, {s2}"]
    return L

def gstat_store(r, st, tb):
    a, b = st.sub(0, 2), st.sub(2, 2)
    return [f"v_add_f32 {a[0]}, {a[0]}, {a[1]}", f"v_add_f32 {a[1]}, {b[0]}, {b[1]}",
            f"v_mov_b32 {b[0]}, {a[0]}", f"v_mov_b32 {b[1]}, {a[1]}",
            f"v_permlane32_swap_b32 {a[0]}, {b[0]}", f"v_permlane32_swap_b32 {a[1]}, {b[1]}",
            f"v_pk_add_f32 {a}, {a}, {b}",
            f"buffer_store_dwordx2 {a}, {r['vgst'][tb]}, s[{SRD_WS}:{SRD_WS+3}], s{S_GST} offen"]

def gel_stores(r, d, tb, sdst, extra):
    L = []
    for q in range(2):
        L += [f"v_permlane32_swap_b32 {d[4*q]}, {d[4*q+2]}", f"v_permlane32_swap_b32 {d[4*q+1]}, {d[4*q+3]}"]
    L.append(f"s_add_u32 s{S_T}, s{sdst}, {extra}")
    for q in range(2):
        L.append(f"buffer_store_dwordx4 {d.sub(4*q,4)}, {r['vgel'][tb]}, s[{SRD_WS}:{SRD_WS+3}], s{S_T} offen offset:{q*32} ; st:ug")
    return L

def epilogue_mixed(A, r, pk):
    pool = r['pool']; cs, tmp = r['cs'], r['tmp']
    A.ext(cs_reads(r, 0, cs)); A.ext(cs_reads(r, 1, tmp))
    deferred = []
    for k in range(2):
        A(f"s_waitcnt lgkmcnt({4 if k == 0 else 4})")
        for tb in range(2):
            acc = r['acc'][k][tb]; d = pool.sub(8 * (2*k + tb), 8)
            A.ext(correct_lines(acc, r['abs'][tb], cs if k == 0 else tmp))
            A.ext(pack_lines(acc, d))
            for hf in range(2):
                deferred.append([f"s_add_u32 s{S_T+2}, s{S_DSTA}, {k*2048 + tb*32768}",
                                 f"buffer_store_dwordx4 {d.sub(4*hf,4)}, {r['vlin']}, s[{SRD_WS}:{SRD_WS+3}], s{S_T+2} offen offset:{hf*1024} ; st:lin"])
        if k == 0: A.ext(cs_reads(r, 2, cs))
    stamp(A, 'lin')
    A("s_waitcnt lgkmcnt(0)")
    lab = A.label('nog')
    for tb in range(2):
        acc = r['acc'][2][tb]; d = pk[tb]
        body = correct_lines(acc, r['ab'][tb], cs) + gelu_lines(r, acc)
        A.ext(spread(body, deferred[4*tb:4*tb+4]))
        A.ext(pack_lines(acc, d))
        A.ext(gel_stores(r, d, tb, S_DSTB, 0))
    A(f"s_cmp_lt_u32 s{S_CT}, 8", f"s_cbranch_scc1 {lab}")
    for tb in range(2):
        st = r['gst'][tb]
        A.ext(gstat_lines(r['acc'][2][tb], st, True)); A.ext(gstat_store(r, st, tb))
    A(f"{lab}:")
    stamp(A, 'gel')

def epilogue_g(A, r, pk):
    cs, cs2 = r['cs'], r['pool'].sub(0, 16)
    A.ext(cs_reads(r, 0, cs)); A.ext(cs_reads(r, 1, cs2))
    for k in range(2):
        A(f"s_waitcnt lgkmcnt({4 if k == 0 else 0})")
        for tb in range(2):
            acc = r['acc'][k][tb]; d = pk[tb]
            A.ext(correct_lines(acc, r['ab'][tb], cs if k == 0 else cs2)); A.ext(gelu_lines(r, acc))
            A.ext(pack_lines(acc, d))
            A.ext(gel_stores(r, d, tb, S_DSTA, 64 * k))
            A.ext(gstat_lines(acc, r['gst'][tb], k == 0))
    for tb in range(2): A.ext(gstat_store(r, r['gst'][tb], tb))

def build(name='p1_kernel'):
    A = KAsm('p1')
    V = Alloc('v', 1, 256)
    r = {}
    for n in ['lane', 't0', 't1', 't2', 't3', 'vlin', 'vcsA', 'vcsB', 'vpoll', 'vz']: r[n] = V(1)
    r['vx_dma'] = V(4, 1); r['vw_dma'] = V(6, 1); r['vx_rd'] = V(4, 1); r['vw_rd'] = V(6, 1)
    r['vgel'] = V(2, 1)
    r['ab'] = [V(2), V(2)]; r['abs'] = [V(2), V(2)]
    r['one2'] = V(2); r['c1'] = V(2)
    r['acc'] = [[V(16, 4), V(16, 4)] for _ in range(3)]
    r['fx'] = [[V(4), V(4)] for _ in range(2)]
    r['fw'] = [[V(4) for _ in range(3)] for _ in range(2)]
    r['pool'] = R('v', r['fx'][0][0].idx, 40)
    assert r['fw'][1][2].idx + 4 == r['pool'].idx + 40
    r['gst'] = [r['pool'].sub(32, 4), r['pool'].sub(36, 4)]
    r['vgst'] = V(2, 1)
    r['cs'] = V(16, 4); r['tmp'] = V(16, 4)
    pk = [V(8, 4), V(8, 4)]
    st64 = V(0 + 16, 4)
    prologue(A, 256)
    stamp(A, 0)
    lane_setup(A, V, r)
    A("s_and_b32 s80, s2, 7")
    A("s_lshr_b32 s81, s2, 3")
    A("s_cmp_lt_u32 s81, 4")
    A("s_cbranch_scc1 L_p1_weights")
    A("s_sub_u32 s81, s81, 4")
    A("s_and_b32 s82, s80, 3", "s_lshl_b32 s82, s82, 2", "s_and_b32 s83, s81, 3", f"s_add_u32 s{S_I}, s82, s83")
    A("s_lshr_b32 s82, s80, 2", "s_mul_i32 s82, s82, 7", "s_lshr_b32 s83, s81, 2", f"s_add_u32 s{S_CT}, s82, s83")
    A(f"s_cmp_lt_u32 s{S_CT}, 12", f"s_cselect_b32 s{S_SH[0]}, 10, 11", f"s_mov_b32 s{S_SH[1]}, s{S_SH[0]}", f"s_mov_b32 s{S_SH[2]}, 11")
    dma_addr_setup(A, r, 3)
    A(f"s_mov_b32 s{S_XM}, -1", f"s_cmp_eq_u32 s{S_W}, 3", f"s_cselect_b32 s{S_XM+1}, 0xff, -1")
    A(f"s_mul_i32 s82, s{S_I}, {125*1024}")
    A("s_waitcnt lgkmcnt(0)")
    stamp(A, 'karg')
    srd(A, SRD_X, 'x', 125*1024, off_sgpr='s82')
    A(f"s_cmp_ge_u32 s{S_CT}, 12")
    A("s_cbranch_scc1 L_p1_setup_g")
    for p in range(2):
        A(f"s_lshl_b32 s82, s{S_CT}, 1", f"s_add_u32 s82, s82, {p}")
        A("s_cmp_lt_u32 s82, 16", f"s_cselect_b64 s[84:85], s[{SP['wk']}:{SP['wk']+1}], s[{SP['wv']}:{SP['wv']+1}]")
        A("s_cmp_lt_u32 s82, 8", f"s_cselect_b64 s[84:85], s[{SP['wq']}:{SP['wq']+1}], s[84:85]")
        A("s_and_b32 s83, s82, 7", "s_lshl_b32 s83, s83, 7")
        A("s_sub_u32 s86, 0x80000, s83")
        srd(A, SRD_W[p], 84, 's86', off_sgpr='s83')
    A(f"s_lshl_b32 s83, s{S_CT}, 7", "s_sub_u32 s86, 0x100000, s83")
    srd(A, SRD_W[2], 'wup', 's86', off_sgpr='s83')
    A("s_branch L_p1_srd_done")
    A("L_p1_setup_g:")
    for p in range(3):
        pp = p if p < 2 else 0
        A(f"s_sub_u32 s82, s{S_CT}, 12", "s_lshl_b32 s82, s82, 1", f"s_add_u32 s82, s82, {12 + pp}", "s_lshl_b32 s83, s82, 7")
        A("s_sub_u32 s86, 0x100000, s83")
        srd(A, SRD_W[p], 'wup', 's86', off_sgpr='s83')
    A("L_p1_srd_done:")
    l = r['lane']; t0, t1, t2, t3 = r['t0'], r['t1'], r['t2'], r['t3']
    def late_setup():
        B = KAsm('p1x')
        srd(B, SRD_WS, 'ws', WS_END)
        srd(B, SRD_DBG, 'dbg', 256)
        B(f"s_cmp_ge_u32 s{S_CT}, 12", "s_cbranch_scc1 L_p1_dst_g")
        B(f"s_lshl_b32 s82, s{S_CT}, 1", f"s_add_u32 s82, s82, s{S_WF}")
        B("s_lshr_b32 s83, s82, 3", "s_lshl_b32 s83, s83, 21", "s_and_b32 s84, s82, 7", "s_lshl_b32 s84, s84, 12")
        B(f"s_add_u32 s{S_DSTA}, s83, s84")
        B("s_cmp_lt_u32 s82, 8", f"s_cselect_b32 s{S_SCA}, {hexf(QSCALE)}, 1.0")
        B(f"s_lshr_b32 s83, s{S_CT}, 3", f"s_mul_i32 s83, s83, {GB - UB}", f"s_and_b32 s84, s{S_CT}, 7", "s_lshl_b32 s84, s84, 7")
        B("s_add_u32 s83, s83, s84", f"s_lshl_b32 s84, s{S_WF}, 6", "s_add_u32 s83, s83, s84", f"s_add_u32 s{S_DSTB}, s83, {hex(UB)}")
        B(f"s_sub_u32 s83, s{S_CT}, 8", "s_lshl_b32 s83, s83, 1", f"s_add_u32 s83, s83, s{S_WF}", "s_lshl_b32 s83, s83, 14", f"s_add_u32 s{S_GST}, s83, {hex(GST)}")
        B("s_branch L_p1_dst_done")
        B("L_p1_dst_g:")
        B(f"s_sub_u32 s82, s{S_CT}, 12", "s_lshl_b32 s82, s82, 1", f"s_add_u32 s82, s82, s{S_WF}", "s_add_u32 s82, s82, 12")
        B("s_and_b32 s84, s82, 7", "s_lshl_b32 s84, s84, 7", f"s_add_u32 s{S_DSTA}, s84, {hex(GB)}")
        B(f"s_mov_b32 s{S_DSTB}, 0", f"s_mov_b32 s{S_SCA}, 1.0")
        B(f"s_sub_u32 s83, s{S_CT}, 12", "s_lshl_b32 s83, s83, 1", f"s_add_u32 s83, s83, s{S_WF}", "s_add_u32 s83, s83, 8", "s_lshl_b32 s83, s83, 14", f"s_add_u32 s{S_GST}, s83, {hex(GST)}")
        B("L_p1_dst_done:")
        B(f"v_lshrrev_b32 {t0}, 3, {l}", f"v_add_u32 {t0}, 125, {t0}", f"v_lshlrev_b32 {t0}, 7, {t0}")
        B(f"v_and_b32 {t1}, 7, {l}", f"v_lshl_add_u32 {t0}, {t1}, 4, {t0}")
        B(f"s_lshl_b32 s{S_T}, s{S_W}, 14", f"v_add_u32 {t0}, s{S_T}, {t0}")
        ones = r['tmp'].sub(0, 4)
        for q in range(4): B(f"v_mov_b32 {ones[q]}, 0x3f803f80")
        B(f"v_cmp_gt_u32 vcc, 24, {l}", "s_and_saveexec_b64 s[92:93], vcc", f"ds_write_b128 {t0}, {ones}", "s_mov_b64 exec, s[92:93]")
        read_addr_setup(B, r, [('wf', 0), ('wf', 1), (2, 'wf')])
        B(f"s_lshl_b32 s82, s{S_I}, 2", f"s_lshl_b32 s83, s{S_WT}, 1", "s_add_u32 s82, s82, s83", "s_lshl_b32 s82, s82, 15")
        B(f"v_lshlrev_b32 {r['vlin']}, 4, {l}", f"v_add_u32 {r['vlin']}, s82, {r['vlin']}")
        B(f"v_lshrrev_b32 {t2}, 5, {l}", f"v_lshlrev_b32 {t2}, 4, {t2}")
        B(f"s_lshl_b32 s82, s{S_WF}, 8", f"v_add_u32 {r['vcsA']}, s82, {t2}")
        B(f"s_lshl_b32 s82, s{S_WF}, 7", "s_add_u32 s82, s82, 512", f"v_add_u32 {r['vcsB']}, s82, {t2}")
        B(f"v_and_b32 {t0}, 31, {l}", f"s_lshl_b32 s82, s{S_WT}, 6", f"v_add_u32 {t0}, s82, {t0}")
        B(f"s_mul_i32 s83, s{S_I}, 125")
        for tb in range(2):
            B(f"v_add_u32 {t1}, {32*tb}, {t0}")
            B(f"v_add_u32 {t3}, s83, {t1}", f"v_lshlrev_b32 {t3}, 10, {t3}", f"v_add_u32 {t3}, {t3}, {t2}")
            B(f"v_cmp_gt_u32 vcc, 125, {t1}", f"v_mov_b32 {r['vgel'][tb]}, {hex(OOB)}", f"v_cndmask_b32 {r['vgel'][tb]}, {r['vgel'][tb]}, {t3}, vcc")
            B(f"v_add_u32 {t3}, s83, {t1}", f"v_lshlrev_b32 {t3}, 3, {t3}", f"v_cmp_eq_u32 s[84:85], 0, {t2}", "s_and_b64 vcc, vcc, s[84:85]")
            B(f"v_mov_b32 {r['vgst'][tb]}, {hex(OOB)}", f"v_cndmask_b32 {r['vgst'][tb]}, {r['vgst'][tb]}, {t3}, vcc")
        B(f"s_lshl_b32 s82, s{S_I}, 10", f"s_add_u32 s82, s82, {hex(XST)}", f"v_lshlrev_b32 {r['vz']}, 3, {t0}", f"v_add_u32 {r['vz']}, s82, {r['vz']}")
        B(f"s_lshl_b32 s82, s{S_I}, 2", f"v_mov_b32 {r['vpoll']}, s82")
        B(f"v_mov_b32 {r['one2'][0]}, 1.0", f"v_mov_b32 {r['one2'][1]}, 1.0")
        c1 = -2.0 * LOG2E * 0.7978845608028654
        B(f"v_mov_b32 {r['c1'][0]}, {hexf(c1)}", f"v_mov_b32 {r['c1'][1]}, {hexf(c1)}")
        B(f"s_mov_b32 s{S_C2}, {hexf(c1*0.044715)}", f"s_mov_b32 s{S_C2+1}, {hexf(c1*0.044715)}")
        return B.L
    pollv = r['t0']
    poll = [f"buffer_load_dword {pollv}, {r['vpoll']}, s[{SRD_DBG}:{SRD_DBG+3}], 0 offen sc1"]
    lp, lq = A.label('poll'), A.label('pollok')
    check = ["s_waitcnt vmcnt(0)", f"v_readfirstlane_b32 s{S_T+1}, {pollv}", "s_nop 3", f"s_cmp_ge_u32 s{S_T+1}, 2", f"s_cbranch_scc1 {lq}",
             f"s_mov_b32 s{S_CNT}, 0x40000", f"{lp}:", "s_sleep 4",
             f"buffer_load_dword {pollv}, {r['vpoll']}, s[{SRD_DBG}:{SRD_DBG+3}], 0 offen sc1", "s_waitcnt vmcnt(0)",
             f"v_readfirstlane_b32 s{S_T+1}, {pollv}", f"s_sub_u32 s{S_CNT}, s{S_CNT}, 1", "s_nop 2", f"s_cmp_eq_u32 s{S_CNT}, 0", f"s_cbranch_scc1 {lq}",
             f"s_cmp_ge_u32 s{S_T+1}, 2", f"s_cbranch_scc0 {lp}", f"{lq}:",
             f"buffer_load_dwordx2 {r['ab'][0]}, {r['vz']}, s[{SRD_WS}:{SRD_WS+3}], 0 offen sc1",
             f"buffer_load_dwordx2 {r['ab'][1]}, {r['vz']}, s[{SRD_WS}:{SRD_WS+3}], 0 offen offset:256 sc1"]
    main_loop(A, r, 3, 3, True, True, {('chunk', 6): poll, ('step', 29): lambda vm: check, 'mid': lambda vm: late_setup()})
    A(f"s_cmp_eq_u32 s{S_WT}, 0", "s_cbranch_scc1 L_p1_nocs")
    A("s_mov_b32 exec_lo, 0x20000000", "s_mov_b32 exec_hi, 0x20000000", "s_nop 7")
    for k in range(3):
        base = r['vcsA'] if k < 2 else r['vcsB']
        for q in range(4):
            A(f"ds_write_b128 {base}, {r['acc'][k][1].sub(4*q,4)} offset:{(128*k if k < 2 else 0) + 32*q}")
    A("s_mov_b64 exec, -1")
    A("L_p1_nocs:")
    A("s_waitcnt lgkmcnt(0)", "s_barrier", "s_waitcnt vmcnt(0)")
    stamp(A, 'cs')
    for tb in range(2):
        A(f"v_pk_mul_f32 {r['abs'][tb]}, {r['ab'][tb]}, s[{S_SCA}:{S_SCA+1}] op_sel_hi:[1,0]")
    A(f"s_cmp_ge_u32 s{S_CT}, 12", "s_cbranch_scc1 L_p1_epi_g")
    epilogue_mixed(A, r, pk)
    stamp_flush(A, 0, SRD_WS, r['ab'][0][0], r['ab'][0][1])
    A("s_endpgm")
    A("L_p1_epi_g:")
    epilogue_g(A, r, pk)
    stamp_flush(A, 0, SRD_WS, r['ab'][0][0], r['ab'][0][1])
    A("s_endpgm")
    A("L_p1_weights:")
    A("s_waitcnt lgkmcnt(0)")
    stamp(A, 'karg')
    srd(A, SRD_WS, 'ws', WS_END)
    srd(A, SRD_DBG, 'dbg', 256)
    A("s_lshl_b32 s81, s81, 3", "s_add_u32 s81, s81, s80")
    J = 78
    A(f"v_lshlrev_b32 {t0}, 4, v0")
    warm_code(A, 'L_p1_srd_done', 'L_p1_weights', common.P1_BYTES, 84, t0, t1, r['fx'][0][0], back=True)
    A(f"s_mov_b32 s{J}, s81")
    A(f"s_lshr_b32 s82, s{J}, 1", f"s_mov_b32 s{S_I}, s82", f"s_mul_i32 s82, s82, {125*1024}")
    srd(A, SRD_W[2], 'x', 125*1024, off_sgpr='s82')
    stv = [r['cs'], r['tmp'], R('v', pk[0].idx, 16), st64]
    assert pk[1].idx == pk[0].idx + 8
    A(f"s_and_b32 s83, s{J}, 1", "s_lshl_b32 s83, s83, 6", f"s_lshl_b32 s84, s{S_W}, 4", "s_add_u32 s83, s83, s84")
    rowv = r['vgel']
    for g2 in range(2):
        A(f"v_lshrrev_b32 {rowv[g2]}, 3, {l}", f"v_add_u32 {rowv[g2]}, s83, {rowv[g2]}")
        if g2: A(f"v_add_u32 {rowv[g2]}, 8, {rowv[g2]}")
    for g2 in range(2):
        A(f"v_lshlrev_b32 {t0}, 10, {rowv[g2]}", f"v_and_b32 {t1}, 7, {l}", f"v_lshl_add_u32 {t0}, {t1}, 4, {t0}")
        for jj in range(8):
            q = g2 * 8 + jj
            A(f"buffer_load_dwordx4 {stv[q//4].sub(4*(q%4),4)}, {t0}, s[{SRD_W[2]}:{SRD_W[2]+3}], 0 offen offset:{jj*128}")
        A("s_nop 0")
    A(f"s_lshr_b32 s82, s{J}, 4")
    A("s_cmp_eq_u32 s82, 0", f"s_cselect_b64 s[84:85], s[{SP['wao']}:{SP['wao']+1}], s[{SP['wdn']}:{SP['wdn']+1}]")
    A(f"s_lshr_b32 s83, s{J}, 2", "s_and_b32 s83, s83, 3", "s_lshl_b32 s83, s83, 17")
    srd(A, SRD_X, 84, 131072, off_sgpr='s83')
    for p in range(2):
        A(f"s_lshr_b32 s82, s{J}, 4", "s_lshl_b32 s82, s82, 19", f"s_and_b32 s83, s{J}, 3", "s_lshl_b32 s83, s83, 8")
        A(f"s_add_u32 s83, s83, {128*p}", "s_sub_u32 s86, 0x80000, s83", "s_add_u32 s83, s83, s82")
        srd(A, SRD_W[p], 'wm', 's86', off_sgpr='s83')
        A(f"s_mov_b32 s{S_SH[p]}, 10")
    dma_addr_setup(A, r, 2)
    read_addr_setup(A, r, [('wf', 0), ('wf', 1)])
    st = []
    a1, a2 = r['ab'][0], r['ab'][1]
    onesb = r['one2'][0]
    st.append(f"v_mov_b32 {onesb}, 0x3f803f80")
    st.append("WAITSTAT")
    for g2 in range(2):
        sm, sq = (a1[0], a1[1]) if g2 == 0 else (a2[0], a2[1])
        first = True
        for jj in range(8):
            q = g2 * 8 + jj
            for d in range(4):
                x = stv[q//4][4*(q%4) + d]
                st.append(f"v_dot2_f32_bf16 {sm}, {x}, {onesb}, {'0' if first else sm}")
                st.append(f"v_dot2_f32_bf16 {sq}, {x}, {x}, {'0' if first else sq}")
                first = False
    for mod in ["quad_perm:[1,0,3,2]", "quad_perm:[2,3,0,1]", "row_half_mirror"]:
        for x in (a1[0], a1[1], a2[0], a2[1]):
            st.append(f"v_add_f32_dpp {x}, {x}, {x} {mod} row_mask:0xf bank_mask:0xf")
    for g2, ab in enumerate((a1, a2)):
        st += [f"v_mul_f32 {ab[0]}, {hexf(1/512)}, {ab[0]}",
               f"v_mul_f32 {ab[1]}, {hexf(1/512)}, {ab[1]}",
               f"v_fma_f32 {ab[1]}, -{ab[0]}, {ab[0]}, {ab[1]}",
               f"v_max_f32 {ab[1]}, 0, {ab[1]}",
               f"v_add_f32 {ab[1]}, {hexf(1e-5)}, {ab[1]}",
               f"v_rsq_f32 {ab[1]}, {ab[1]}",
               f"v_mul_f32 {t1}, -{ab[0]}, {ab[1]}" if False else f"v_mul_f32 {t1}, {ab[0]}, {ab[1]}",
               f"v_sub_f32 {t1}, 0, {t1}",
               f"v_cmp_gt_u32 vcc, 125, {rowv[g2]}",
               f"v_cndmask_b32 {ab[0]}, 0, {ab[1]}, vcc",
               f"v_cndmask_b32 {ab[1]}, 0, {t1}, vcc",
               f"s_lshl_b32 s82, s{S_I}, 10", f"s_add_u32 s82, s82, {hex(XST)}",
               f"v_lshlrev_b32 {t0}, 3, {rowv[g2]}", f"v_add_u32 {t0}, s82, {t0}",
               f"v_and_b32 {t1}, 7, {l}", f"v_cmp_eq_u32 vcc, 0, {t1}", f"v_mov_b32 {t1}, {hex(OOB)}",
               f"v_cndmask_b32 {t0}, {t1}, {t0}, vcc",
               f"buffer_store_dwordx2 {ab}, {t0}, s[{SRD_WS}:{SRD_WS+3}], 0 offen sc1", "s_nop 1"]
    pub = [f"s_lshl_b32 s82, s{S_I}, 2", f"v_mov_b32 {t0}, s82", f"v_mov_b32 {t1}, 1",
           f"s_cmp_lg_u32 s{S_W}, 0", "s_cbranch_scc1 L_p1_nopub", "s_mov_b64 exec, 1",
           f"buffer_atomic_add {t1}, {t0}, s[{SRD_DBG}:{SRD_DBG+3}], 0 offen", "s_mov_b64 exec, -1", "L_p1_nopub:"]
    weights_loop(A, r, st, pub)
    A(f"v_lshlrev_b32 {t0}, 4, v0")
    warm_code(A, 'p2_kernel', 'L_EXIT_p2', common.P2_BYTES, 84, t0, t1, r['cs'].sub(4, 4))
    if common.WARMDW:
        srd(A, SRD_W[2], 'dw', 31 * 1024)
        A(f"v_lshlrev_b32 {t0}, 4, v0")
        for j in range(8):
            A(f"s_mov_b32 s{S_T}, {j*4096}", f"buffer_load_dwordx4 {r['cs'].sub(0,4)}, {t0}, s[{SRD_W[2]}:{SRD_W[2]+3}], s{S_T} offen")
    A(f"s_lshr_b32 s82, s{J}, 4", "s_lshl_b32 s82, s82, 19", f"s_add_u32 s82, s82, {hex(WAMF)}")
    A(f"s_and_b32 s83, s{J}, 3", "s_lshl_b32 s83, s83, 2", f"s_lshl_b32 s84, s{S_WF}, 1", "s_add_u32 s83, s83, s84", "s_lshl_b32 s83, s83, 15")
    A("s_add_u32 s82, s82, s83")
    A(f"s_lshr_b32 s83, s{J}, 2", "s_and_b32 s83, s83, 3", "s_lshl_b32 s83, s83, 2", f"s_lshl_b32 s84, s{S_WT}, 1", "s_add_u32 s83, s83, s84", "s_lshl_b32 s83, s83, 11")
    A("s_add_u32 s82, s82, s83")
    A(f"v_lshlrev_b32 {r['vlin']}, 4, {l}")
    for k in range(2):
        for tb in range(2):
            d = pk[tb]
            A.ext(pack_lines(r['acc'][k][tb], d))
            A(f"s_add_u32 s{S_T}, s82, {k*32768 + tb*2048}")
            for hf in range(2):
                A(f"buffer_store_dwordx4 {d.sub(4*hf,4)}, {r['vlin']}, s[{SRD_WS}:{SRD_WS+3}], s{S_T} offen offset:{hf*1024} ; st:w")
    stamp_flush(A, 0, SRD_WS, r['ab'][0][0], r['ab'][0][1])
    A("L_EXIT_p1:")
    A("s_endpgm")
    return A, V.hi

def weights_loop(A, r, st, pub):
    vm = VM()
    for _ in range(16): vm.issue('stat')
    mid = lambda vm: [f"s_waitcnt vmcnt({vm.need('stat')})" if x == 'WAITSTAT' else x for x in st]
    pre = lambda vm: [f"s_waitcnt vmcnt({vm.need('mid')})", "s_barrier"] + list(pub)
    main_loop(A, r, 2, 2, False, False, {'mid': mid, 'pre': pre, 'vm': vm})
```

```python
from common import *
import common

S_W = 28; SRD_WS = 32; SRD_DW = 36
S_B, S_A0, S_B0, S_DST, S_STAT = 40, 41, 42, 43, 44
S_T = 48
S_M0 = 60; S_SA = 61; S_SB = 62; S_RO = 63

def gemm(A, r, extra_after=None):
    l16 = r['l16']
    def group(g):
        G = [[f"s_add_u32 s{S_SA}, s{S_A0}, s{S_RO}", f"s_add_u32 s{S_SB}, s{S_B0}, s{S_RO}", f"s_add_u32 m0, s{S_M0}, {g*4096}",
              f"s_add_u32 s{S_RO}, s{S_RO}, 4096", f"s_and_b32 s{S_RO}, s{S_RO}, 0x7fff"]]
        for j in range(4):
            G.append([f"buffer_load_dwordx4 {l16}, s[{SRD_WS}:{SRD_WS+3}], s{S_SA} offen offset:{j*1024} lds"])
            G.append([f"buffer_load_dwordx4 {R('a', 4*(4*g+j), 4)}, {l16}, s[{SRD_WS}:{SRD_WS+3}], s{S_SB} offen offset:{j*1024}"])
        return G
    def reads(ks):
        b = ks & 1
        return [f"ds_read_b128 {r['fa'][b][mb]}, {r['va'][mb >> 1]} offset:{(mb & 1)*32768 + ks*1024}" for mb in range(4)]
    vm = VM()
    def emit(lines, tag):
        for x in lines:
            A(x)
            if is_vmem(x): vm.issue(tag)
    stamp(A, 'setup')
    for g in range(2):
        for x in group(g): emit(x, g)
    stamp(A, 'issued')
    A(f"s_waitcnt vmcnt({vm.need(0)})", "s_barrier")
    stamp(A, 1)
    A.ext(reads(0))
    for g in range(8):
        nxt = group(g + 2) if g + 2 < 8 else []
        share = [nxt[0:3], nxt[3:5], nxt[5:7], nxt[7:9]]
        for q in range(4):
            ks = 4 * g + q; b = ks & 1
            M = [mfma(r['acc'][mb], r['fa'][b][mb], R('a', 4*ks, 4), '0' if ks == 0 else None) for mb in range(4)]
            A("s_waitcnt lgkmcnt(0)")
            rd = [[x] for x in reads(ks + 1)] if ks < 31 else []
            if q == 3 and g < 7:
                A(M[0])
                A(f"s_waitcnt vmcnt({vm.need(g + 1)})", "s_barrier")
                emit(spread(M[1:], rd + share[3]), g + 2)
            else:
                emit(spread(M, rd[:2] + share[q][:1] + rd[2:] + share[q][1:]), g + 2)
    stamp(A, 2)

def rot(A, sidx):
    if common.ROT == 4: A(f"s_and_b32 {sidx}, {sidx}, 3", f"s_lshl_b32 s{S_RO}, {sidx}, 13")
    elif common.ROT == 2: A(f"s_and_b32 {sidx}, {sidx}, 1", f"s_lshl_b32 s{S_RO}, {sidx}, 14")
    else: A(f"s_mov_b32 s{S_RO}, 0")

def store_frags(A, r, pk):
    for mb in range(4):
        d = pk[mb & 1]; acc = r['acc'][mb]
        for i in range(8): A(f"v_cvt_pk_bf16_f32 {d[i]}, {acc[2*i]}, {acc[2*i+1]}")
        if mb % 2 == 0: A(f"s_add_u32 s{S_T}, s{S_DST}, {mb*2048}")
        for hf in range(2):
            A(f"buffer_store_dwordx4 {d.sub(4*hf,4)}, {r['l16']}, s[{SRD_WS}:{SRD_WS+3}], s{S_T} offen offset:{(mb & 1)*2048 + hf*1024} ; st:p")

def build():
    A = KAsm('p2')
    V = Alloc('v', 1, 256)
    r = {}
    for n in ['lane', 'l16', 't0', 'tpad', 't1', 't2', 't3']: r[n] = V(1)
    base = V.mark()
    r['va'] = V(2, 1)
    r['acc'] = [V(16, 4) for _ in range(4)]
    r['fa'] = [[V(4) for _ in range(4)] for _ in range(2)]
    pk = [V(8, 4), V(8, 4)]
    mx = V(2); sm = V(4); st2 = V(2)
    hi_gemm = V.hi
    l = r['lane']; t0, t1, t2, t3 = r['t0'], r['t1'], r['t2'], r['t3']
    prologue(A, 256)
    stamp(A, 0)
    A(f"v_and_b32 {l}, 63, v0", f"v_lshrrev_b32 {t0}, 6, v0", f"v_lshlrev_b32 {r['l16']}, 4, {l}")
    A(f"v_readfirstlane_b32 s{S_W}, {t0}")
    A("s_and_b32 s48, s2, 7", "s_lshr_b32 s49, s2, 3", f"s_lshr_b32 s{S_B}, s48, 2")
    A("s_cmp_ge_u32 s49, 24", "s_cbranch_scc1 L_p2_conv")
    A(f"v_add_u32 {r['va'][1]}, 0x10000, {r['l16']}", f"v_mov_b32 {r['va'][0]}, {r['l16']}")
    A(f"s_lshl_b32 s{S_M0}, s{S_W}, 15")
    A("s_cmp_ge_u32 s49, 16", "s_cbranch_scc1 L_p2_vsetup")
    A("s_and_b32 s50, s48, 1", "s_lshl_b32 s50, s50, 2", "s_and_b32 s51, s49, 3", "s_add_u32 s50, s50, s51")
    A("s_lshr_b32 s51, s48, 1", "s_and_b32 s51, s51, 1", "s_lshl_b32 s51, s51, 2", "s_lshr_b32 s52, s49, 2", "s_add_u32 s51, s51, s52")
    A("s_add_u32 s53, s50, s51")
    rot(A, 's53')
    A(f"s_lshl_b32 s52, s{S_B}, 3", "s_add_u32 s53, s52, s51", "s_lshl_b32 s53, s53, 2", f"s_add_u32 s53, s53, s{S_W}", "s_lshl_b32 s53, s53, 15")
    A(f"s_add_u32 s{S_A0}, s53, {hex(KF)}")
    A("s_add_u32 s53, s52, s50", "s_lshl_b32 s53, s53, 2", f"s_add_u32 s53, s53, s{S_W}")
    A("s_lshl_b32 s54, s53, 15", f"s_add_u32 s{S_B0}, s54, {hex(QF)}")
    A("s_lshl_b32 s54, s53, 16", "s_lshl_b32 s55, s51, 13", "s_add_u32 s54, s54, s55", f"s_add_u32 s{S_DST}, s54, {hex(PF)}")
    A("s_add_u32 s54, s52, s51", "s_lshl_b32 s54, s54, 10", "s_lshl_b32 s55, s50, 7", "s_add_u32 s54, s54, s55", f"s_lshl_b32 s55, s{S_W}, 5", "s_add_u32 s54, s54, s55")
    A("s_lshl_b32 s54, s54, 3", f"s_add_u32 s{S_STAT}, s54, {hex(SM)}")
    A("s_waitcnt lgkmcnt(0)")
    stamp(A, 'karg')
    srd(A, SRD_WS, 'ws', WS_END)
    gemm(A, r)
    acc = r['acc']
    A(f"v_cmp_lt_u32 vcc, 31, {l}", f"v_mov_b32 {t0}, 0xff800000")
    for q in (13, 14, 15): A(f"v_cndmask_b32 {acc[3][q]}, {acc[3][q]}, {t0}, vcc")
    flat = [acc[mb][i] for mb in range(4) for i in range(16)]
    A(f"v_max3_f32 {mx[0]}, {flat[0]}, {flat[1]}, {flat[2]}", f"v_max3_f32 {mx[1]}, {flat[3]}, {flat[4]}, {flat[5]}")
    k = 6
    while k + 3 < 64:
        A(f"v_max3_f32 {mx[0]}, {mx[0]}, {flat[k]}, {flat[k+1]}", f"v_max3_f32 {mx[1]}, {mx[1]}, {flat[k+2]}, {flat[k+3]}")
        k += 4
    A(f"v_max3_f32 {mx[0]}, {mx[0]}, {flat[62]}, {flat[63]}")
    A(f"v_max_f32 {mx[0]}, {mx[0]}, {mx[1]}", f"v_mov_b32 {mx[1]}, {mx[0]}")
    A(f"v_permlane32_swap_b32 {mx[0]}, {mx[1]}", f"v_max_f32 {mx[0]}, {mx[0]}, {mx[1]}")
    for mb in range(4):
        a_ = acc[mb]
        for i in range(8):
            A(f"v_pk_add_f32 {a_.sub(2*i,2)}, {a_.sub(2*i,2)}, {mx} op_sel_hi:[1,0] neg_lo:[0,1] neg_hi:[0,1]")
        for i in range(16): A(f"v_exp_f32 {a_[i]}, {a_[i]}")
        for i in range(8):
            s_ = sm.sub(2*(i & 1), 2)
            if mb == 0 and i < 2: A(f"v_pk_add_f32 {s_}, {a_.sub(2*i,2)}, {a_.sub(2*(i+2),2)}")
            elif mb == 0 and i < 4: continue
            else: A(f"v_pk_add_f32 {s_}, {s_}, {a_.sub(2*i,2)}")
        d = pk[mb & 1]
        for i in range(8): A(f"v_cvt_pk_bf16_f32 {d[i]}, {a_[2*i]}, {a_[2*i+1]}")
        if mb % 2 == 0: A(f"s_add_u32 s{S_T}, s{S_DST}, {mb*2048}")
        for hf in range(2):
            A(f"buffer_store_dwordx4 {d.sub(4*hf,4)}, {r['l16']}, s[{SRD_WS}:{SRD_WS+3}], s{S_T} offen offset:{(mb & 1)*2048 + hf*1024} ; st:p")
    A(f"v_pk_add_f32 {sm.sub(0,2)}, {sm.sub(0,2)}, {sm.sub(2,2)}", f"v_add_f32 {sm[0]}, {sm[0]}, {sm[1]}", f"v_mov_b32 {sm[1]}, {sm[0]}")
    A(f"v_permlane32_swap_b32 {sm[0]}, {sm[1]}", f"v_add_f32 {st2[1]}, {sm[0]}, {sm[1]}", f"v_mov_b32 {st2[0]}, {mx[0]}")
    A(f"v_lshlrev_b32 {t0}, 3, {l}", f"v_mov_b32 {t1}, {hex(OOB)}", f"v_cmp_gt_u32 vcc, 32, {l}", f"v_cndmask_b32 {t0}, {t1}, {t0}, vcc")
    A(f"buffer_store_dwordx2 {st2}, {t0}, s[{SRD_WS}:{SRD_WS+3}], s{S_STAT} offen")
    stamp_flush(A, 1, SRD_WS, mx[0], mx[1])
    A("s_endpgm")
    A("L_p2_vsetup:")
    A("s_sub_u32 s49, s49, 16", "s_and_b32 s50, s48, 3", "s_lshl_b32 s50, s50, 1", "s_and_b32 s51, s49, 1", "s_add_u32 s50, s50, s51")
    A("s_lshr_b32 s51, s49, 1")
    A(f"s_lshl_b32 s52, s{S_B}, 3", "s_add_u32 s53, s52, s50", "s_lshl_b32 s53, s53, 2", f"s_add_u32 s53, s53, s{S_W}", "s_lshl_b32 s53, s53, 15")
    A(f"s_add_u32 s{S_A0}, s53, {hex(VF)}")
    A("s_lshl_b32 s53, s51, 2", f"s_add_u32 s53, s53, s{S_W}")
    A("s_lshl_b32 s54, s53, 15", f"s_add_u32 s{S_B0}, s54, {hex(WAMF)}")
    A(f"s_lshl_b32 s54, s{S_B}, 4", "s_add_u32 s54, s54, s53", "s_lshl_b32 s54, s54, 16", "s_lshl_b32 s55, s50, 13", "s_add_u32 s54, s54, s55")
    A(f"s_add_u32 s{S_DST}, s54, {hex(V2F)}")
    A("s_mov_b32 s53, s51")
    rot(A, 's53')
    A("s_waitcnt lgkmcnt(0)")
    stamp(A, 'karg')
    srd(A, SRD_WS, 'ws', WS_END)
    gemm(A, r)
    A(f"v_lshlrev_b32 {t0}, 4, v0")
    warm_code(A, 'p3_kernel', 'L_EXIT_p3', common.P3_BYTES, 54, t0, t1, r['fa'][0][0])
    store_frags(A, r, pk)
    stamp_flush(A, 1, SRD_WS, mx[0], mx[1])
    A("s_endpgm")
    A("L_p2_conv:")
    V.reset(base)
    acc = V(64, 4); stg = V(32, 4); wp = V(62, 2); par = [V(4) for _ in range(4)]; gn = [V(2), V(2)]
    gr = V(8, 2); ab = V(2); sp = V(24, 2); vd = V(1); vl4 = V(1); vlw = V(1); vlr = V(1); msk = V(1); vpar = V(1); vu = V(1); vw = V(1); vuc = V(1); fin = [V(2), V(2)]
    SRDW = f"s[{SRD_WS}:{SRD_WS+3}]"
    WB = 32768
    LG, LW, LU, LP = 0, 16384, 24576, 131072
    S_G, S_U, S_T0, S_LB, S_GS = 56, 57, 58, 59, 64
    A("s_sub_u32 s49, s49, 24", "s_and_b32 s50, s48, 3", "s_lshl_b32 s50, s50, 1", "s_lshr_b32 s51, s49, 2", "s_add_u32 s50, s50, s51")
    A("s_and_b32 s51, s49, 3")
    A("s_mul_i32 s52, s50, 125", "s_lshl_b32 s53, s51, 5", "s_add_u32 s52, s52, s53")
    A(f"s_mul_i32 s53, s{S_B}, 1000", "s_add_u32 s53, s53, s52", f"s_mov_b32 s{S_GS}, s53", "s_lshl_b32 s53, s53, 10")
    A(f"s_add_u32 s{S_G}, s53, {hex(GB - 15*1024)}", f"s_add_u32 s{S_U}, s53, {hex(UB)}", f"s_mov_b32 s{S_T0}, s52")
    A(f"s_lshl_b32 s53, s{S_B}, 3", "s_add_u32 s53, s53, s50", "s_lshl_b32 s53, s53, 2", "s_add_u32 s53, s53, s51", "s_lshl_b32 s53, s53, 15")
    A(f"s_add_u32 s{S_DST}, s53, {hex(UCF)}")
    A(f"s_lshl_b32 s{S_LB}, s{S_W}, 15")
    A(f"v_lshrrev_b32 {t0}, 4, {l}", f"v_lshlrev_b32 {t0}, 10, {t0}", f"v_and_b32 {t1}, 15, {l}", f"v_lshl_add_u32 {vd}, {t1}, 4, {t0}")
    A(f"s_lshl_b32 s53, s{S_W}, 8", f"v_add_u32 {vd}, s53, {vd}")
    A(f"v_lshrrev_b32 {t0}, 2, {l}", f"s_lshl_b32 s53, s{S_W}, 4", f"v_add_u32 {t0}, s53, {t0}", f"v_and_b32 {t1}, 3, {l}")
    A(f"s_sub_u32 s53, s{S_GS}, 15", f"v_add_u32 {t2}, s53, {t0}", f"v_lshlrev_b32 {t2}, 3, {t2}", f"v_mul_u32_u24 {t3}, {3*16384}, {t1}", f"v_add_u32 {t2}, {t2}, {t3}")
    A("s_waitcnt lgkmcnt(0)")
    stamp(A, 'karg')
    srd(A, SRD_WS, 'ws', WS_END)
    srd(A, SRD_DW, 'dw', 31 * 1024)
    vm = VM()
    def stage(j, lds, srdreg, sbase):
        L = [f"s_add_u32 m0, s{S_LB}, {lds + j*1024}"]
        L.append(f"s_add_u32 s{S_SB}, s{sbase}, {j*4096}" if sbase is not None else f"s_mov_b32 s{S_SB}, {j*4096}")
        L.append(f"buffer_load_dwordx4 {vd}, s[{srdreg}:{srdreg+3}], s{S_SB} offen lds")
        return L
    for p in range(3):
        A(f"s_mov_b32 s53, {hex(GST + p*16384)}")
        A(f"buffer_load_dwordx2 {sp.sub(2*p,2)}, {t2}, {SRDW}, s53 offen"); vm.issue('st')
    for j in range(8):
        if j == 7: A("s_mov_b32 exec_hi, 0xffff")
        A.ext(stage(j, LW, SRD_DW, None)); vm.issue('w')
        if j == 7: A("s_mov_b32 exec_hi, -1")
    porder = [15]
    for d_ in range(1, 16): porder += [15 + d_, 15 - d_]
    porder = [p_ for p_ in porder if 0 <= p_ <= 30]
    jorder = []
    for p_ in porder:
        if (p_ >> 1) not in jorder: jorder.append(p_ >> 1)
    NG0 = 4
    for j in jorder[:NG0]: A.ext(stage(j, LG, SRD_WS, S_G)); vm.issue(('g', j))
    stamp(A, 'issued')
    A(f"s_waitcnt vmcnt({vm.need('st')})")
    A(f"v_pk_add_f32 {sp.sub(0,2)}, {sp.sub(0,2)}, {sp.sub(2,2)}", f"v_pk_add_f32 {sp.sub(0,2)}, {sp.sub(0,2)}, {sp.sub(4,2)}")
    for mod in ["quad_perm:[1,0,3,2]", "quad_perm:[2,3,0,1]"]:
        for x in (sp[0], sp[1]): A(f"v_add_f32_dpp {x}, {x}, {x} {mod} row_mask:0xf bank_mask:0xf")
    A(f"v_mul_f32 {ab[0]}, {hexf(1/512)}, {sp[0]}", f"v_mul_f32 {ab[1]}, {hexf(1/512)}, {sp[1]}",
      f"v_fma_f32 {ab[1]}, -{ab[0]}, {ab[0]}, {ab[1]}", f"v_max_f32 {ab[1]}, 0, {ab[1]}", f"v_add_f32 {ab[1]}, {hexf(1e-5)}, {ab[1]}",
      f"v_rsq_f32 {ab[1]}, {ab[1]}", f"v_mul_f32 {t2}, {ab[0]}, {ab[1]}", f"v_sub_f32 {t2}, 0, {t2}")
    A(f"s_sub_u32 s53, s{S_T0}, 15", f"v_add_u32 {t3}, s53, {t0}", f"v_cmp_gt_u32 vcc, 1000, {t3}")
    A(f"v_cndmask_b32 {ab[0]}, 0, {ab[1]}, vcc", f"v_cndmask_b32 {ab[1]}, 0, {t2}, vcc")
    A(f"v_lshlrev_b32 {t2}, 3, {t0}", f"v_add_u32 {t2}, {LP}, {t2}", f"v_cmp_eq_u32 vcc, 0, {t1}", "s_and_saveexec_b64 s[54:55], vcc")
    A(f"ds_write_b64 {t2}, {ab}", "s_mov_b64 exec, s[54:55]")
    A(f"v_mov_b32 {vpar}, {LP}")
    A(f"v_lshlrev_b32 {vl4}, 2, {l}", f"v_add_u32 {vl4}, s{S_LB}, {vl4}")
    UCB = LW - 256
    A(f"v_add_u32 {vw}, {LW}, {vl4}", f"v_add_u32 {vu}, {LU}, {vl4}", f"v_mov_b32 {msk}, 0xffff0000", f"v_add_u32 {vuc}, {UCB}, {vl4}")
    NG1 = 6
    for j in jorder[NG0:NG1]: A.ext(stage(j, LG, SRD_WS, S_G)); vm.issue(('g', j))
    stamp(A, 'statdone')
    A(f"s_waitcnt vmcnt({vm.need('w')})")
    for i in range(0, 32, 2):
        A(f"ds_read2st64_b32 {stg.sub(i,2)}, {vw} offset0:{i} offset1:{i+1}")
        if i == 14: A("s_waitcnt lgkmcnt(2)")
    A("s_waitcnt lgkmcnt(0)", "s_barrier")
    def pread(n): return f"ds_read_b128 {par[n % 4]}, {vpar} offset:{porder[n]*16}"
    def gread(n): return f"ds_read2st64_b32 {gr.sub(2*(n % 4), 2)}, {vl4} offset0:{2*porder[n]} offset1:{2*porder[n]+1}"
    def uread(t): return f"ds_read2st64_b32 {stg.sub(t, 2)}, {vu} offset0:{t} offset1:{t+1}"
    for i in range(31):
        A(f"v_lshlrev_b32 {wp[2*i]}, 16, {stg[i]}", f"v_and_b32 {wp[2*i+1]}, {msk}, {stg[i]}")
    stamp(A, 1)
    NP = len(porder)
    gdone = set()
    def gwait(n):
        jn = porder[n] >> 1
        if jn not in gdone:
            A(f"s_waitcnt vmcnt({vm.need(('g', jn))})")
            for jj in jorder[:jorder.index(jn) + 1]: gdone.add(jj)
    ds = []
    for n in range(3):
        gwait(n)
        if n < 2: A(pread(n)); ds.append(('p', n))
        A(gread(n)); ds.append(('g', n))
    def need(tag): return sum(1 for t in ds[ds.index(tag) + 1:])
    def finish(t):
        g = fin[t & 1]; a_ = acc.sub(2*t, 2)
        return [f"v_lshlrev_b32 {g[0]}, 16, {stg[t]}", f"v_and_b32 {g[1]}, {msk}, {stg[t]}", f"v_pk_mul_f32 {a_}, {a_}, {g}",
                f"v_cvt_pk_bf16_f32 {stg[t]}, {a_[0]}, {a_[1]}", f"ds_write_b32 {vuc}, {stg[t]} offset:{t*264}"]
    lg = [(('g', j), stage(j, LG, SRD_WS, S_G)) for j in jorder[NG1:]]
    lu = [('u', stage(j, LU, SRD_WS, S_U)) for j in range(8)]
    late = lg[:4] + lu[:4] + lg[4:6] + lu[4:] + lg[6:]
    rows_done = set(); inited = set(); finished = set(); ureads = [t for t in range(0, 32, 2)]
    def done_at(t):
        return max(porder.index(s2 >> 1) for s2 in range(t, t + 31))
    ureads.sort(key=lambda t: min(done_at(t), done_at(t + 1)))
    uissued = {}; udone = False; pending_fin = []
    for n in range(NP):
        p = porder[n]
        stamp(A, f'cv{n}')
        for _ in range(2 if n < 6 else 1):
            if late:
                tag, code = late.pop(0); A.ext(code); vm.issue(tag)
        tags = [('g', n), ('p', n)] + [('u', t & ~1) for t in pending_fin]
        A(f"s_waitcnt lgkmcnt({min(min(need(x) for x in tags), 15)})")
        fl = []
        for t in pending_fin: fl += finish(t)
        nfin = list(pending_fin); pending_fin = []
        body = []
        for hh in range(2):
            s_ = 2 * p + hh
            g = gn[hh]; pr = par[n % 4].sub(2*hh, 2); raw = gr[2*(n % 4) + hh]
            body += [f"v_lshlrev_b32 {g[0]}, 16, {raw}", f"v_and_b32 {g[1]}, {msk}, {raw}",
                     f"v_pk_fma_f32 {g}, {g}, {pr}, {pr} op_sel:[0,0,1] op_sel_hi:[1,0,1]"]
        A.ext(body)
        if n + 2 < NP: A(pread(n + 2)); ds.append(('p', n + 2))
        if n + 3 < NP:
            gwait(n + 3); A(gread(n + 3)); ds.append(('g', n + 3))
        while ureads and min(done_at(ureads[0]), done_at(ureads[0] + 1)) <= n + 2:
            if not udone: A(f"s_waitcnt vmcnt({vm.need('u')})"); udone = True
            t = ureads.pop(0); A(uread(t)); ds.append(('u', t))
        body = []
        for hh in range(2):
            s_ = 2 * p + hh; g = gn[hh]
            for t in range(max(0, s_ - 30), min(31, s_) + 1):
                i = s_ - t; a_ = acc.sub(2*t, 2); w_ = wp.sub(2*i, 2)
                if t not in inited: body.append(f"v_pk_mul_f32 {a_}, {g}, {w_}"); inited.add(t)
                else: body.append(f"v_pk_fma_f32 {a_}, {g}, {w_}, {a_}")
            rows_done.add(s_)
        if fl:
            A.ext(interleave(body, fl) if len(body) >= 2 else body + fl)
            for t in nfin: ds.append(('w', t))
        else: A.ext(body)
        for t in range(32):
            if t not in finished and all(s2 in rows_done for s2 in range(t, t + 31)):
                finished.add(t); pending_fin.append(t)
    assert not late and not ureads
    A("s_waitcnt lgkmcnt(0)")
    for t in pending_fin: A.ext(finish(t))
    assert len(finished) == 32
    stamp(A, 2)
    A(f"v_and_b32 {t0}, 31, {l}", f"v_mul_u32_u24 {t0}, 264, {t0}", f"v_lshrrev_b32 {t1}, 5, {l}", f"v_lshl_add_u32 {t0}, {t1}, 3, {t0}")
    A(f"s_add_u32 s53, s{S_LB}, {UCB}", f"v_add_u32 {vlr}, s53, {t0}")
    A("s_waitcnt lgkmcnt(0)")
    for k in range(8):
        A(f"ds_read2_b64 {wp.sub(4*k,4)}, {vlr} offset0:{4*k} offset1:{4*k+2}")
    A(f"s_lshl_b32 s53, s{S_W}, 13", f"s_add_u32 s{S_DST}, s{S_DST}, s53")
    for k in range(8):
        A(f"s_waitcnt lgkmcnt({7-k})")
        if k % 4 == 0: A(f"s_add_u32 s{S_T}, s{S_DST}, {k*1024}")
        A(f"buffer_store_dwordx4 {wp.sub(4*k,4)}, {r['l16']}, {SRDW}, s{S_T} offen offset:{(k % 4)*1024} ; st:uc")
    stamp_flush(A, 1, SRD_WS, ab[0], ab[1])
    A("L_EXIT_p2:")
    A("s_endpgm")
    return A, max(V.hi, hi_gemm), 128
```

```python
import sys, importlib
from common import *
import p1

STMAP = {}
ENDWAIT = True
FAKE16 = ()
def finish(A, name, hi, accum=None, agprs=0):
    L2 = []
    for l in A.L:
        if '; st:' in l:
            body, cls = l.split('; st:')
            l = body.rstrip() + (' ' + STMAP[cls.strip()] if STMAP.get(cls.strip()) else '')
        L2.append(l)
    A.L = L2
    if ENDWAIT:
        L2 = []
        for l in A.L:
            if l.strip() == 's_endpgm': L2.append('s_waitcnt vmcnt(0)')
            L2.append(l)
        A.L = L2
    if FAKE16 and name in FAKE16:
        import re
        L2 = []
        for l in A.L:
            m = re.match(r"v_mfma_f32_32x32x16_bf16 v\[(\d+):(\d+)\], (\S+), (\S+), (\S+)$", l.strip())
            if m:
                d = int(m.group(1))
                for q in range(2):
                    c = '0' if m.group(5) == '0' else f"v[{d+4*q}:{d+4*q+3}]"
                    L2.append(f"v_mfma_f32_16x16x32_bf16 v[{d+4*q}:{d+4*q+3}], {m.group(3).rstrip(',')}, {m.group(4).rstrip(',')}, {c}")
            else: L2.append(l)
        A.L = L2
    lines, added = fix_hazards(A.L)
    vg = (hi + 7) // 8 * 8
    if agprs:
        acc = (hi + 3) // 4 * 4; total = acc + agprs
    else:
        acc = min(256, (hi + 3) // 4 * 4); total = hi
    head = f".globl {name}\n.p2align 8\n.type {name},@function\n{name}:\n"
    return head + "\n".join(lines) + "\n" + kd(name, total, acc), added

def build(parts, header):
    out = header + '.amdgcn_target "amdgcn-amd-amdhsa--gfx950"\n.text\n'
    for name, (A, hi, ag) in parts:
        txt, added = finish(A, name, hi, agprs=ag)
        n = sum(1 for l in A.L if l.strip() and not l.strip().endswith(':') and not l.strip().startswith(';'))
        print(f"{name}: {n} instructions, {added} hazard nops added, vgpr hi {hi}, agpr {ag}", file=sys.stderr)
        out += txt
    return out

if __name__ == '__main__':
    A, hi = p1.build()
    src = build([('p1_kernel', (A, hi, 0))], "; @launch kernel=p1_kernel grid=(256,1,1) block=(256,1,1) lds=163840\n")
    open('p1_only.s', 'w').write(src)
```

```python
from common import *
import common

S_W, S_WT, S_WF, S_T0 = 28, 29, 30, 31
SRD_X = 32; SRD_W = [36, 40, 44]; SRD_WS = 48; SRD_DBG = 52
S_KW = [56, 57, 58]; S_KSTEP = [59, 60, 61]; S_KX = 62; S_M0X = 63; S_M0W = 64
S_XM = 66
S_I = 68; S_CT = 69
S_DSTA = 70; S_DSTB = 71; S_SCA = 72
S_SH = [73, 74, 75]
S_T = 80
S_C2 = 90
S_CNT = 79
S_GST = 76

XREG, WREG = 0, 65536
XST_B, WST_B = 16384, 24576

def lane_setup(A, V, r):
    A(f"v_and_b32 {r['lane']}, 63, v0")
    A(f"v_lshrrev_b32 {r['t0']}, 6, v0")
    A("s_nop 0")
    A(f"v_readfirstlane_b32 s{S_W}, {r['t0']}")
    A(f"s_lshr_b32 s{S_WT}, s{S_W}, 1")
    A(f"s_and_b32 s{S_WF}, s{S_W}, 1")

def dma_addr_setup(A, r, nslots):
    l = r['lane']; t0, t1, t2, t3 = r['t0'], r['t1'], r['t2'], r['t3']
    A(f"v_lshrrev_b32 {t0}, 3, {l}")
    A(f"v_lshrrev_b32 {t1}, 4, {l}")
    A(f"v_and_b32 {t2}, 7, {l}")
    A(f"v_xor_b32 {t3}, {t2}, {t1}")
    A(f"s_lshl_b32 s{S_T}, s{S_W}, 5")
    A(f"v_add_u32 {t0}, s{S_T}, {t0}")
    for j in range(4):
        d = r['vx_dma'][j]
        A(f"v_add_u32 {d}, {8*j}, {t0}")
        A(f"v_lshlrev_b32 {d}, 10, {d}")
        if j % 2 == 0: A(f"v_lshl_add_u32 {d}, {t3}, 4, {d}")
        else:
            A(f"v_xor_b32 {t1}, 4, {t3}")
            A(f"v_lshl_add_u32 {d}, {t1}, 4, {d}")
    A(f"v_lshrrev_b32 {t0}, 3, {l}")
    A(f"s_lshl_b32 s{S_T}, s{S_W}, 4")
    A(f"v_add_u32 {t0}, s{S_T}, {t0}")
    A(f"v_lshrrev_b32 {t1}, 4, {l}")
    A(f"v_and_b32 {t1}, 1, {t1}")
    A(f"v_lshlrev_b32 {t1}, 2, {t1}")
    A(f"v_xor_b32 {t1}, {t1}, {t2}")
    A(f"v_lshlrev_b32 {t1}, 4, {t1}")
    for p in range(nslots):
        for j in range(2):
            d = r['vw_dma'][2*p+j]
            A(f"v_add_u32 {d}, {8*j}, {t0}")
            A(f"v_lshlrev_b32 {d}, s{S_SH[p]}, {d}")
            A(f"v_add_u32 {d}, {d}, {t1}")
    A(f"s_lshl_b32 s{S_M0X}, s{S_W}, 12")
    A(f"s_lshl_b32 s{S_M0W}, s{S_W}, 11")
    A(f"s_add_u32 s{S_M0W}, s{S_M0W}, {WREG}")
    for p in range(nslots):
        A(f"s_mov_b32 s{S_KW[p]}, 0")
        A(f"s_lshl_b32 s{S_KSTEP[p]}, 64, s{S_SH[p]}")

def read_addr_setup(A, r, frs):
    l = r['lane']; t0, t1, t2, t3 = r['t0'], r['t1'], r['t2'], r['t3']
    A(f"v_and_b32 {t0}, 31, {l}")
    A(f"v_lshrrev_b32 {t1}, 1, {t0}")
    A(f"v_and_b32 {t1}, 7, {t1}")
    A(f"v_lshrrev_b32 {t2}, 5, {l}")
    A(f"s_lshl_b32 s{S_T}, s{S_WT}, 6")
    A(f"v_add_u32 {t0}, s{S_T}, {t0}")
    A(f"v_lshlrev_b32 {t0}, 7, {t0}")
    for s_ in range(4):
        d = r['vx_rd'][s_]
        A(f"v_or_b32 {t3}, {2*s_}, {t2}")
        A(f"v_xor_b32 {t3}, {t3}, {t1}")
        A(f"v_lshl_add_u32 {d}, {t3}, 4, {t0}")
    A(f"v_and_b32 {t0}, 15, {l}")
    A(f"v_lshrrev_b32 {t1}, 2, {t0}")
    A(f"v_lshl_add_u32 {t1}, {t2}, 3, {t1}")
    A(f"v_lshlrev_b32 {t1}, 7, {t1}")
    A(f"v_and_b32 {t3}, 1, {t0}")
    A(f"v_lshl_add_u32 {t1}, {t3}, 3, {t1}")
    A(f"v_bfe_u32 {t3}, {l}, 4, 1")
    A(f"v_lshlrev_b32 {t3}, 1, {t3}")
    A(f"v_bfe_u32 {t2}, {t0}, 1, 1")
    A(f"v_or_b32 {t3}, {t3}, {t2}")
    A(f"v_bfe_u32 {t2}, {t0}, 3, 1")
    A(f"v_lshlrev_b32 {t2}, 2, {t2}")
    A(f"v_xor_b32 {t3}, {t3}, {t2}")
    for k, (slot, e) in enumerate(frs):
        for half in range(2):
            d = r['vw_rd'][2*k+half]
            if e == 'wf':
                A(f"s_lshl_b32 s{S_T}, s{S_WF}, 2")
                A(f"v_xor_b32 {d}, s{S_T}, {t3}")
            else:
                A(f"v_xor_b32 {d}, {4*e}, {t3}")
            A(f"v_lshl_add_u32 {d}, {d}, 4, {t1}")
            if slot == 'wf':
                A(f"s_lshl_b32 s{S_T}, s{S_WF}, 13")
                A(f"s_add_u32 s{S_T}, s{S_T}, {WREG + half * 2 * WST_B}")
                A(f"v_add_u32 {d}, s{S_T}, {d}")
            else:
                A(f"v_add_u32 {d}, {WREG + half * 2 * WST_B + slot * 8192}, {d}")

def dma_chunk(r, c, nslots, masked):
    st = c & 3; G = []
    G.append([f"s_mov_b32 s{S_KX}, {c*128}"])
    for j in range(4):
        g = [f"s_add_u32 m0, s{S_M0X}, {st*XST_B + j*1024}"]
        if j == 3 and masked: g.append(f"s_mov_b64 exec, s[{S_XM}:{S_XM+1}]")
        else: g.append("s_nop 0")
        g.append(f"buffer_load_dwordx4 {r['vx_dma'][j]}, s[{SRD_X}:{SRD_X+3}], s{S_KX} offen lds")
        if j == 3 and masked: g.append("s_mov_b64 exec, -1")
        G.append(g)
    for p in range(nslots):
        for j in range(2):
            G.append([f"s_add_u32 m0, s{S_M0W}, {st*WST_B + p*8192 + j*1024}", "s_nop 0",
                      f"buffer_load_dwordx4 {r['vw_dma'][2*p+j]}, s[{SRD_W[p]}:{SRD_W[p]+3}], s{S_KW[p]} offen lds"])
        G.append([f"s_add_u32 s{S_KW[p]}, s{S_KW[p]}, s{S_KSTEP[p]}"])
    return G

def frag_reads(r, g, nf):
    c, s_ = g >> 2, g & 3; st = c & 3; b = g & 1
    L = [f"ds_read_b128 {r['fx'][b][0]}, {r['vx_rd'][s_]} offset:{st*XST_B}"]
    for k in range(nf):
        for u in range(2):
            off = (st & 1) * WST_B + (16*s_ + 4*u) * 128
            L.append(f"ds_read_b64_tr_b16 {r['fw'][b][k].sub(2*u, 2)}, {r['vw_rd'][2*k + (st >> 1)]} offset:{off}")
        if k == 0:
            L.append(f"ds_read_b128 {r['fx'][b][1]}, {r['vx_rd'][s_]} offset:{st*XST_B + 4096}")
    return L

def main_loop(A, r, nf, nslots, masked, w_is_a, hooks):
    vm = hooks.get('vm') or VM()
    stamp(A, 'setup')
    def emit(lines, tag=None):
        for x in lines:
            A(x)
            if is_vmem(x): vm.issue(tag)
    PD = common.PD1
    for c in range(PD):
        for g in dma_chunk(r, c, nslots, masked): emit(g, ('c', c))
        if c == 0 and 'mid' in hooks: emit(hooks['mid'](vm), 'mid')
    stamp(A, 'issued')
    if 'pre' in hooks: emit(hooks['pre'](vm), 'cond')
    A(f"s_waitcnt vmcnt({vm.need(('c', 0))}) lgkmcnt(0)")
    A("s_barrier")
    stamp(A, 1)
    A.ext(frag_reads(r, 0, nf))
    for c in range(8):
        dm = dma_chunk(r, c + PD, nslots, masked) if c + PD < 8 else []
        extra = [[x] for x in hooks.get(('chunk', c), [])]
        share = [dm[(len(dm) * q) // 4:(len(dm) * (q + 1)) // 4] for q in range(4)]
        share[0] = extra + share[0]
        for s_ in range(4):
            g = 4 * c + s_; b = g & 1
            M = []
            for k in range(nf):
                for tb in range(2):
                    acc = r['acc'][k][tb]
                    x, w = r['fx'][b][tb], r['fw'][b][k]
                    M.append(mfma(acc, w if w_is_a else x, x if w_is_a else w, '0' if g == 0 else None))
            if ('step', g) in hooks: emit(hooks[('step', g)](vm), ('step', g))
            if ('post', g) in hooks: emit(hooks[('post', g)](), 'cond')
            A("s_waitcnt lgkmcnt(0)")
            rd = [[x] for x in frag_reads(r, g + 1, nf)] if g + 1 < 32 else []
            if s_ == 3 and c < 7:
                A(M[0]); A(M[1])
                A(f"s_waitcnt vmcnt({vm.need(('c', c + 1))})")
                A("s_barrier")
                seq = spread(M[2:], rd + share[3])
            else:
                nm = len(M)
                seq = spread(M, rd, 0, nm - 2)
                pos = [i for i, x in enumerate(seq) if x.startswith('v_mfma')]
                groups = share[s_]; out = []; k = 0
                for i, x in enumerate(seq):
                    out.append(x)
                    if i + 1 in pos or i == len(seq) - 1:
                        done = sum(1 for p in pos if p <= i)
                        tgt = (len(groups) * done + nm - 1) // nm
                        while k < tgt: out += groups[k]; k += 1
                for gq in groups[k:]: out += gq
                seq = out
            tagc = ('c', c + PD)
            for x in seq:
                A(x)
                if is_vmem(x): vm.issue(tagc if ' lds' in x else 'other')
    stamp(A, 2)

def cs_reads(r, k, dst):
    base = r['vcsA'] if k < 2 else r['vcsB']
    return [f"ds_read_b128 {dst.sub(4*q,4)}, {base} offset:{(128*k if k < 2 else 0) + 32*q}" for q in range(4)]

def correct_lines(acc, ab, cs):
    L = [f"v_pk_mul_f32 {acc.sub(2*i,2)}, {acc.sub(2*i,2)}, {ab} op_sel:[0,0] op_sel_hi:[1,0]" for i in range(8)]
    L += [f"v_pk_fma_f32 {acc.sub(2*i,2)}, {cs.sub(2*i,2)}, {ab}, {acc.sub(2*i,2)} op_sel:[0,1,0] op_sel_hi:[1,1,1]" for i in range(8)]
    return L

def gelu_lines(r, y):
    t = r['tmp']; one = r['one2']; c1 = r['c1']; P = range(8)
    L = [f"v_pk_mul_f32 {t.sub(2*i,2)}, {y.sub(2*i,2)}, {y.sub(2*i,2)}" for i in P]
    L += [f"v_pk_fma_f32 {t.sub(2*i,2)}, {t.sub(2*i,2)}, s[{S_C2}:{S_C2+1}], {c1}" for i in P]
    L += [f"v_pk_mul_f32 {t.sub(2*i,2)}, {t.sub(2*i,2)}, {y.sub(2*i,2)}" for i in P]
    L += [f"v_exp_f32 {t[i]}, {t[i]}" for i in range(16)]
    L += [f"v_pk_add_f32 {t.sub(2*i,2)}, {t.sub(2*i,2)}, {one}" for i in P]
    L += [f"v_rcp_f32 {t[i]}, {t[i]}" for i in range(16)]
    L += [f"v_pk_mul_f32 {y.sub(2*i,2)}, {y.sub(2*i,2)}, {t.sub(2*i,2)}" for i in P]
    return L

def pack_lines(acc, dst):
    return [f"v_cvt_pk_bf16_f32 {dst[i]}, {acc[2*i]}, {acc[2*i+1]}" for i in range(8)]

def gstat_lines(y, st, first):
    s1, s2 = st.sub(0, 2), st.sub(2, 2); L = []
    for i in range(8):
        p = y.sub(2*i, 2)
        if first and i == 0:
            L.append(f"v_pk_mul_f32 {s2}, {p}, {p}")
        elif first and i == 1:
            L += [f"v_pk_add_f32 {s1}, {y.sub(0,2)}, {p}", f"v_pk_fma_f32 {s2}, {p}, {p}, {s2}"]
        else:
            L += [f"v_pk_add_f32 {s1}, {s1}, {p}", f"v_pk_fma_f32 {s2}, {p}, {p}, {s2}"]
    return L

def gstat_store(r, st, tb):
    a, b = st.sub(0, 2), st.sub(2, 2)
    return [f"v_add_f32 {a[0]}, {a[0]}, {a[1]}", f"v_add_f32 {a[1]}, {b[0]}, {b[1]}",
            f"v_mov_b32 {b[0]}, {a[0]}", f"v_mov_b32 {b[1]}, {a[1]}",
            f"v_permlane32_swap_b32 {a[0]}, {b[0]}", f"v_permlane32_swap_b32 {a[1]}, {b[1]}",
            f"v_pk_add_f32 {a}, {a}, {b}",
            f"buffer_store_dwordx2 {a}, {r['vgst'][tb]}, s[{SRD_WS}:{SRD_WS+3}], s{S_GST} offen"]

def gel_stores(r, d, tb, sdst, extra):
    L = []
    for q in range(2):
        L += [f"v_permlane32_swap_b32 {d[4*q]}, {d[4*q+2]}", f"v_permlane32_swap_b32 {d[4*q+1]}, {d[4*q+3]}"]
    L.append(f"s_add_u32 s{S_T}, s{sdst}, {extra}")
    for q in range(2):
        L.append(f"buffer_store_dwordx4 {d.sub(4*q,4)}, {r['vgel'][tb]}, s[{SRD_WS}:{SRD_WS+3}], s{S_T} offen offset:{q*32} ; st:ug")
    return L

def epilogue_mixed(A, r, pk):
    pool = r['pool']; cs, tmp = r['cs'], r['tmp']
    A.ext(cs_reads(r, 0, cs)); A.ext(cs_reads(r, 1, tmp))
    deferred = []
    for k in range(2):
        A(f"s_waitcnt lgkmcnt({4 if k == 0 else 4})")
        for tb in range(2):
            acc = r['acc'][k][tb]; d = pool.sub(8 * (2*k + tb), 8)
            A.ext(correct_lines(acc, r['abs'][tb], cs if k == 0 else tmp))
            A.ext(pack_lines(acc, d))
            for hf in range(2):
                deferred.append([f"s_add_u32 s{S_T+2}, s{S_DSTA}, {k*2048 + tb*32768}",
                                 f"buffer_store_dwordx4 {d.sub(4*hf,4)}, {r['vlin']}, s[{SRD_WS}:{SRD_WS+3}], s{S_T+2} offen offset:{hf*1024} ; st:lin"])
        if k == 0: A.ext(cs_reads(r, 2, cs))
    stamp(A, 'lin')
    A("s_waitcnt lgkmcnt(0)")
    lab = A.label('nog')
    for tb in range(2):
        acc = r['acc'][2][tb]; d = pk[tb]
        body = correct_lines(acc, r['ab'][tb], cs) + gelu_lines(r, acc)
        A.ext(spread(body, deferred[4*tb:4*tb+4]))
        A.ext(pack_lines(acc, d))
        A.ext(gel_stores(r, d, tb, S_DSTB, 0))
    A(f"s_cmp_lt_u32 s{S_CT}, 8", f"s_cbranch_scc1 {lab}")
    for tb in range(2):
        st = r['gst'][tb]
        A.ext(gstat_lines(r['acc'][2][tb], st, True)); A.ext(gstat_store(r, st, tb))
    A(f"{lab}:")
    stamp(A, 'gel')

def epilogue_g(A, r, pk):
    cs, cs2 = r['cs'], r['pool'].sub(0, 16)
    A.ext(cs_reads(r, 0, cs)); A.ext(cs_reads(r, 1, cs2))
    for k in range(2):
        A(f"s_waitcnt lgkmcnt({4 if k == 0 else 0})")
        for tb in range(2):
            acc = r['acc'][k][tb]; d = pk[tb]
            A.ext(correct_lines(acc, r['ab'][tb], cs if k == 0 else cs2)); A.ext(gelu_lines(r, acc))
            A.ext(pack_lines(acc, d))
            A.ext(gel_stores(r, d, tb, S_DSTA, 64 * k))
            A.ext(gstat_lines(acc, r['gst'][tb], k == 0))
    for tb in range(2): A.ext(gstat_store(r, r['gst'][tb], tb))

def build(name='p1_kernel'):
    A = KAsm('p1')
    V = Alloc('v', 1, 256)
    r = {}
    for n in ['lane', 't0', 't1', 't2', 't3', 'vlin', 'vcsA', 'vcsB', 'vpoll', 'vz']: r[n] = V(1)
    r['vx_dma'] = V(4, 1); r['vw_dma'] = V(6, 1); r['vx_rd'] = V(4, 1); r['vw_rd'] = V(6, 1)
    r['vgel'] = V(2, 1)
    r['ab'] = [V(2), V(2)]; r['abs'] = [V(2), V(2)]
    r['one2'] = V(2); r['c1'] = V(2)
    r['acc'] = [[V(16, 4), V(16, 4)] for _ in range(3)]
    r['fx'] = [[V(4), V(4)] for _ in range(2)]
    r['fw'] = [[V(4) for _ in range(3)] for _ in range(2)]
    r['pool'] = R('v', r['fx'][0][0].idx, 40)
    assert r['fw'][1][2].idx + 4 == r['pool'].idx + 40
    r['gst'] = [r['pool'].sub(32, 4), r['pool'].sub(36, 4)]
    r['vgst'] = V(2, 1)
    r['cs'] = V(16, 4); r['tmp'] = V(16, 4)
    pk = [V(8, 4), V(8, 4)]
    st64 = V(0 + 16, 4)
    prologue(A, 256)
    stamp(A, 0)
    lane_setup(A, V, r)
    A("s_and_b32 s80, s2, 7")
    A("s_lshr_b32 s81, s2, 3")
    A("s_cmp_lt_u32 s81, 4")
    A("s_cbranch_scc1 L_p1_weights")
    A("s_sub_u32 s81, s81, 4")
    A("s_and_b32 s82, s80, 3", "s_lshl_b32 s82, s82, 2", "s_and_b32 s83, s81, 3", f"s_add_u32 s{S_I}, s82, s83")
    A("s_lshr_b32 s82, s80, 2", "s_mul_i32 s82, s82, 7", "s_lshr_b32 s83, s81, 2", f"s_add_u32 s{S_CT}, s82, s83")
    A(f"s_cmp_lt_u32 s{S_CT}, 12", f"s_cselect_b32 s{S_SH[0]}, 10, 11", f"s_mov_b32 s{S_SH[1]}, s{S_SH[0]}", f"s_mov_b32 s{S_SH[2]}, 11")
    dma_addr_setup(A, r, 3)
    A(f"s_mov_b32 s{S_XM}, -1", f"s_cmp_eq_u32 s{S_W}, 3", f"s_cselect_b32 s{S_XM+1}, 0xff, -1")
    A(f"s_mul_i32 s82, s{S_I}, {125*1024}")
    A("s_waitcnt lgkmcnt(0)")
    stamp(A, 'karg')
    srd(A, SRD_X, 'x', 125*1024, off_sgpr='s82')
    A(f"s_cmp_ge_u32 s{S_CT}, 12")
    A("s_cbranch_scc1 L_p1_setup_g")
    for p in range(2):
        A(f"s_lshl_b32 s82, s{S_CT}, 1", f"s_add_u32 s82, s82, {p}")
        A("s_cmp_lt_u32 s82, 16", f"s_cselect_b64 s[84:85], s[{SP['wk']}:{SP['wk']+1}], s[{SP['wv']}:{SP['wv']+1}]")
        A("s_cmp_lt_u32 s82, 8", f"s_cselect_b64 s[84:85], s[{SP['wq']}:{SP['wq']+1}], s[84:85]")
        A("s_and_b32 s83, s82, 7", "s_lshl_b32 s83, s83, 7")
        A("s_sub_u32 s86, 0x80000, s83")
        srd(A, SRD_W[p], 84, 's86', off_sgpr='s83')
    A(f"s_lshl_b32 s83, s{S_CT}, 7", "s_sub_u32 s86, 0x100000, s83")
    srd(A, SRD_W[2], 'wup', 's86', off_sgpr='s83')
    A("s_branch L_p1_srd_done")
    A("L_p1_setup_g:")
    for p in range(3):
        pp = p if p < 2 else 0
        A(f"s_sub_u32 s82, s{S_CT}, 12", "s_lshl_b32 s82, s82, 1", f"s_add_u32 s82, s82, {12 + pp}", "s_lshl_b32 s83, s82, 7")
        A("s_sub_u32 s86, 0x100000, s83")
        srd(A, SRD_W[p], 'wup', 's86', off_sgpr='s83')
    A("L_p1_srd_done:")
    l = r['lane']; t0, t1, t2, t3 = r['t0'], r['t1'], r['t2'], r['t3']
    def late_setup():
        B = KAsm('p1x')
        srd(B, SRD_WS, 'ws', WS_END)
        srd(B, SRD_DBG, 'dbg', 256)
        B(f"s_cmp_ge_u32 s{S_CT}, 12", "s_cbranch_scc1 L_p1_dst_g")
        B(f"s_lshl_b32 s82, s{S_CT}, 1", f"s_add_u32 s82, s82, s{S_WF}")
        B("s_lshr_b32 s83, s82, 3", "s_lshl_b32 s83, s83, 21", "s_and_b32 s84, s82, 7", "s_lshl_b32 s84, s84, 12")
        B(f"s_add_u32 s{S_DSTA}, s83, s84")
        B("s_cmp_lt_u32 s82, 8", f"s_cselect_b32 s{S_SCA}, {hexf(QSCALE)}, 1.0")
        B(f"s_lshr_b32 s83, s{S_CT}, 3", f"s_mul_i32 s83, s83, {GB - UB}", f"s_and_b32 s84, s{S_CT}, 7", "s_lshl_b32 s84, s84, 7")
        B("s_add_u32 s83, s83, s84", f"s_lshl_b32 s84, s{S_WF}, 6", "s_add_u32 s83, s83, s84", f"s_add_u32 s{S_DSTB}, s83, {hex(UB)}")
        B(f"s_sub_u32 s83, s{S_CT}, 8", "s_lshl_b32 s83, s83, 1", f"s_add_u32 s83, s83, s{S_WF}", "s_lshl_b32 s83, s83, 14", f"s_add_u32 s{S_GST}, s83, {hex(GST)}")
        B("s_branch L_p1_dst_done")
        B("L_p1_dst_g:")
        B(f"s_sub_u32 s82, s{S_CT}, 12", "s_lshl_b32 s82, s82, 1", f"s_add_u32 s82, s82, s{S_WF}", "s_add_u32 s82, s82, 12")
        B("s_and_b32 s84, s82, 7", "s_lshl_b32 s84, s84, 7", f"s_add_u32 s{S_DSTA}, s84, {hex(GB)}")
        B(f"s_mov_b32 s{S_DSTB}, 0", f"s_mov_b32 s{S_SCA}, 1.0")
        B(f"s_sub_u32 s83, s{S_CT}, 12", "s_lshl_b32 s83, s83, 1", f"s_add_u32 s83, s83, s{S_WF}", "s_add_u32 s83, s83, 8", "s_lshl_b32 s83, s83, 14", f"s_add_u32 s{S_GST}, s83, {hex(GST)}")
        B("L_p1_dst_done:")
        B(f"v_lshrrev_b32 {t0}, 3, {l}", f"v_add_u32 {t0}, 125, {t0}", f"v_lshlrev_b32 {t0}, 7, {t0}")
        B(f"v_and_b32 {t1}, 7, {l}", f"v_lshl_add_u32 {t0}, {t1}, 4, {t0}")
        B(f"s_lshl_b32 s{S_T}, s{S_W}, 14", f"v_add_u32 {t0}, s{S_T}, {t0}")
        ones = r['tmp'].sub(0, 4)
        for q in range(4): B(f"v_mov_b32 {ones[q]}, 0x3f803f80")
        B(f"v_cmp_gt_u32 vcc, 24, {l}", "s_and_saveexec_b64 s[92:93], vcc", f"ds_write_b128 {t0}, {ones}", "s_mov_b64 exec, s[92:93]")
        read_addr_setup(B, r, [('wf', 0), ('wf', 1), (2, 'wf')])
        B(f"s_lshl_b32 s82, s{S_I}, 2", f"s_lshl_b32 s83, s{S_WT}, 1", "s_add_u32 s82, s82, s83", "s_lshl_b32 s82, s82, 15")
        B(f"v_lshlrev_b32 {r['vlin']}, 4, {l}", f"v_add_u32 {r['vlin']}, s82, {r['vlin']}")
        B(f"v_lshrrev_b32 {t2}, 5, {l}", f"v_lshlrev_b32 {t2}, 4, {t2}")
        B(f"s_lshl_b32 s82, s{S_WF}, 8", f"v_add_u32 {r['vcsA']}, s82, {t2}")
        B(f"s_lshl_b32 s82, s{S_WF}, 7", "s_add_u32 s82, s82, 512", f"v_add_u32 {r['vcsB']}, s82, {t2}")
        B(f"v_and_b32 {t0}, 31, {l}", f"s_lshl_b32 s82, s{S_WT}, 6", f"v_add_u32 {t0}, s82, {t0}")
        B(f"s_mul_i32 s83, s{S_I}, 125")
        for tb in range(2):
            B(f"v_add_u32 {t1}, {32*tb}, {t0}")
            B(f"v_add_u32 {t3}, s83, {t1}", f"v_lshlrev_b32 {t3}, 10, {t3}", f"v_add_u32 {t3}, {t3}, {t2}")
            B(f"v_cmp_gt_u32 vcc, 125, {t1}", f"v_mov_b32 {r['vgel'][tb]}, {hex(OOB)}", f"v_cndmask_b32 {r['vgel'][tb]}, {r['vgel'][tb]}, {t3}, vcc")
            B(f"v_add_u32 {t3}, s83, {t1}", f"v_lshlrev_b32 {t3}, 3, {t3}", f"v_cmp_eq_u32 s[84:85], 0, {t2}", "s_and_b64 vcc, vcc, s[84:85]")
            B(f"v_mov_b32 {r['vgst'][tb]}, {hex(OOB)}", f"v_cndmask_b32 {r['vgst'][tb]}, {r['vgst'][tb]}, {t3}, vcc")
        B(f"s_lshl_b32 s82, s{S_I}, 10", f"s_add_u32 s82, s82, {hex(XST)}", f"v_lshlrev_b32 {r['vz']}, 3, {t0}", f"v_add_u32 {r['vz']}, s82, {r['vz']}")
        B(f"s_lshl_b32 s82, s{S_I}, 2", f"v_mov_b32 {r['vpoll']}, s82")
        B(f"v_mov_b32 {r['one2'][0]}, 1.0", f"v_mov_b32 {r['one2'][1]}, 1.0")
        c1 = -2.0 * LOG2E * 0.7978845608028654
        B(f"v_mov_b32 {r['c1'][0]}, {hexf(c1)}", f"v_mov_b32 {r['c1'][1]}, {hexf(c1)}")
        B(f"s_mov_b32 s{S_C2}, {hexf(c1*0.044715)}", f"s_mov_b32 s{S_C2+1}, {hexf(c1*0.044715)}")
        return B.L
    pollv = r['t0']
    poll = [f"buffer_load_dword {pollv}, {r['vpoll']}, s[{SRD_DBG}:{SRD_DBG+3}], 0 offen sc1"]
    lp, lq = A.label('poll'), A.label('pollok')
    check = ["s_waitcnt vmcnt(0)", f"v_readfirstlane_b32 s{S_T+1}, {pollv}", "s_nop 3", f"s_cmp_ge_u32 s{S_T+1}, 2", f"s_cbranch_scc1 {lq}",
             f"s_mov_b32 s{S_CNT}, 0x40000", f"{lp}:", "s_sleep 4",
             f"buffer_load_dword {pollv}, {r['vpoll']}, s[{SRD_DBG}:{SRD_DBG+3}], 0 offen sc1", "s_waitcnt vmcnt(0)",
             f"v_readfirstlane_b32 s{S_T+1}, {pollv}", f"s_sub_u32 s{S_CNT}, s{S_CNT}, 1", "s_nop 2", f"s_cmp_eq_u32 s{S_CNT}, 0", f"s_cbranch_scc1 {lq}",
             f"s_cmp_ge_u32 s{S_T+1}, 2", f"s_cbranch_scc0 {lp}", f"{lq}:",
             f"buffer_load_dwordx2 {r['ab'][0]}, {r['vz']}, s[{SRD_WS}:{SRD_WS+3}], 0 offen sc1",
             f"buffer_load_dwordx2 {r['ab'][1]}, {r['vz']}, s[{SRD_WS}:{SRD_WS+3}], 0 offen offset:256 sc1"]
    def warm():
        B = KAsm('p1w')
        npc = (common.P2_BYTES + 1023) // 1024 if common.WARMCODE else 0
        B("s_lshr_b32 s82, s2, 3", "s_sub_u32 s82, s82, 4", "s_lshl_b32 s82, s82, 2", f"s_add_u32 s82, s82, s{S_W}")
        B(f"v_lshlrev_b32 {t1}, 4, {l}")
        if npc:
            B(f"s_cmp_ge_u32 s82, {npc}", "s_cbranch_scc1 L_p1_warm_dw")
            B("s_getpc_b64 s[84:85]", "L_p1_warm_pc:", "s_add_u32 s84, s84, p2_kernel-L_p1_warm_pc", "s_addc_u32 s85, s85, 0")
            B("s_lshl_b32 s82, s82, 10", f"v_add_u32 {t1}, s82, {t1}", f"v_min_u32 {t1}, L_EXIT_p2-p2_kernel-16, {t1}")
            B(f"global_load_dwordx4 {st64.sub(0,4)}, {t1}, s[84:85]")
            B("s_branch L_p1_warm_done")
        B("L_p1_warm_dw:")
        B(f"s_sub_u32 s82, s82, {npc}", "s_lshl_b32 s82, s82, 10", f"v_add_u32 {t1}, s82, {t1}", f"v_min_u32 {t1}, {31*1024-16}, {t1}")
        B(f"global_load_dwordx4 {st64.sub(0,4)}, {t1}, s[{SP['dw']}:{SP['dw']+1}]")
        B("L_p1_warm_done:")
        return B.L
    main_loop(A, r, 3, 3, True, True, {('post', 30): warm, ('chunk', 6): poll, ('step', 29): lambda vm: check, 'mid': lambda vm: late_setup()})
    A(f"s_cmp_eq_u32 s{S_WT}, 0", "s_cbranch_scc1 L_p1_nocs")
    A("s_mov_b32 exec_lo, 0x20000000", "s_mov_b32 exec_hi, 0x20000000", "s_nop 7")
    for k in range(3):
        base = r['vcsA'] if k < 2 else r['vcsB']
        for q in range(4):
            A(f"ds_write_b128 {base}, {r['acc'][k][1].sub(4*q,4)} offset:{(128*k if k < 2 else 0) + 32*q}")
    A("s_mov_b64 exec, -1")
    A("L_p1_nocs:")
    A("s_waitcnt lgkmcnt(0)", "s_barrier", "s_waitcnt vmcnt(1)")
    stamp(A, 'cs')
    for tb in range(2):
        A(f"v_pk_mul_f32 {r['abs'][tb]}, {r['ab'][tb]}, s[{S_SCA}:{S_SCA+1}] op_sel_hi:[1,0]")
    A(f"s_cmp_ge_u32 s{S_CT}, 12", "s_cbranch_scc1 L_p1_epi_g")
    epilogue_mixed(A, r, pk)
    stamp_flush(A, 0, SRD_WS, r['ab'][0][0], r['ab'][0][1])
    A("s_endpgm")
    A("L_p1_epi_g:")
    epilogue_g(A, r, pk)
    stamp_flush(A, 0, SRD_WS, r['ab'][0][0], r['ab'][0][1])
    A("s_endpgm")
    A("L_p1_weights:")
    A("s_waitcnt lgkmcnt(0)")
    stamp(A, 'karg')
    srd(A, SRD_WS, 'ws', WS_END)
    srd(A, SRD_DBG, 'dbg', 256)
    A("s_lshl_b32 s81, s81, 3", "s_add_u32 s81, s81, s80")
    J = 78
    A(f"s_mov_b32 s{J}, s81")
    A(f"s_lshr_b32 s82, s{J}, 1", f"s_mov_b32 s{S_I}, s82", f"s_mul_i32 s82, s82, {125*1024}")
    srd(A, SRD_W[2], 'x', 125*1024, off_sgpr='s82')
    stv = [r['cs'], r['tmp'], R('v', pk[0].idx, 16), st64]
    assert pk[1].idx == pk[0].idx + 8
    A(f"s_and_b32 s83, s{J}, 1", "s_lshl_b32 s83, s83, 6", f"s_lshl_b32 s84, s{S_W}, 4", "s_add_u32 s83, s83, s84")
    rowv = r['vgel']
    for g2 in range(2):
        A(f"v_lshrrev_b32 {rowv[g2]}, 3, {l}", f"v_add_u32 {rowv[g2]}, s83, {rowv[g2]}")
        if g2: A(f"v_add_u32 {rowv[g2]}, 8, {rowv[g2]}")
    for g2 in range(2):
        A(f"v_lshlrev_b32 {t0}, 10, {rowv[g2]}", f"v_and_b32 {t1}, 7, {l}", f"v_lshl_add_u32 {t0}, {t1}, 4, {t0}")
        for jj in range(8):
            q = g2 * 8 + jj
            A(f"buffer_load_dwordx4 {stv[q//4].sub(4*(q%4),4)}, {t0}, s[{SRD_W[2]}:{SRD_W[2]+3}], 0 offen offset:{jj*128}")
        A("s_nop 0")
    A(f"s_lshr_b32 s82, s{J}, 4")
    A("s_cmp_eq_u32 s82, 0", f"s_cselect_b64 s[84:85], s[{SP['wao']}:{SP['wao']+1}], s[{SP['wdn']}:{SP['wdn']+1}]")
    A(f"s_lshr_b32 s83, s{J}, 2", "s_and_b32 s83, s83, 3", "s_lshl_b32 s83, s83, 17")
    srd(A, SRD_X, 84, 131072, off_sgpr='s83')
    for p in range(2):
        A(f"s_lshr_b32 s82, s{J}, 4", "s_lshl_b32 s82, s82, 19", f"s_and_b32 s83, s{J}, 3", "s_lshl_b32 s83, s83, 8")
        A(f"s_add_u32 s83, s83, {128*p}", "s_sub_u32 s86, 0x80000, s83", "s_add_u32 s83, s83, s82")
        srd(A, SRD_W[p], 'wm', 's86', off_sgpr='s83')
        A(f"s_mov_b32 s{S_SH[p]}, 10")
    dma_addr_setup(A, r, 2)
    read_addr_setup(A, r, [('wf', 0), ('wf', 1)])
    st = []
    a1, a2 = r['ab'][0], r['ab'][1]
    onesb = r['one2'][0]
    st.append(f"v_mov_b32 {onesb}, 0x3f803f80")
    st.append("WAITSTAT")
    for g2 in range(2):
        sm, sq = (a1[0], a1[1]) if g2 == 0 else (a2[0], a2[1])
        first = True
        for jj in range(8):
            q = g2 * 8 + jj
            for d in range(4):
                x = stv[q//4][4*(q%4) + d]
                st.append(f"v_dot2_f32_bf16 {sm}, {x}, {onesb}, {'0' if first else sm}")
                st.append(f"v_dot2_f32_bf16 {sq}, {x}, {x}, {'0' if first else sq}")
                first = False
    for mod in ["quad_perm:[1,0,3,2]", "quad_perm:[2,3,0,1]", "row_half_mirror"]:
        for x in (a1[0], a1[1], a2[0], a2[1]):
            st.append(f"v_add_f32_dpp {x}, {x}, {x} {mod} row_mask:0xf bank_mask:0xf")
    for g2, ab in enumerate((a1, a2)):
        st += [f"v_mul_f32 {ab[0]}, {hexf(1/512)}, {ab[0]}",
               f"v_mul_f32 {ab[1]}, {hexf(1/512)}, {ab[1]}",
               f"v_fma_f32 {ab[1]}, -{ab[0]}, {ab[0]}, {ab[1]}",
               f"v_max_f32 {ab[1]}, 0, {ab[1]}",
               f"v_add_f32 {ab[1]}, {hexf(1e-5)}, {ab[1]}",
               f"v_rsq_f32 {ab[1]}, {ab[1]}",
               f"v_mul_f32 {t1}, -{ab[0]}, {ab[1]}" if False else f"v_mul_f32 {t1}, {ab[0]}, {ab[1]}",
               f"v_sub_f32 {t1}, 0, {t1}",
               f"v_cmp_gt_u32 vcc, 125, {rowv[g2]}",
               f"v_cndmask_b32 {ab[0]}, 0, {ab[1]}, vcc",
               f"v_cndmask_b32 {ab[1]}, 0, {t1}, vcc",
               f"s_lshl_b32 s82, s{S_I}, 10", f"s_add_u32 s82, s82, {hex(XST)}",
               f"v_lshlrev_b32 {t0}, 3, {rowv[g2]}", f"v_add_u32 {t0}, s82, {t0}",
               f"v_and_b32 {t1}, 7, {l}", f"v_cmp_eq_u32 vcc, 0, {t1}", f"v_mov_b32 {t1}, {hex(OOB)}",
               f"v_cndmask_b32 {t0}, {t1}, {t0}, vcc",
               f"buffer_store_dwordx2 {ab}, {t0}, s[{SRD_WS}:{SRD_WS+3}], 0 offen sc1", "s_nop 1"]
    pub = [f"s_lshl_b32 s82, s{S_I}, 2", f"v_mov_b32 {t0}, s82", f"v_mov_b32 {t1}, 1",
           f"s_cmp_lg_u32 s{S_W}, 0", "s_cbranch_scc1 L_p1_nopub", "s_mov_b64 exec, 1",
           f"buffer_atomic_add {t1}, {t0}, s[{SRD_DBG}:{SRD_DBG+3}], 0 offen", "s_mov_b64 exec, -1", "L_p1_nopub:"]
    weights_loop(A, r, st, pub)
    A(f"s_lshr_b32 s82, s{J}, 4", "s_lshl_b32 s82, s82, 19", f"s_add_u32 s82, s82, {hex(WAMF)}")
    A(f"s_and_b32 s83, s{J}, 3", "s_lshl_b32 s83, s83, 2", f"s_lshl_b32 s84, s{S_WF}, 1", "s_add_u32 s83, s83, s84", "s_lshl_b32 s83, s83, 15")
    A("s_add_u32 s82, s82, s83")
    A(f"s_lshr_b32 s83, s{J}, 2", "s_and_b32 s83, s83, 3", "s_lshl_b32 s83, s83, 2", f"s_lshl_b32 s84, s{S_WT}, 1", "s_add_u32 s83, s83, s84", "s_lshl_b32 s83, s83, 11")
    A("s_add_u32 s82, s82, s83")
    A(f"v_lshlrev_b32 {r['vlin']}, 4, {l}")
    for k in range(2):
        for tb in range(2):
            d = pk[tb]
            A.ext(pack_lines(r['acc'][k][tb], d))
            A(f"s_add_u32 s{S_T}, s82, {k*32768 + tb*2048}")
            for hf in range(2):
                A(f"buffer_store_dwordx4 {d.sub(4*hf,4)}, {r['vlin']}, s[{SRD_WS}:{SRD_WS+3}], s{S_T} offen offset:{hf*1024} ; st:w")
    stamp_flush(A, 0, SRD_WS, r['ab'][0][0], r['ab'][0][1])
    A("L_EXIT_p1:")
    A("s_endpgm")
    return A, V.hi

def weights_loop(A, r, st, pub):
    vm = VM()
    for _ in range(16): vm.issue('stat')
    mid = lambda vm: [f"s_waitcnt vmcnt({vm.need('stat')})" if x == 'WAITSTAT' else x for x in st]
    pre = lambda vm: [f"s_waitcnt vmcnt({vm.need('mid')})", "s_barrier"] + list(pub)
    main_loop(A, r, 2, 2, False, False, {'mid': mid, 'pre': pre, 'vm': vm})
```

```python
from common import *
import common

S_W = 28; SRD_WS = 32; SRD_DW = 36
S_B, S_A0, S_B0, S_DST, S_STAT = 40, 41, 42, 43, 44
S_T = 48
S_M0 = 60; S_SA = 61; S_SB = 62; S_RO = 63

def gemm(A, r, extra_after=None):
    l16 = r['l16']
    def group(g):
        G = [[f"s_add_u32 s{S_SA}, s{S_A0}, s{S_RO}", f"s_add_u32 s{S_SB}, s{S_B0}, s{S_RO}", f"s_add_u32 m0, s{S_M0}, {g*4096}",
              f"s_add_u32 s{S_RO}, s{S_RO}, 4096", f"s_and_b32 s{S_RO}, s{S_RO}, 0x7fff"]]
        for j in range(4):
            G.append([f"buffer_load_dwordx4 {l16}, s[{SRD_WS}:{SRD_WS+3}], s{S_SA} offen offset:{j*1024} lds"])
            G.append([f"buffer_load_dwordx4 {R('a', 4*(4*g+j), 4)}, {l16}, s[{SRD_WS}:{SRD_WS+3}], s{S_SB} offen offset:{j*1024}"])
        return G
    def reads(ks):
        b = ks & 1
        return [f"ds_read_b128 {r['fa'][b][mb]}, {r['va'][mb >> 1]} offset:{(mb & 1)*32768 + ks*1024}" for mb in range(4)]
    vm = VM()
    def emit(lines, tag):
        for x in lines:
            A(x)
            if is_vmem(x): vm.issue(tag)
    stamp(A, 'setup')
    PD = common.PD2
    for g in range(PD):
        for x in group(g): emit(x, g)
    stamp(A, 'issued')
    A(f"s_waitcnt vmcnt({vm.need(0)})", "s_barrier")
    stamp(A, 1)
    A.ext(reads(0))
    for g in range(8):
        nxt = group(g + PD) if g + PD < 8 else []
        share = [nxt[0:3], nxt[3:5], nxt[5:7], nxt[7:9]]
        for q in range(4):
            ks = 4 * g + q; b = ks & 1
            M = [mfma(r['acc'][mb], r['fa'][b][mb], R('a', 4*ks, 4), '0' if ks == 0 else None) for mb in range(4)]
            A("s_waitcnt lgkmcnt(0)")
            rd = [[x] for x in reads(ks + 1)] if ks < 31 else []
            if q == 3 and g < 7:
                A(M[0])
                A(f"s_waitcnt vmcnt({vm.need(g + 1)})", "s_barrier")
                emit(spread(M[1:], rd + share[3]), g + PD)
            else:
                emit(spread(M, rd[:2] + share[q][:1] + rd[2:] + share[q][1:]), g + PD)
    stamp(A, 2)

def rot(A, sidx):
    if common.ROT == 4: A(f"s_and_b32 {sidx}, {sidx}, 3", f"s_lshl_b32 s{S_RO}, {sidx}, 13")
    elif common.ROT == 2: A(f"s_and_b32 {sidx}, {sidx}, 1", f"s_lshl_b32 s{S_RO}, {sidx}, 14")
    else: A(f"s_mov_b32 s{S_RO}, 0")

def store_frags(A, r, pk):
    for mb in range(4):
        d = pk[mb & 1]; acc = r['acc'][mb]
        for i in range(8): A(f"v_cvt_pk_bf16_f32 {d[i]}, {acc[2*i]}, {acc[2*i+1]}")
        if mb % 2 == 0: A(f"s_add_u32 s{S_T}, s{S_DST}, {mb*2048}")
        for hf in range(2):
            A(f"buffer_store_dwordx4 {d.sub(4*hf,4)}, {r['l16']}, s[{SRD_WS}:{SRD_WS+3}], s{S_T} offen offset:{(mb & 1)*2048 + hf*1024} ; st:p")

def build():
    A = KAsm('p2')
    V = Alloc('v', 1, 256)
    r = {}
    for n in ['lane', 'l16', 't0', 'tpad', 't1', 't2', 't3']: r[n] = V(1)
    base = V.mark()
    r['va'] = V(2, 1)
    r['acc'] = [V(16, 4) for _ in range(4)]
    r['fa'] = [[V(4) for _ in range(4)] for _ in range(2)]
    pk = [V(8, 4), V(8, 4)]
    mx = V(2); sm = V(4); st2 = V(2)
    hi_gemm = V.hi
    l = r['lane']; t0, t1, t2, t3 = r['t0'], r['t1'], r['t2'], r['t3']
    prologue(A, 256)
    stamp(A, 0)
    A(f"v_and_b32 {l}, 63, v0", f"v_lshrrev_b32 {t0}, 6, v0", f"v_lshlrev_b32 {r['l16']}, 4, {l}")
    A(f"v_readfirstlane_b32 s{S_W}, {t0}")
    A("s_and_b32 s48, s2, 7", "s_lshr_b32 s49, s2, 3", f"s_lshr_b32 s{S_B}, s48, 2")
    A("s_cmp_ge_u32 s49, 24", "s_cbranch_scc1 L_p2_conv")
    A(f"v_add_u32 {r['va'][1]}, 0x10000, {r['l16']}", f"v_mov_b32 {r['va'][0]}, {r['l16']}")
    A(f"s_lshl_b32 s{S_M0}, s{S_W}, 15")
    A("s_cmp_ge_u32 s49, 16", "s_cbranch_scc1 L_p2_vsetup")
    A("s_and_b32 s50, s48, 1", "s_lshl_b32 s50, s50, 2", "s_and_b32 s51, s49, 3", "s_add_u32 s50, s50, s51")
    A("s_lshr_b32 s51, s48, 1", "s_and_b32 s51, s51, 1", "s_lshl_b32 s51, s51, 2", "s_lshr_b32 s52, s49, 2", "s_add_u32 s51, s51, s52")
    A("s_add_u32 s53, s50, s51")
    rot(A, 's53')
    A(f"s_lshl_b32 s52, s{S_B}, 3", "s_add_u32 s53, s52, s51", "s_lshl_b32 s53, s53, 2", f"s_add_u32 s53, s53, s{S_W}", "s_lshl_b32 s53, s53, 15")
    A(f"s_add_u32 s{S_A0}, s53, {hex(KF)}")
    A("s_add_u32 s53, s52, s50", "s_lshl_b32 s53, s53, 2", f"s_add_u32 s53, s53, s{S_W}")
    A("s_lshl_b32 s54, s53, 15", f"s_add_u32 s{S_B0}, s54, {hex(QF)}")
    A("s_lshl_b32 s54, s53, 16", "s_lshl_b32 s55, s51, 13", "s_add_u32 s54, s54, s55", f"s_add_u32 s{S_DST}, s54, {hex(PF)}")
    A("s_add_u32 s54, s52, s51", "s_lshl_b32 s54, s54, 10", "s_lshl_b32 s55, s50, 7", "s_add_u32 s54, s54, s55", f"s_lshl_b32 s55, s{S_W}, 5", "s_add_u32 s54, s54, s55")
    A("s_lshl_b32 s54, s54, 3", f"s_add_u32 s{S_STAT}, s54, {hex(SM)}")
    A("s_waitcnt lgkmcnt(0)")
    stamp(A, 'karg')
    srd(A, SRD_WS, 'ws', WS_END)
    gemm(A, r)
    acc = r['acc']
    A(f"v_cmp_lt_u32 vcc, 31, {l}", f"v_mov_b32 {t0}, 0xff800000")
    for q in (13, 14, 15): A(f"v_cndmask_b32 {acc[3][q]}, {acc[3][q]}, {t0}, vcc")
    flat = [acc[mb][i] for mb in range(4) for i in range(16)]
    A(f"v_max3_f32 {mx[0]}, {flat[0]}, {flat[1]}, {flat[2]}", f"v_max3_f32 {mx[1]}, {flat[3]}, {flat[4]}, {flat[5]}")
    k = 6
    while k + 3 < 64:
        A(f"v_max3_f32 {mx[0]}, {mx[0]}, {flat[k]}, {flat[k+1]}", f"v_max3_f32 {mx[1]}, {mx[1]}, {flat[k+2]}, {flat[k+3]}")
        k += 4
    A(f"v_max3_f32 {mx[0]}, {mx[0]}, {flat[62]}, {flat[63]}")
    A(f"v_max_f32 {mx[0]}, {mx[0]}, {mx[1]}", f"v_mov_b32 {mx[1]}, {mx[0]}")
    A(f"v_permlane32_swap_b32 {mx[0]}, {mx[1]}", f"v_max_f32 {mx[0]}, {mx[0]}, {mx[1]}")
    for mb in range(4):
        a_ = acc[mb]
        for i in range(8):
            A(f"v_pk_add_f32 {a_.sub(2*i,2)}, {a_.sub(2*i,2)}, {mx} op_sel_hi:[1,0] neg_lo:[0,1] neg_hi:[0,1]")
        for i in range(16): A(f"v_exp_f32 {a_[i]}, {a_[i]}")
        for i in range(8):
            s_ = sm.sub(2*(i & 1), 2)
            if mb == 0 and i < 2: A(f"v_pk_add_f32 {s_}, {a_.sub(2*i,2)}, {a_.sub(2*(i+2),2)}")
            elif mb == 0 and i < 4: continue
            else: A(f"v_pk_add_f32 {s_}, {s_}, {a_.sub(2*i,2)}")
        d = pk[mb & 1]
        for i in range(8): A(f"v_cvt_pk_bf16_f32 {d[i]}, {a_[2*i]}, {a_[2*i+1]}")
        if mb % 2 == 0: A(f"s_add_u32 s{S_T}, s{S_DST}, {mb*2048}")
        for hf in range(2):
            A(f"buffer_store_dwordx4 {d.sub(4*hf,4)}, {r['l16']}, s[{SRD_WS}:{SRD_WS+3}], s{S_T} offen offset:{(mb & 1)*2048 + hf*1024} ; st:p")
    A(f"v_pk_add_f32 {sm.sub(0,2)}, {sm.sub(0,2)}, {sm.sub(2,2)}", f"v_add_f32 {sm[0]}, {sm[0]}, {sm[1]}", f"v_mov_b32 {sm[1]}, {sm[0]}")
    A(f"v_permlane32_swap_b32 {sm[0]}, {sm[1]}", f"v_add_f32 {st2[1]}, {sm[0]}, {sm[1]}", f"v_mov_b32 {st2[0]}, {mx[0]}")
    A(f"v_lshlrev_b32 {t0}, 3, {l}", f"v_mov_b32 {t1}, {hex(OOB)}", f"v_cmp_gt_u32 vcc, 32, {l}", f"v_cndmask_b32 {t0}, {t1}, {t0}, vcc")
    A(f"buffer_store_dwordx2 {st2}, {t0}, s[{SRD_WS}:{SRD_WS+3}], s{S_STAT} offen")
    stamp_flush(A, 1, SRD_WS, mx[0], mx[1])
    A("s_endpgm")
    A("L_p2_vsetup:")
    A("s_sub_u32 s49, s49, 16", "s_and_b32 s50, s48, 3", "s_lshl_b32 s50, s50, 1", "s_and_b32 s51, s49, 1", "s_add_u32 s50, s50, s51")
    A("s_lshr_b32 s51, s49, 1")
    A(f"s_lshl_b32 s52, s{S_B}, 3", "s_add_u32 s53, s52, s50", "s_lshl_b32 s53, s53, 2", f"s_add_u32 s53, s53, s{S_W}", "s_lshl_b32 s53, s53, 15")
    A(f"s_add_u32 s{S_A0}, s53, {hex(VF)}")
    A("s_lshl_b32 s53, s51, 2", f"s_add_u32 s53, s53, s{S_W}")
    A("s_lshl_b32 s54, s53, 15", f"s_add_u32 s{S_B0}, s54, {hex(WAMF)}")
    A(f"s_lshl_b32 s54, s{S_B}, 4", "s_add_u32 s54, s54, s53", "s_lshl_b32 s54, s54, 16", "s_lshl_b32 s55, s50, 13", "s_add_u32 s54, s54, s55")
    A(f"s_add_u32 s{S_DST}, s54, {hex(V2F)}")
    A("s_mov_b32 s53, s51")
    rot(A, 's53')
    A("s_waitcnt lgkmcnt(0)")
    stamp(A, 'karg')
    srd(A, SRD_WS, 'ws', WS_END)
    gemm(A, r)
    A(f"v_lshlrev_b32 {t0}, 4, v0")
    warm_code(A, 'p3_kernel', 'L_EXIT_p3', common.P3_BYTES, 54, t0, t1, r['fa'][0][0])
    store_frags(A, r, pk)
    stamp_flush(A, 1, SRD_WS, mx[0], mx[1])
    A("s_endpgm")
    A("L_p2_conv:")
    V.reset(base)
    acc = V(64, 4); stg = V(32, 4); wp = V(62, 2); par = [V(4) for _ in range(4)]; gn = [V(2), V(2)]
    gr = V(8, 2); ab = V(2); sp = V(24, 2); vd = V(1); vl4 = V(1); vlw = V(1); vlr = V(1); msk = V(1); vpar = V(1); vu = V(1); vw = V(1); vuc = V(1); fin = [V(2), V(2)]
    SRDW = f"s[{SRD_WS}:{SRD_WS+3}]"
    WB = 32768
    LG, LW, LU, LP = 0, 16384, 24576, 131072
    S_G, S_U, S_T0, S_LB, S_GS = 56, 57, 58, 59, 64
    A("s_sub_u32 s49, s49, 24", "s_and_b32 s50, s48, 3", "s_lshl_b32 s50, s50, 1", "s_lshr_b32 s51, s49, 2", "s_add_u32 s50, s50, s51")
    A("s_and_b32 s51, s49, 3")
    A("s_mul_i32 s52, s50, 125", "s_lshl_b32 s53, s51, 5", "s_add_u32 s52, s52, s53")
    A(f"s_mul_i32 s53, s{S_B}, 1000", "s_add_u32 s53, s53, s52", f"s_mov_b32 s{S_GS}, s53", "s_lshl_b32 s53, s53, 10")
    A(f"s_add_u32 s{S_G}, s53, {hex(GB - 15*1024)}", f"s_add_u32 s{S_U}, s53, {hex(UB)}", f"s_mov_b32 s{S_T0}, s52")
    A(f"s_lshl_b32 s53, s{S_B}, 3", "s_add_u32 s53, s53, s50", "s_lshl_b32 s53, s53, 2", "s_add_u32 s53, s53, s51", "s_lshl_b32 s53, s53, 15")
    A(f"s_add_u32 s{S_DST}, s53, {hex(UCF)}")
    A(f"s_lshl_b32 s{S_LB}, s{S_W}, 15")
    A(f"v_lshrrev_b32 {t0}, 4, {l}", f"v_lshlrev_b32 {t0}, 10, {t0}", f"v_and_b32 {t1}, 15, {l}", f"v_lshl_add_u32 {vd}, {t1}, 4, {t0}")
    A(f"s_lshl_b32 s53, s{S_W}, 8", f"v_add_u32 {vd}, s53, {vd}")
    A(f"v_lshrrev_b32 {t0}, 2, {l}", f"s_lshl_b32 s53, s{S_W}, 4", f"v_add_u32 {t0}, s53, {t0}", f"v_and_b32 {t1}, 3, {l}")
    A(f"s_sub_u32 s53, s{S_GS}, 15", f"v_add_u32 {t2}, s53, {t0}", f"v_lshlrev_b32 {t2}, 3, {t2}", f"v_mul_u32_u24 {t3}, {3*16384}, {t1}", f"v_add_u32 {t2}, {t2}, {t3}")
    A("s_waitcnt lgkmcnt(0)")
    stamp(A, 'karg')
    srd(A, SRD_WS, 'ws', WS_END)
    srd(A, SRD_DW, 'dw', 31 * 1024)
    vm = VM()
    def stage(j, lds, srdreg, sbase):
        L = [f"s_add_u32 m0, s{S_LB}, {lds + j*1024}"]
        L.append(f"s_add_u32 s{S_SB}, s{sbase}, {j*4096}" if sbase is not None else f"s_mov_b32 s{S_SB}, {j*4096}")
        L.append(f"buffer_load_dwordx4 {vd}, s[{srdreg}:{srdreg+3}], s{S_SB} offen lds")
        return L
    for p in range(3):
        A(f"s_mov_b32 s53, {hex(GST + p*16384)}")
        A(f"buffer_load_dwordx2 {sp.sub(2*p,2)}, {t2}, {SRDW}, s53 offen"); vm.issue('st')
    for j in range(8):
        if j == 7: A("s_mov_b32 exec_hi, 0xffff")
        A.ext(stage(j, LW, SRD_DW, None)); vm.issue('w')
        if j == 7: A("s_mov_b32 exec_hi, -1")
    porder = [15]
    for d_ in range(1, 16): porder += [15 + d_, 15 - d_]
    porder = [p_ for p_ in porder if 0 <= p_ <= 30]
    jorder = []
    for p_ in porder:
        if (p_ >> 1) not in jorder: jorder.append(p_ >> 1)
    NG0 = 4
    for j in jorder[:NG0]: A.ext(stage(j, LG, SRD_WS, S_G)); vm.issue(('g', j))
    stamp(A, 'issued')
    A(f"s_waitcnt vmcnt({vm.need('st')})")
    A(f"v_pk_add_f32 {sp.sub(0,2)}, {sp.sub(0,2)}, {sp.sub(2,2)}", f"v_pk_add_f32 {sp.sub(0,2)}, {sp.sub(0,2)}, {sp.sub(4,2)}")
    for mod in ["quad_perm:[1,0,3,2]", "quad_perm:[2,3,0,1]"]:
        for x in (sp[0], sp[1]): A(f"v_add_f32_dpp {x}, {x}, {x} {mod} row_mask:0xf bank_mask:0xf")
    A(f"v_mul_f32 {ab[0]}, {hexf(1/512)}, {sp[0]}", f"v_mul_f32 {ab[1]}, {hexf(1/512)}, {sp[1]}",
      f"v_fma_f32 {ab[1]}, -{ab[0]}, {ab[0]}, {ab[1]}", f"v_max_f32 {ab[1]}, 0, {ab[1]}", f"v_add_f32 {ab[1]}, {hexf(1e-5)}, {ab[1]}",
      f"v_rsq_f32 {ab[1]}, {ab[1]}", f"v_mul_f32 {t2}, {ab[0]}, {ab[1]}", f"v_sub_f32 {t2}, 0, {t2}")
    A(f"s_sub_u32 s53, s{S_T0}, 15", f"v_add_u32 {t3}, s53, {t0}", f"v_cmp_gt_u32 vcc, 1000, {t3}")
    A(f"v_cndmask_b32 {ab[0]}, 0, {ab[1]}, vcc", f"v_cndmask_b32 {ab[1]}, 0, {t2}, vcc")
    A(f"v_lshlrev_b32 {t2}, 3, {t0}", f"v_add_u32 {t2}, {LP}, {t2}", f"v_cmp_eq_u32 vcc, 0, {t1}", "s_and_saveexec_b64 s[54:55], vcc")
    A(f"ds_write_b64 {t2}, {ab}", "s_mov_b64 exec, s[54:55]")
    A(f"v_mov_b32 {vpar}, {LP}")
    A(f"v_lshlrev_b32 {vl4}, 2, {l}", f"v_add_u32 {vl4}, s{S_LB}, {vl4}")
    UCB = LW - 256
    A(f"v_add_u32 {vw}, {LW}, {vl4}", f"v_add_u32 {vu}, {LU}, {vl4}", f"v_mov_b32 {msk}, 0xffff0000", f"v_add_u32 {vuc}, {UCB}, {vl4}")
    NG1 = 6
    for j in jorder[NG0:NG1]: A.ext(stage(j, LG, SRD_WS, S_G)); vm.issue(('g', j))
    stamp(A, 'statdone')
    A(f"s_waitcnt vmcnt({vm.need('w')})")
    for i in range(0, 32, 2):
        A(f"ds_read2st64_b32 {stg.sub(i,2)}, {vw} offset0:{i} offset1:{i+1}")
        if i == 14: A("s_waitcnt lgkmcnt(2)")
    A("s_waitcnt lgkmcnt(0)", "s_barrier")
    def pread(n): return f"ds_read_b128 {par[n % 4]}, {vpar} offset:{porder[n]*16}"
    def gread(n): return f"ds_read2st64_b32 {gr.sub(2*(n % 4), 2)}, {vl4} offset0:{2*porder[n]} offset1:{2*porder[n]+1}"
    def uread(t): return f"ds_read2st64_b32 {stg.sub(t, 2)}, {vu} offset0:{t} offset1:{t+1}"
    for i in range(31):
        A(f"v_lshlrev_b32 {wp[2*i]}, 16, {stg[i]}", f"v_and_b32 {wp[2*i+1]}, {msk}, {stg[i]}")
    stamp(A, 1)
    NP = len(porder)
    gdone = set()
    def gwait(n):
        jn = porder[n] >> 1
        if jn not in gdone:
            A(f"s_waitcnt vmcnt({vm.need(('g', jn))})")
            for jj in jorder[:jorder.index(jn) + 1]: gdone.add(jj)
    ds = []
    for n in range(3):
        gwait(n)
        if n < 2: A(pread(n)); ds.append(('p', n))
        A(gread(n)); ds.append(('g', n))
    def need(tag): return sum(1 for t in ds[ds.index(tag) + 1:])
    def finish(t):
        g = fin[t & 1]; a_ = acc.sub(2*t, 2)
        return [f"v_lshlrev_b32 {g[0]}, 16, {stg[t]}", f"v_and_b32 {g[1]}, {msk}, {stg[t]}", f"v_pk_mul_f32 {a_}, {a_}, {g}",
                f"v_cvt_pk_bf16_f32 {stg[t]}, {a_[0]}, {a_[1]}", f"ds_write_b32 {vuc}, {stg[t]} offset:{t*264}"]
    lg = [(('g', j), stage(j, LG, SRD_WS, S_G)) for j in jorder[NG1:]]
    lu = [('u', stage(j, LU, SRD_WS, S_U)) for j in range(8)]
    late = lg[:4] + lu[:4] + lg[4:6] + lu[4:] + lg[6:]
    rows_done = set(); inited = set(); finished = set(); ureads = [t for t in range(0, 32, 2)]
    def done_at(t):
        return max(porder.index(s2 >> 1) for s2 in range(t, t + 31))
    ureads.sort(key=lambda t: min(done_at(t), done_at(t + 1)))
    uissued = {}; udone = False; pending_fin = []
    for n in range(NP):
        p = porder[n]
        stamp(A, f'cv{n}')
        for _ in range(2 if n < 6 else 1):
            if late:
                tag, code = late.pop(0); A.ext(code); vm.issue(tag)
        tags = [('g', n), ('p', n)] + [('u', t & ~1) for t in pending_fin]
        A(f"s_waitcnt lgkmcnt({min(min(need(x) for x in tags), 15)})")
        fl = []
        for t in pending_fin: fl += finish(t)
        nfin = list(pending_fin); pending_fin = []
        body = []
        for hh in range(2):
            s_ = 2 * p + hh
            g = gn[hh]; pr = par[n % 4].sub(2*hh, 2); raw = gr[2*(n % 4) + hh]
            body += [f"v_lshlrev_b32 {g[0]}, 16, {raw}", f"v_and_b32 {g[1]}, {msk}, {raw}",
                     f"v_pk_fma_f32 {g}, {g}, {pr}, {pr} op_sel:[0,0,1] op_sel_hi:[1,0,1]"]
        A.ext(body)
        if n + 2 < NP: A(pread(n + 2)); ds.append(('p', n + 2))
        if n + 3 < NP:
            gwait(n + 3); A(gread(n + 3)); ds.append(('g', n + 3))
        while ureads and min(done_at(ureads[0]), done_at(ureads[0] + 1)) <= n + 2:
            if not udone: A(f"s_waitcnt vmcnt({vm.need('u')})"); udone = True
            t = ureads.pop(0); A(uread(t)); ds.append(('u', t))
        body = []
        for hh in range(2):
            s_ = 2 * p + hh; g = gn[hh]
            for t in range(max(0, s_ - 30), min(31, s_) + 1):
                i = s_ - t; a_ = acc.sub(2*t, 2); w_ = wp.sub(2*i, 2)
                if t not in inited: body.append(f"v_pk_mul_f32 {a_}, {g}, {w_}"); inited.add(t)
                else: body.append(f"v_pk_fma_f32 {a_}, {g}, {w_}, {a_}")
            rows_done.add(s_)
        if fl:
            A.ext(interleave(body, fl) if len(body) >= 2 else body + fl)
            for t in nfin: ds.append(('w', t))
        else: A.ext(body)
        for t in range(32):
            if t not in finished and all(s2 in rows_done for s2 in range(t, t + 31)):
                finished.add(t); pending_fin.append(t)
    assert not late and not ureads
    A("s_waitcnt lgkmcnt(0)")
    for t in pending_fin: A.ext(finish(t))
    assert len(finished) == 32
    stamp(A, 2)
    A(f"v_and_b32 {t0}, 31, {l}", f"v_mul_u32_u24 {t0}, 264, {t0}", f"v_lshrrev_b32 {t1}, 5, {l}", f"v_lshl_add_u32 {t0}, {t1}, 3, {t0}")
    A(f"s_add_u32 s53, s{S_LB}, {UCB}", f"v_add_u32 {vlr}, s53, {t0}")
    A("s_waitcnt lgkmcnt(0)")
    for k in range(8):
        A(f"ds_read2_b64 {wp.sub(4*k,4)}, {vlr} offset0:{4*k} offset1:{4*k+2}")
    A(f"s_lshl_b32 s53, s{S_W}, 13", f"s_add_u32 s{S_DST}, s{S_DST}, s53")
    for k in range(8):
        A(f"s_waitcnt lgkmcnt({7-k})")
        if k % 4 == 0: A(f"s_add_u32 s{S_T}, s{S_DST}, {k*1024}")
        A(f"buffer_store_dwordx4 {wp.sub(4*k,4)}, {r['l16']}, {SRDW}, s{S_T} offen offset:{(k % 4)*1024} ; st:uc")
    stamp_flush(A, 1, SRD_WS, ab[0], ab[1])
    A("L_EXIT_p2:")
    A("s_endpgm")
    return A, max(V.hi, hi_gemm), 128
```

```python
from common import *
import common

LDS = 163840
S_W = 28; SRD_WS = 32; SRD_X = 36; SRD_O = 40
S_WD, S_WQ, S_SRC1, S_SRC2, S_M0, S_SO, S_B = 44, 45, 46, 47, 48, 49, 50
S_T = 52
NST = 5; NCH = 12

def build():
    A = KAsm('p3')
    V = Alloc('v', 1, 256)
    r = {}
    for n in ['lane', 'l16', 't0', 't1', 't2', 't3', 'vx', 'vo', 'mg', 'li']: r[n] = V(1)
    va = V(3, 1); vb = V(3, 1)
    stt = V(16, 2)
    xr = V(8, 2)
    acc = V(16, 4); accc = V(16, 4); tmp = [V(16, 4), V(16, 4)]
    fa = [V(4), V(4)]; fb = [V(4), V(4)]
    pk = V(8, 4); xf = V(16, 2)
    l = r['lane']; t0, t1, t2, t3 = r['t0'], r['t1'], r['t2'], r['t3']
    WS = f"s[{SRD_WS}:{SRD_WS+3}]"
    prologue(A, 256)
    stamp(A, 0)
    A(f"v_and_b32 {l}, 63, v0", f"v_lshrrev_b32 {t0}, 6, v0", f"v_lshlrev_b32 {r['l16']}, 4, {l}")
    A(f"v_readfirstlane_b32 s{S_W}, {t0}")
    A("s_and_b32 s52, s2, 7", "s_lshr_b32 s53, s2, 3", f"s_lshr_b32 s{S_B}, s52, 2")
    A("s_and_b32 s54, s52, 3", "s_lshl_b32 s54, s54, 2", "s_and_b32 s55, s53, 3", "s_add_u32 s54, s54, s55")
    A("s_lshr_b32 s55, s53, 2")
    A(f"s_and_b32 s{S_WD}, s{S_W}, 1", f"s_lshr_b32 s{S_WQ}, s{S_W}, 1")
    A(f"s_cmp_ge_u32 s{S_W}, 2", "s_cbranch_scc1 L_p3_bsrc")
    A("s_lshl_b32 s56, s55, 1", f"s_add_u32 s56, s56, s{S_W}")
    A(f"s_lshl_b32 s57, s{S_B}, 4", "s_add_u32 s57, s57, s56", "s_lshl_b32 s57, s57, 16", f"s_add_u32 s{S_SRC1}, s57, {hex(V2F)}")
    A("s_lshl_b32 s57, s56, 15", f"s_add_u32 s{S_SRC2}, s57, {hex(WDMF)}")
    A("s_branch L_p3_srcdone")
    A("L_p3_bsrc:")
    A("s_lshl_b32 s56, s54, 1", f"s_add_u32 s56, s56, s{S_W}", "s_sub_u32 s56, s56, 2", f"s_lshl_b32 s57, s{S_B}, 5", "s_add_u32 s56, s56, s57")
    A("s_lshl_b32 s57, s56, 16", f"s_add_u32 s{S_SRC1}, s57, {hex(PF)}")
    A("s_lshl_b32 s57, s56, 15", f"s_add_u32 s{S_SRC2}, s57, {hex(UCF)}")
    A("L_p3_srcdone:")
    A(f"s_lshl_b32 s{S_M0}, s{S_W}, 13")
    A("s_waitcnt lgkmcnt(0)")
    stamp(A, 'karg')
    srd(A, SRD_WS, 'ws', WS_END)
    def dma(c):
        st = c % NST
        src, off = (S_SRC1, c * 8192) if c < 8 else (S_SRC2, (c - 8) * 8192)
        G = []
        for hf in range(2):
            G.append([f"s_add_u32 s{S_SO}, s{src}, {off + hf*4096}", f"s_add_u32 m0, s{S_M0}, {st*32768 + hf*4096}"])
            for j in range(4):
                G.append([f"buffer_load_dwordx4 {r['l16']}, {WS}, s{S_SO} offen offset:{j*1024} lds"])
        return G
    vm = VM()
    def emit(lines, tag):
        for x in lines:
            A(x)
            if is_vmem(x): vm.issue(tag)
    PD = common.PD3
    for c in range(PD):
        for g in dma(c): emit(g, c)
    stamp(A, 'issued')
    srd(A, SRD_X, 'x', XBYTES); srd(A, SRD_O, 'out', XBYTES)
    A(f"s_lshl_b32 s56, s{S_B}, 13", "s_lshl_b32 s57, s54, 6", "s_add_u32 s56, s56, s57", f"s_lshl_b32 s57, s{S_WQ}, 5", "s_add_u32 s56, s56, s57")
    A("s_lshl_b32 s56, s56, 3", f"s_add_u32 s56, s56, {hex(SM)}")
    A(f"v_and_b32 {t0}, 31, {l}", f"v_lshlrev_b32 {t1}, 3, {t0}")
    for j in range(8):
        A(f"s_add_u32 s57, s56, {j*8192}")
        A(f"buffer_load_dwordx2 {stt.sub(2*j,2)}, {t1}, {WS}, s57 offen"); vm.issue('stat')
    A("s_and_b32 s56, s54, 1", "s_lshl_b32 s56, s56, 6", f"s_lshl_b32 s57, s{S_WQ}, 5", "s_add_u32 s56, s56, s57", f"v_add_u32 {t0}, s56, {t0}")
    A(f"s_lshl_b32 s56, s{S_B}, 3", "s_lshr_b32 s57, s54, 1", "s_add_u32 s56, s56, s57", "s_mul_i32 s56, s56, 125")
    A(f"v_add_u32 {t1}, s56, {t0}", f"v_lshlrev_b32 {t1}, 10, {t1}")
    A("s_lshl_b32 s56, s55, 7", f"s_lshl_b32 s57, s{S_WD}, 6", "s_add_u32 s56, s56, s57", f"v_add_u32 {t1}, s56, {t1}")
    A(f"v_lshrrev_b32 {t2}, 5, {l}")
    A(f"v_lshl_add_u32 {r['vx']}, {t2}, 3, {t1}", f"v_lshl_add_u32 {r['vo']}, {t2}, 4, {t1}")
    A(f"v_cmp_gt_u32 vcc, 125, {t0}", f"v_mov_b32 {t3}, {hex(OOB)}")
    A(f"v_cndmask_b32 {r['vx']}, {t3}, {r['vx']}, vcc", f"v_cndmask_b32 {r['vo']}, {t3}, {r['vo']}, vcc")
    A(f"s_lshl_b32 s56, s{S_WD}, 13", f"s_lshl_b32 s57, s{S_WQ}, 13", "s_add_u32 s57, s57, 16384")
    for k in range(3):
        A(f"s_add_u32 s58, s56, {k*65536}", f"v_add_u32 {va[k]}, s58, {r['l16']}")
        A(f"s_add_u32 s58, s57, {k*65536}", f"v_add_u32 {vb[k]}, s58, {r['l16']}")
    mg, li = r['mg'], r['li']
    scales = [f"v_max3_f32 {mg}, {stt[0]}, {stt[2]}, {stt[4]}", f"v_max3_f32 {mg}, {mg}, {stt[6]}, {stt[8]}",
              f"v_max3_f32 {mg}, {mg}, {stt[10]}, {stt[12]}", f"v_max_f32 {mg}, {mg}, {stt[14]}"]
    scales += [f"v_sub_f32 {stt[2*j]}, {stt[2*j]}, {mg}" for j in range(8)]
    scales += [f"v_exp_f32 {stt[2*j]}, {stt[2*j]}" for j in range(8)]
    scales += [f"v_mul_f32 {li}, {stt[0]}, {stt[1]}"] + [f"v_fmac_f32 {li}, {stt[2*j]}, {stt[2*j+1]}" for j in range(1, 8)]
    scales += [f"v_rcp_f32 {li}, {li}", "s_nop 0"] + [f"v_mul_f32 {stt[2*j]}, {stt[2*j]}, {li}" for j in range(8)]
    xloads = [f"buffer_load_dwordx2 {xr.sub(2*q,2)}, {r['vx']}, s[{SRD_X}:{SRD_X+3}], 0 offen offset:{16*q}" for q in range(4)]
    def reads(g):
        c, k = g >> 3, g & 7; st = c % NST; b = g & 1
        off = (st & 1) * 32768 + k * 1024
        return [f"ds_read_b128 {fa[b]}, {va[st >> 1]} offset:{off}", f"ds_read_b128 {fb[b]}, {vb[st >> 1]} offset:{off}"]
    def fold(c):
        if c == 0: return [f"v_mul_f32 {acc[i]}, {stt[0]}, {tmp[0][i]}" for i in range(16)]
        return [f"v_fmac_f32 {acc[i]}, {stt[2*c]}, {tmp[c & 1][i]}" for i in range(16)]
    A(f"s_waitcnt vmcnt({vm.need(0)})", "s_barrier")
    stamp(A, 1)
    A.ext(reads(0))
    pfold = []
    for c in range(NCH):
        nxt = dma(c + PD) if c + PD < NCH else []
        share = [nxt[0:2], nxt[2:3], nxt[3:4], nxt[4:5], nxt[5:7], nxt[7:8], nxt[8:9], nxt[9:10]] if nxt else [[]] * 8
        for k in range(8):
            g = 8 * c + k; b = g & 1
            dst = tmp[c & 1] if c < 8 else accc
            first = (k == 0 and c <= 8)
            M = mfma(dst, fa[b], fb[b], '0' if first else None)
            A("s_waitcnt lgkmcnt(0)")
            rd = reads(g + 1) if g + 1 < 8 * NCH else []
            A(M)
            if k == 7 and c < NCH - 1:
                A(f"s_waitcnt vmcnt({vm.need(c + 1)})", "s_barrier")
            A.ext(rd)
            for grp in share[k]: emit(grp, c + PD)
            if c == 1 and k == 0: A(f"s_waitcnt vmcnt({vm.need('stat')})")
            if c == 1 and k < 3:
                n3 = (len(scales) + 2) // 3
                A.ext(scales[k*n3:(k+1)*n3])
            if c == 10 and k < 4: emit([xloads[k]], 'x')
            if k >= 3 and pfold:
                A.ext(pfold[:4]); pfold = pfold[4:]
        if c < 8: pfold = fold(c)
    assert not pfold
    stamp(A, 2)
    A(f"s_waitcnt vmcnt({vm.need('x')})")
    for i in range(8):
        A(f"v_lshlrev_b32 {xf[2*i]}, 16, {xr[i]}", f"v_and_b32 {xf[2*i+1]}, 0xffff0000, {xr[i]}")
    for i in range(8): A(f"v_pk_add_f32 {xf.sub(2*i,2)}, {xf.sub(2*i,2)}, {acc.sub(2*i,2)}")
    for i in range(8): A(f"v_pk_add_f32 {xf.sub(2*i,2)}, {xf.sub(2*i,2)}, {accc.sub(2*i,2)}")
    for i in range(8): A(f"v_cvt_pk_bf16_f32 {pk[i]}, {xf[2*i]}, {xf[2*i+1]}")
    for q in range(2):
        A(f"v_permlane32_swap_b32 {pk[4*q]}, {pk[4*q+2]}", f"v_permlane32_swap_b32 {pk[4*q+1]}, {pk[4*q+3]}")
    for q in range(2):
        A(f"buffer_store_dwordx4 {pk.sub(4*q,4)}, {r['vo']}, s[{SRD_O}:{SRD_O+3}], 0 offen offset:{32*q} ; st:out")
    stamp_flush(A, 2, SRD_WS, stt[0], stt[1])
    if common.DIAG:
        A("s_mov_b64 exec, -1", "s_waitcnt vmcnt(0)", f"s_cmp_lg_u32 s2, {common.DIAGWG}", "s_cbranch_scc1 L_EXIT_p3", "s_cmp_lg_u32 s28, 0", "s_cbranch_scc1 L_EXIT_p3")
        srd(A, SRD_X, 'dbg', 256)
        A(f"v_lshrrev_b32 {t0}, 2, {l}", f"v_lshlrev_b32 {t0}, 13, {t0}", f"v_and_b32 {t1}, 3, {l}", f"v_lshl_add_u32 {t0}, {t1}, 3, {t0}")
        A(f"v_add_u32 {t0}, {hex(STAMP + 32*common.DIAGWG)}, {t0}", f"v_cmp_gt_u32 vcc, 12, {l}", f"v_mov_b32 {t1}, {hex(OOB)}", f"v_cndmask_b32 {t0}, {t1}, {t0}, vcc")
        A(f"buffer_load_dword {t2}, {t0}, {WS}, 0 offen sc1", f"v_lshlrev_b32 {t1}, 2, {l}", "s_waitcnt vmcnt(0)")
        A(f"buffer_store_dword {t2}, {t1}, s[{SRD_X}:{SRD_X+3}], 0 offen", "s_waitcnt vmcnt(0)")
    A("L_EXIT_p3:")
    A("s_endpgm")
    return A, V.hi, 0
```

```python
from common import *
import common

S_W, S_WT, S_WF, S_T0 = 28, 29, 30, 31
SRD_X = 32; SRD_W = [36, 40, 44]; SRD_WS = 48; SRD_DBG = 52
S_KW = [56, 57, 58]; S_KSTEP = [59, 60, 61]; S_KX = 62; S_M0X = 63; S_M0W = 64
S_XM = 66
S_I = 68; S_CT = 69
S_DSTA = 70; S_DSTB = 71; S_SCA = 72
S_SH = [73, 74, 75]
S_T = 80
S_C2 = 90
S_CNT = 79
S_GST = 76

XREG, WREG = 0, 65536
XST_B, WST_B = 16384, 24576

def lane_setup(A, V, r):
    A(f"v_and_b32 {r['lane']}, 63, v0")
    A(f"v_lshrrev_b32 {r['t0']}, 6, v0")
    A("s_nop 0")
    A(f"v_readfirstlane_b32 s{S_W}, {r['t0']}")
    A(f"s_lshr_b32 s{S_WT}, s{S_W}, 1")
    A(f"s_and_b32 s{S_WF}, s{S_W}, 1")

def dma_addr_setup(A, r, nslots):
    l = r['lane']; t0, t1, t2, t3 = r['t0'], r['t1'], r['t2'], r['t3']
    A(f"v_lshrrev_b32 {t0}, 3, {l}")
    A(f"v_lshrrev_b32 {t1}, 4, {l}")
    A(f"v_and_b32 {t2}, 7, {l}")
    A(f"v_xor_b32 {t3}, {t2}, {t1}")
    A(f"s_lshl_b32 s{S_T}, s{S_W}, 5")
    A(f"v_add_u32 {t0}, s{S_T}, {t0}")
    for j in range(4):
        d = r['vx_dma'][j]
        A(f"v_add_u32 {d}, {8*j}, {t0}")
        A(f"v_lshlrev_b32 {d}, 10, {d}")
        if j % 2 == 0: A(f"v_lshl_add_u32 {d}, {t3}, 4, {d}")
        else:
            A(f"v_xor_b32 {t1}, 4, {t3}")
            A(f"v_lshl_add_u32 {d}, {t1}, 4, {d}")
    A(f"v_lshrrev_b32 {t0}, 3, {l}")
    A(f"s_lshl_b32 s{S_T}, s{S_W}, 4")
    A(f"v_add_u32 {t0}, s{S_T}, {t0}")
    A(f"v_lshrrev_b32 {t1}, 4, {l}")
    A(f"v_and_b32 {t1}, 1, {t1}")
    A(f"v_lshlrev_b32 {t1}, 2, {t1}")
    A(f"v_xor_b32 {t1}, {t1}, {t2}")
    A(f"v_lshlrev_b32 {t1}, 4, {t1}")
    for p in range(nslots):
        for j in range(2):
            d = r['vw_dma'][2*p+j]
            A(f"v_add_u32 {d}, {8*j}, {t0}")
            A(f"v_lshlrev_b32 {d}, s{S_SH[p]}, {d}")
            A(f"v_add_u32 {d}, {d}, {t1}")
    A(f"s_lshl_b32 s{S_M0X}, s{S_W}, 12")
    A(f"s_lshl_b32 s{S_M0W}, s{S_W}, 11")
    A(f"s_add_u32 s{S_M0W}, s{S_M0W}, {WREG}")
    for p in range(nslots):
        A(f"s_mov_b32 s{S_KW[p]}, 0")
        A(f"s_lshl_b32 s{S_KSTEP[p]}, 64, s{S_SH[p]}")

def read_addr_setup(A, r, frs):
    l = r['lane']; t0, t1, t2, t3 = r['t0'], r['t1'], r['t2'], r['t3']
    A(f"v_and_b32 {t0}, 31, {l}")
    A(f"v_lshrrev_b32 {t1}, 1, {t0}")
    A(f"v_and_b32 {t1}, 7, {t1}")
    A(f"v_lshrrev_b32 {t2}, 5, {l}")
    A(f"s_lshl_b32 s{S_T}, s{S_WT}, 6")
    A(f"v_add_u32 {t0}, s{S_T}, {t0}")
    A(f"v_lshlrev_b32 {t0}, 7, {t0}")
    for s_ in range(4):
        d = r['vx_rd'][s_]
        A(f"v_or_b32 {t3}, {2*s_}, {t2}")
        A(f"v_xor_b32 {t3}, {t3}, {t1}")
        A(f"v_lshl_add_u32 {d}, {t3}, 4, {t0}")
    A(f"v_and_b32 {t0}, 15, {l}")
    A(f"v_lshrrev_b32 {t1}, 2, {t0}")
    A(f"v_lshl_add_u32 {t1}, {t2}, 3, {t1}")
    A(f"v_lshlrev_b32 {t1}, 7, {t1}")
    A(f"v_and_b32 {t3}, 1, {t0}")
    A(f"v_lshl_add_u32 {t1}, {t3}, 3, {t1}")
    A(f"v_bfe_u32 {t3}, {l}, 4, 1")
    A(f"v_lshlrev_b32 {t3}, 1, {t3}")
    A(f"v_bfe_u32 {t2}, {t0}, 1, 1")
    A(f"v_or_b32 {t3}, {t3}, {t2}")
    A(f"v_bfe_u32 {t2}, {t0}, 3, 1")
    A(f"v_lshlrev_b32 {t2}, 2, {t2}")
    A(f"v_xor_b32 {t3}, {t3}, {t2}")
    for k, (slot, e) in enumerate(frs):
        for half in range(2):
            d = r['vw_rd'][2*k+half]
            if e == 'wf':
                A(f"s_lshl_b32 s{S_T}, s{S_WF}, 2")
                A(f"v_xor_b32 {d}, s{S_T}, {t3}")
            else:
                A(f"v_xor_b32 {d}, {4*e}, {t3}")
            A(f"v_lshl_add_u32 {d}, {d}, 4, {t1}")
            if slot == 'wf':
                A(f"s_lshl_b32 s{S_T}, s{S_WF}, 13")
                A(f"s_add_u32 s{S_T}, s{S_T}, {WREG + half * 2 * WST_B}")
                A(f"v_add_u32 {d}, s{S_T}, {d}")
            else:
                A(f"v_add_u32 {d}, {WREG + half * 2 * WST_B + slot * 8192}, {d}")

def dma_chunk(r, c, nslots, masked):
    st = c & 3; G = []
    G.append([f"s_mov_b32 s{S_KX}, {c*128}"])
    for j in range(4):
        g = [f"s_add_u32 m0, s{S_M0X}, {st*XST_B + j*1024}"]
        if j == 3 and masked: g.append(f"s_mov_b64 exec, s[{S_XM}:{S_XM+1}]")
        else: g.append("s_nop 0")
        g.append(f"buffer_load_dwordx4 {r['vx_dma'][j]}, s[{SRD_X}:{SRD_X+3}], s{S_KX} offen lds")
        if j == 3 and masked: g.append("s_mov_b64 exec, -1")
        G.append(g)
    for p in range(nslots):
        for j in range(2):
            G.append([f"s_add_u32 m0, s{S_M0W}, {st*WST_B + p*8192 + j*1024}", "s_nop 0",
                      f"buffer_load_dwordx4 {r['vw_dma'][2*p+j]}, s[{SRD_W[p]}:{SRD_W[p]+3}], s{S_KW[p]} offen lds"])
        G.append([f"s_add_u32 s{S_KW[p]}, s{S_KW[p]}, s{S_KSTEP[p]}"])
    return G

def frag_reads(r, g, nf):
    c, s_ = g >> 2, g & 3; st = c & 3; b = g & 1
    L = [f"ds_read_b128 {r['fx'][b][0]}, {r['vx_rd'][s_]} offset:{st*XST_B}"]
    for k in range(nf):
        for u in range(2):
            off = (st & 1) * WST_B + (16*s_ + 4*u) * 128
            L.append(f"ds_read_b64_tr_b16 {r['fw'][b][k].sub(2*u, 2)}, {r['vw_rd'][2*k + (st >> 1)]} offset:{off}")
        if k == 0:
            L.append(f"ds_read_b128 {r['fx'][b][1]}, {r['vx_rd'][s_]} offset:{st*XST_B + 4096}")
    return L

def main_loop(A, r, nf, nslots, masked, w_is_a, hooks):
    vm = hooks.get('vm') or VM()
    stamp(A, 'setup')
    def emit(lines, tag=None):
        for x in lines:
            A(x)
            if is_vmem(x): vm.issue(tag)
    PD = common.PD1
    for c in range(PD):
        for g in dma_chunk(r, c, nslots, masked): emit(g, ('c', c))
        if c == 0 and 'mid' in hooks: emit(hooks['mid'](vm), 'mid')
    stamp(A, 'issued')
    if 'pre' in hooks: emit(hooks['pre'](vm), 'cond')
    A(f"s_waitcnt vmcnt({vm.need(('c', 0))}) lgkmcnt(0)")
    A("s_barrier")
    stamp(A, 1)
    A.ext(frag_reads(r, 0, nf))
    for c in range(8):
        dm = dma_chunk(r, c + PD, nslots, masked) if c + PD < 8 else []
        extra = [[x] for x in hooks.get(('chunk', c), [])]
        share = [dm[(len(dm) * q) // 4:(len(dm) * (q + 1)) // 4] for q in range(4)]
        share[0] = extra + share[0]
        for s_ in range(4):
            g = 4 * c + s_; b = g & 1
            M = []
            for k in range(nf):
                for tb in range(2):
                    acc = r['acc'][k][tb]
                    x, w = r['fx'][b][tb], r['fw'][b][k]
                    M.append(mfma(acc, w if w_is_a else x, x if w_is_a else w, '0' if g == 0 else None))
            if ('step', g) in hooks: emit(hooks[('step', g)](vm), ('step', g))
            if ('post', g) in hooks: emit(hooks[('post', g)](), 'cond')
            A("s_waitcnt lgkmcnt(0)")
            rd = [[x] for x in frag_reads(r, g + 1, nf)] if g + 1 < 32 else []
            if s_ == 3 and c < 7:
                A(M[0]); A(M[1])
                A(f"s_waitcnt vmcnt({vm.need(('c', c + 1))})")
                A("s_barrier")
                seq = spread(M[2:], rd + share[3])
            else:
                nm = len(M)
                seq = spread(M, rd, 0, nm - 2)
                pos = [i for i, x in enumerate(seq) if x.startswith('v_mfma')]
                groups = share[s_]; out = []; k = 0
                for i, x in enumerate(seq):
                    out.append(x)
                    if i + 1 in pos or i == len(seq) - 1:
                        done = sum(1 for p in pos if p <= i)
                        tgt = (len(groups) * done + nm - 1) // nm
                        while k < tgt: out += groups[k]; k += 1
                for gq in groups[k:]: out += gq
                seq = out
            tagc = ('c', c + PD)
            for x in seq:
                A(x)
                if is_vmem(x): vm.issue(tagc if ' lds' in x else 'other')
    stamp(A, 2)

def cs_reads(r, k, dst):
    base = r['vcsA'] if k < 2 else r['vcsB']
    return [f"ds_read_b128 {dst.sub(4*q,4)}, {base} offset:{(128*k if k < 2 else 0) + 32*q}" for q in range(4)]

def correct_lines(acc, ab, cs):
    L = [f"v_pk_mul_f32 {acc.sub(2*i,2)}, {acc.sub(2*i,2)}, {ab} op_sel:[0,0] op_sel_hi:[1,0]" for i in range(8)]
    L += [f"v_pk_fma_f32 {acc.sub(2*i,2)}, {cs.sub(2*i,2)}, {ab}, {acc.sub(2*i,2)} op_sel:[0,1,0] op_sel_hi:[1,1,1]" for i in range(8)]
    return L

def gelu_lines(r, y):
    t = r['tmp']; one = r['one2']; c1 = r['c1']; P = range(8)
    L = [f"v_pk_mul_f32 {t.sub(2*i,2)}, {y.sub(2*i,2)}, {y.sub(2*i,2)}" for i in P]
    L += [f"v_pk_fma_f32 {t.sub(2*i,2)}, {t.sub(2*i,2)}, s[{S_C2}:{S_C2+1}], {c1}" for i in P]
    L += [f"v_pk_mul_f32 {t.sub(2*i,2)}, {t.sub(2*i,2)}, {y.sub(2*i,2)}" for i in P]
    L += [f"v_exp_f32 {t[i]}, {t[i]}" for i in range(16)]
    L += [f"v_pk_add_f32 {t.sub(2*i,2)}, {t.sub(2*i,2)}, {one}" for i in P]
    L += [f"v_rcp_f32 {t[i]}, {t[i]}" for i in range(16)]
    L += [f"v_pk_mul_f32 {y.sub(2*i,2)}, {y.sub(2*i,2)}, {t.sub(2*i,2)}" for i in P]
    return L

def pack_lines(acc, dst):
    return [f"v_cvt_pk_bf16_f32 {dst[i]}, {acc[2*i]}, {acc[2*i+1]}" for i in range(8)]

def gstat_lines(y, st, first):
    s1, s2 = st.sub(0, 2), st.sub(2, 2); L = []
    for i in range(8):
        p = y.sub(2*i, 2)
        if first and i == 0:
            L.append(f"v_pk_mul_f32 {s2}, {p}, {p}")
        elif first and i == 1:
            L += [f"v_pk_add_f32 {s1}, {y.sub(0,2)}, {p}", f"v_pk_fma_f32 {s2}, {p}, {p}, {s2}"]
        else:
            L += [f"v_pk_add_f32 {s1}, {s1}, {p}", f"v_pk_fma_f32 {s2}, {p}, {p}, {s2}"]
    return L

def gstat_store(r, st, tb):
    a, b = st.sub(0, 2), st.sub(2, 2)
    return [f"v_add_f32 {a[0]}, {a[0]}, {a[1]}", f"v_add_f32 {a[1]}, {b[0]}, {b[1]}",
            f"v_mov_b32 {b[0]}, {a[0]}", f"v_mov_b32 {b[1]}, {a[1]}",
            f"v_permlane32_swap_b32 {a[0]}, {b[0]}", f"v_permlane32_swap_b32 {a[1]}, {b[1]}",
            f"v_pk_add_f32 {a}, {a}, {b}",
            f"buffer_store_dwordx2 {a}, {r['vgst'][tb]}, s[{SRD_WS}:{SRD_WS+3}], s{S_GST} offen"]

def gel_stores(r, d, tb, sdst, extra):
    L = []
    for q in range(2):
        L += [f"v_permlane32_swap_b32 {d[4*q]}, {d[4*q+2]}", f"v_permlane32_swap_b32 {d[4*q+1]}, {d[4*q+3]}"]
    L.append(f"s_add_u32 s{S_T}, s{sdst}, {extra}")
    for q in range(2):
        L.append(f"buffer_store_dwordx4 {d.sub(4*q,4)}, {r['vgel'][tb]}, s[{SRD_WS}:{SRD_WS+3}], s{S_T} offen offset:{q*32} ; st:ug")
    return L

def epilogue_mixed(A, r, pk):
    pool = r['pool']; cs, tmp = r['cs'], r['tmp']
    A.ext(cs_reads(r, 0, cs)); A.ext(cs_reads(r, 1, tmp))
    deferred = []
    for k in range(2):
        A(f"s_waitcnt lgkmcnt({4 if k == 0 else 4})")
        for tb in range(2):
            acc = r['acc'][k][tb]; d = pool.sub(8 * (2*k + tb), 8)
            A.ext(correct_lines(acc, r['abs'][tb], cs if k == 0 else tmp))
            A.ext(pack_lines(acc, d))
            for hf in range(2):
                deferred.append([f"s_add_u32 s{S_T+2}, s{S_DSTA}, {k*2048 + tb*32768}",
                                 f"buffer_store_dwordx4 {d.sub(4*hf,4)}, {r['vlin']}, s[{SRD_WS}:{SRD_WS+3}], s{S_T+2} offen offset:{hf*1024} ; st:lin"])
        if k == 0: A.ext(cs_reads(r, 2, cs))
    stamp(A, 'lin')
    A("s_waitcnt lgkmcnt(0)")
    lab = A.label('nog')
    for tb in range(2):
        acc = r['acc'][2][tb]; d = pk[tb]
        body = correct_lines(acc, r['ab'][tb], cs) + gelu_lines(r, acc)
        A.ext(spread(body, deferred[4*tb:4*tb+4]))
        A.ext(pack_lines(acc, d))
        A.ext(gel_stores(r, d, tb, S_DSTB, 0))
    A(f"s_cmp_lt_u32 s{S_CT}, 8", f"s_cbranch_scc1 {lab}")
    for tb in range(2):
        st = r['gst'][tb]
        A.ext(gstat_lines(r['acc'][2][tb], st, True)); A.ext(gstat_store(r, st, tb))
    A(f"{lab}:")
    stamp(A, 'gel')

def epilogue_g(A, r, pk):
    cs, cs2 = r['cs'], r['pool'].sub(0, 16)
    A.ext(cs_reads(r, 0, cs)); A.ext(cs_reads(r, 1, cs2))
    for k in range(2):
        A(f"s_waitcnt lgkmcnt({4 if k == 0 else 0})")
        for tb in range(2):
            acc = r['acc'][k][tb]; d = pk[tb]
            A.ext(correct_lines(acc, r['ab'][tb], cs if k == 0 else cs2)); A.ext(gelu_lines(r, acc))
            A.ext(pack_lines(acc, d))
            A.ext(gel_stores(r, d, tb, S_DSTA, 64 * k))
            A.ext(gstat_lines(acc, r['gst'][tb], k == 0))
    for tb in range(2): A.ext(gstat_store(r, r['gst'][tb], tb))

def build(name='p1_kernel'):
    A = KAsm('p1')
    V = Alloc('v', 1, 256)
    r = {}
    for n in ['lane', 't0', 't1', 't2', 't3', 'vlin', 'vcsA', 'vcsB', 'vpoll', 'vz']: r[n] = V(1)
    r['vx_dma'] = V(4, 1); r['vw_dma'] = V(6, 1); r['vx_rd'] = V(4, 1); r['vw_rd'] = V(6, 1)
    r['vgel'] = V(2, 1)
    r['ab'] = [V(2), V(2)]; r['abs'] = [V(2), V(2)]
    r['one2'] = V(2); r['c1'] = V(2)
    r['acc'] = [[V(16, 4), V(16, 4)] for _ in range(3)]
    r['fx'] = [[V(4), V(4)] for _ in range(2)]
    r['fw'] = [[V(4) for _ in range(3)] for _ in range(2)]
    r['pool'] = R('v', r['fx'][0][0].idx, 40)
    assert r['fw'][1][2].idx + 4 == r['pool'].idx + 40
    r['gst'] = [r['pool'].sub(32, 4), r['pool'].sub(36, 4)]
    r['vgst'] = V(2, 1)
    r['cs'] = V(16, 4); r['tmp'] = V(16, 4)
    pk = [V(8, 4), V(8, 4)]
    st64 = V(0 + 16, 4)
    prologue(A, 256)
    stamp(A, 0)
    lane_setup(A, V, r)
    A("s_and_b32 s80, s2, 7")
    A("s_lshr_b32 s81, s2, 3")
    if common.WARMSELF:
        npc = (common.P1_BYTES + 1023) // 1024
        A("s_lshl_b32 s82, s81, 2", f"s_add_u32 s82, s82, s{S_W}", f"s_cmp_ge_u32 s82, {npc}", "s_cbranch_scc1 L_p1_selfwarm_done")
        A("s_getpc_b64 s[84:85]", "L_p1_self_pc:", "s_sub_u32 s84, s84, L_p1_self_pc-p1_kernel", "s_subb_u32 s85, s85, 0")
        A("s_lshl_b32 s82, s82, 10", f"v_lshlrev_b32 {r['t1']}, 4, {r['lane']}", f"v_add_u32 {r['t1']}, s82, {r['t1']}")
        A(f"v_min_u32 {r['t1']}, L_EXIT_p1-p1_kernel-16, {r['t1']}")
        A(f"global_load_dwordx4 {r['fx'][0][0]}, {r['t1']}, s[84:85]")
        A("L_p1_selfwarm_done:")
    A("s_cmp_lt_u32 s81, 4")
    A("s_cbranch_scc1 L_p1_weights")
    A("s_sub_u32 s81, s81, 4")
    A("s_and_b32 s82, s80, 3", "s_lshl_b32 s82, s82, 2", "s_and_b32 s83, s81, 3", f"s_add_u32 s{S_I}, s82, s83")
    A("s_lshr_b32 s82, s80, 2", "s_mul_i32 s82, s82, 7", "s_lshr_b32 s83, s81, 2", f"s_add_u32 s{S_CT}, s82, s83")
    A(f"s_cmp_lt_u32 s{S_CT}, 12", f"s_cselect_b32 s{S_SH[0]}, 10, 11", f"s_mov_b32 s{S_SH[1]}, s{S_SH[0]}", f"s_mov_b32 s{S_SH[2]}, 11")
    dma_addr_setup(A, r, 3)
    A(f"s_mov_b32 s{S_XM}, -1", f"s_cmp_eq_u32 s{S_W}, 3", f"s_cselect_b32 s{S_XM+1}, 0xff, -1")
    A(f"s_mul_i32 s82, s{S_I}, {125*1024}")
    A("s_waitcnt lgkmcnt(0)")
    stamp(A, 'karg')
    srd(A, SRD_X, 'x', 125*1024, off_sgpr='s82')
    A(f"s_cmp_ge_u32 s{S_CT}, 12")
    A("s_cbranch_scc1 L_p1_setup_g")
    for p in range(2):
        A(f"s_lshl_b32 s82, s{S_CT}, 1", f"s_add_u32 s82, s82, {p}")
        A("s_cmp_lt_u32 s82, 16", f"s_cselect_b64 s[84:85], s[{SP['wk']}:{SP['wk']+1}], s[{SP['wv']}:{SP['wv']+1}]")
        A("s_cmp_lt_u32 s82, 8", f"s_cselect_b64 s[84:85], s[{SP['wq']}:{SP['wq']+1}], s[84:85]")
        A("s_and_b32 s83, s82, 7", "s_lshl_b32 s83, s83, 7")
        A("s_sub_u32 s86, 0x80000, s83")
        srd(A, SRD_W[p], 84, 's86', off_sgpr='s83')
    A(f"s_lshl_b32 s83, s{S_CT}, 7", "s_sub_u32 s86, 0x100000, s83")
    srd(A, SRD_W[2], 'wup', 's86', off_sgpr='s83')
    A("s_branch L_p1_srd_done")
    A("L_p1_setup_g:")
    for p in range(3):
        pp = p if p < 2 else 0
        A(f"s_sub_u32 s82, s{S_CT}, 12", "s_lshl_b32 s82, s82, 1", f"s_add_u32 s82, s82, {12 + pp}", "s_lshl_b32 s83, s82, 7")
        A("s_sub_u32 s86, 0x100000, s83")
        srd(A, SRD_W[p], 'wup', 's86', off_sgpr='s83')
    A("L_p1_srd_done:")
    l = r['lane']; t0, t1, t2, t3 = r['t0'], r['t1'], r['t2'], r['t3']
    def late_setup():
        B = KAsm('p1x')
        srd(B, SRD_WS, 'ws', WS_END)
        srd(B, SRD_DBG, 'dbg', 256)
        B(f"s_cmp_ge_u32 s{S_CT}, 12", "s_cbranch_scc1 L_p1_dst_g")
        B(f"s_lshl_b32 s82, s{S_CT}, 1", f"s_add_u32 s82, s82, s{S_WF}")
        B("s_lshr_b32 s83, s82, 3", "s_lshl_b32 s83, s83, 21", "s_and_b32 s84, s82, 7", "s_lshl_b32 s84, s84, 12")
        B(f"s_add_u32 s{S_DSTA}, s83, s84")
        B("s_cmp_lt_u32 s82, 8", f"s_cselect_b32 s{S_SCA}, {hexf(QSCALE)}, 1.0")
        B(f"s_lshr_b32 s83, s{S_CT}, 3", f"s_mul_i32 s83, s83, {GB - UB}", f"s_and_b32 s84, s{S_CT}, 7", "s_lshl_b32 s84, s84, 7")
        B("s_add_u32 s83, s83, s84", f"s_lshl_b32 s84, s{S_WF}, 6", "s_add_u32 s83, s83, s84", f"s_add_u32 s{S_DSTB}, s83, {hex(UB)}")
        B(f"s_sub_u32 s83, s{S_CT}, 8", "s_lshl_b32 s83, s83, 1", f"s_add_u32 s83, s83, s{S_WF}", "s_lshl_b32 s83, s83, 14", f"s_add_u32 s{S_GST}, s83, {hex(GST)}")
        B("s_branch L_p1_dst_done")
        B("L_p1_dst_g:")
        B(f"s_sub_u32 s82, s{S_CT}, 12", "s_lshl_b32 s82, s82, 1", f"s_add_u32 s82, s82, s{S_WF}", "s_add_u32 s82, s82, 12")
        B("s_and_b32 s84, s82, 7", "s_lshl_b32 s84, s84, 7", f"s_add_u32 s{S_DSTA}, s84, {hex(GB)}")
        B(f"s_mov_b32 s{S_DSTB}, 0", f"s_mov_b32 s{S_SCA}, 1.0")
        B(f"s_sub_u32 s83, s{S_CT}, 12", "s_lshl_b32 s83, s83, 1", f"s_add_u32 s83, s83, s{S_WF}", "s_add_u32 s83, s83, 8", "s_lshl_b32 s83, s83, 14", f"s_add_u32 s{S_GST}, s83, {hex(GST)}")
        B("L_p1_dst_done:")
        B(f"v_lshrrev_b32 {t0}, 3, {l}", f"v_add_u32 {t0}, 125, {t0}", f"v_lshlrev_b32 {t0}, 7, {t0}")
        B(f"v_and_b32 {t1}, 7, {l}", f"v_lshl_add_u32 {t0}, {t1}, 4, {t0}")
        B(f"s_lshl_b32 s{S_T}, s{S_W}, 14", f"v_add_u32 {t0}, s{S_T}, {t0}")
        ones = r['tmp'].sub(0, 4)
        for q in range(4): B(f"v_mov_b32 {ones[q]}, 0x3f803f80")
        B(f"v_cmp_gt_u32 vcc, 24, {l}", "s_and_saveexec_b64 s[92:93], vcc", f"ds_write_b128 {t0}, {ones}", "s_mov_b64 exec, s[92:93]")
        read_addr_setup(B, r, [('wf', 0), ('wf', 1), (2, 'wf')])
        B(f"s_lshl_b32 s82, s{S_I}, 2", f"s_lshl_b32 s83, s{S_WT}, 1", "s_add_u32 s82, s82, s83", "s_lshl_b32 s82, s82, 15")
        B(f"v_lshlrev_b32 {r['vlin']}, 4, {l}", f"v_add_u32 {r['vlin']}, s82, {r['vlin']}")
        B(f"v_lshrrev_b32 {t2}, 5, {l}", f"v_lshlrev_b32 {t2}, 4, {t2}")
        B(f"s_lshl_b32 s82, s{S_WF}, 8", f"v_add_u32 {r['vcsA']}, s82, {t2}")
        B(f"s_lshl_b32 s82, s{S_WF}, 7", "s_add_u32 s82, s82, 512", f"v_add_u32 {r['vcsB']}, s82, {t2}")
        B(f"v_and_b32 {t0}, 31, {l}", f"s_lshl_b32 s82, s{S_WT}, 6", f"v_add_u32 {t0}, s82, {t0}")
        B(f"s_mul_i32 s83, s{S_I}, 125")
        for tb in range(2):
            B(f"v_add_u32 {t1}, {32*tb}, {t0}")
            B(f"v_add_u32 {t3}, s83, {t1}", f"v_lshlrev_b32 {t3}, 10, {t3}", f"v_add_u32 {t3}, {t3}, {t2}")
            B(f"v_cmp_gt_u32 vcc, 125, {t1}", f"v_mov_b32 {r['vgel'][tb]}, {hex(OOB)}", f"v_cndmask_b32 {r['vgel'][tb]}, {r['vgel'][tb]}, {t3}, vcc")
            B(f"v_add_u32 {t3}, s83, {t1}", f"v_lshlrev_b32 {t3}, 3, {t3}", f"v_cmp_eq_u32 s[84:85], 0, {t2}", "s_and_b64 vcc, vcc, s[84:85]")
            B(f"v_mov_b32 {r['vgst'][tb]}, {hex(OOB)}", f"v_cndmask_b32 {r['vgst'][tb]}, {r['vgst'][tb]}, {t3}, vcc")
        B(f"s_lshl_b32 s82, s{S_I}, 10", f"s_add_u32 s82, s82, {hex(XST)}", f"v_lshlrev_b32 {r['vz']}, 3, {t0}", f"v_add_u32 {r['vz']}, s82, {r['vz']}")
        B(f"s_lshl_b32 s82, s{S_I}, 2", f"v_mov_b32 {r['vpoll']}, s82")
        B(f"v_mov_b32 {r['one2'][0]}, 1.0", f"v_mov_b32 {r['one2'][1]}, 1.0")
        c1 = -2.0 * LOG2E * 0.7978845608028654
        B(f"v_mov_b32 {r['c1'][0]}, {hexf(c1)}", f"v_mov_b32 {r['c1'][1]}, {hexf(c1)}")
        B(f"s_mov_b32 s{S_C2}, {hexf(c1*0.044715)}", f"s_mov_b32 s{S_C2+1}, {hexf(c1*0.044715)}")
        return B.L
    pollv = r['t0']
    poll = [f"buffer_load_dword {pollv}, {r['vpoll']}, s[{SRD_DBG}:{SRD_DBG+3}], 0 offen sc1"]
    lp, lq = A.label('poll'), A.label('pollok')
    check = ["s_waitcnt vmcnt(0)", f"v_readfirstlane_b32 s{S_T+1}, {pollv}", "s_nop 3", f"s_cmp_ge_u32 s{S_T+1}, 2", f"s_cbranch_scc1 {lq}",
             f"s_mov_b32 s{S_CNT}, 0x40000", f"{lp}:", "s_sleep 4",
             f"buffer_load_dword {pollv}, {r['vpoll']}, s[{SRD_DBG}:{SRD_DBG+3}], 0 offen sc1", "s_waitcnt vmcnt(0)",
             f"v_readfirstlane_b32 s{S_T+1}, {pollv}", f"s_sub_u32 s{S_CNT}, s{S_CNT}, 1", "s_nop 2", f"s_cmp_eq_u32 s{S_CNT}, 0", f"s_cbranch_scc1 {lq}",
             f"s_cmp_ge_u32 s{S_T+1}, 2", f"s_cbranch_scc0 {lp}", f"{lq}:",
             f"buffer_load_dwordx2 {r['ab'][0]}, {r['vz']}, s[{SRD_WS}:{SRD_WS+3}], 0 offen sc1",
             f"buffer_load_dwordx2 {r['ab'][1]}, {r['vz']}, s[{SRD_WS}:{SRD_WS+3}], 0 offen offset:256 sc1"]
    def warm():
        B = KAsm('p1w')
        npc = (common.P2_BYTES + 1023) // 1024 if common.WARMCODE else 0
        B("s_lshr_b32 s82, s2, 3", "s_sub_u32 s82, s82, 4", "s_lshl_b32 s82, s82, 2", f"s_add_u32 s82, s82, s{S_W}")
        B(f"v_lshlrev_b32 {t1}, 4, {l}")
        if npc:
            B(f"s_cmp_ge_u32 s82, {npc}", "s_cbranch_scc1 L_p1_warm_dw")
            B("s_getpc_b64 s[84:85]", "L_p1_warm_pc:", "s_add_u32 s84, s84, p2_kernel-L_p1_warm_pc", "s_addc_u32 s85, s85, 0")
            B("s_lshl_b32 s82, s82, 10", f"v_add_u32 {t1}, s82, {t1}", f"v_min_u32 {t1}, L_EXIT_p2-p2_kernel-16, {t1}")
            B(f"global_load_dwordx4 {st64.sub(0,4)}, {t1}, s[84:85]")
            B("s_branch L_p1_warm_done")
        B("L_p1_warm_dw:")
        B(f"s_sub_u32 s82, s82, {npc}", "s_lshl_b32 s82, s82, 10", f"v_add_u32 {t1}, s82, {t1}", f"v_min_u32 {t1}, {31*1024-16}, {t1}")
        B(f"global_load_dwordx4 {st64.sub(0,4)}, {t1}, s[{SP['dw']}:{SP['dw']+1}]")
        B("L_p1_warm_done:")
        return B.L
    main_loop(A, r, 3, 3, True, True, {('post', 30): warm, ('chunk', 6): poll, ('step', 29): lambda vm: check, 'mid': lambda vm: late_setup()})
    A(f"s_cmp_eq_u32 s{S_WT}, 0", "s_cbranch_scc1 L_p1_nocs")
    A("s_mov_b32 exec_lo, 0x20000000", "s_mov_b32 exec_hi, 0x20000000", "s_nop 7")
    for k in range(3):
        base = r['vcsA'] if k < 2 else r['vcsB']
        for q in range(4):
            A(f"ds_write_b128 {base}, {r['acc'][k][1].sub(4*q,4)} offset:{(128*k if k < 2 else 0) + 32*q}")
    A("s_mov_b64 exec, -1")
    A("L_p1_nocs:")
    A("s_waitcnt lgkmcnt(0)", "s_barrier", "s_waitcnt vmcnt(1)")
    stamp(A, 'cs')
    for tb in range(2):
        A(f"v_pk_mul_f32 {r['abs'][tb]}, {r['ab'][tb]}, s[{S_SCA}:{S_SCA+1}] op_sel_hi:[1,0]")
    A(f"s_cmp_ge_u32 s{S_CT}, 12", "s_cbranch_scc1 L_p1_epi_g")
    epilogue_mixed(A, r, pk)
    stamp_flush(A, 0, SRD_WS, r['ab'][0][0], r['ab'][0][1])
    A("s_endpgm")
    A("L_p1_epi_g:")
    epilogue_g(A, r, pk)
    stamp_flush(A, 0, SRD_WS, r['ab'][0][0], r['ab'][0][1])
    A("s_endpgm")
    A("L_p1_weights:")
    A("s_waitcnt lgkmcnt(0)")
    stamp(A, 'karg')
    srd(A, SRD_WS, 'ws', WS_END)
    srd(A, SRD_DBG, 'dbg', 256)
    A("s_lshl_b32 s81, s81, 3", "s_add_u32 s81, s81, s80")
    J = 78
    A(f"s_mov_b32 s{J}, s81")
    A(f"s_lshr_b32 s82, s{J}, 1", f"s_mov_b32 s{S_I}, s82", f"s_mul_i32 s82, s82, {125*1024}")
    srd(A, SRD_W[2], 'x', 125*1024, off_sgpr='s82')
    stv = [r['cs'], r['tmp'], R('v', pk[0].idx, 16), st64]
    assert pk[1].idx == pk[0].idx + 8
    A(f"s_and_b32 s83, s{J}, 1", "s_lshl_b32 s83, s83, 6", f"s_lshl_b32 s84, s{S_W}, 4", "s_add_u32 s83, s83, s84")
    rowv = r['vgel']
    for g2 in range(2):
        A(f"v_lshrrev_b32 {rowv[g2]}, 3, {l}", f"v_add_u32 {rowv[g2]}, s83, {rowv[g2]}")
        if g2: A(f"v_add_u32 {rowv[g2]}, 8, {rowv[g2]}")
    for g2 in range(2):
        A(f"v_lshlrev_b32 {t0}, 10, {rowv[g2]}", f"v_and_b32 {t1}, 7, {l}", f"v_lshl_add_u32 {t0}, {t1}, 4, {t0}")
        for jj in range(8):
            q = g2 * 8 + jj
            A(f"buffer_load_dwordx4 {stv[q//4].sub(4*(q%4),4)}, {t0}, s[{SRD_W[2]}:{SRD_W[2]+3}], 0 offen offset:{jj*128}")
        A("s_nop 0")
    A(f"s_lshr_b32 s82, s{J}, 4")
    A("s_cmp_eq_u32 s82, 0", f"s_cselect_b64 s[84:85], s[{SP['wao']}:{SP['wao']+1}], s[{SP['wdn']}:{SP['wdn']+1}]")
    A(f"s_lshr_b32 s83, s{J}, 2", "s_and_b32 s83, s83, 3", "s_lshl_b32 s83, s83, 17")
    srd(A, SRD_X, 84, 131072, off_sgpr='s83')
    for p in range(2):
        A(f"s_lshr_b32 s82, s{J}, 4", "s_lshl_b32 s82, s82, 19", f"s_and_b32 s83, s{J}, 3", "s_lshl_b32 s83, s83, 8")
        A(f"s_add_u32 s83, s83, {128*p}", "s_sub_u32 s86, 0x80000, s83", "s_add_u32 s83, s83, s82")
        srd(A, SRD_W[p], 'wm', 's86', off_sgpr='s83')
        A(f"s_mov_b32 s{S_SH[p]}, 10")
    dma_addr_setup(A, r, 2)
    read_addr_setup(A, r, [('wf', 0), ('wf', 1)])
    st = []
    a1, a2 = r['ab'][0], r['ab'][1]
    onesb = r['one2'][0]
    st.append(f"v_mov_b32 {onesb}, 0x3f803f80")
    st.append("WAITSTAT")
    for g2 in range(2):
        sm, sq = (a1[0], a1[1]) if g2 == 0 else (a2[0], a2[1])
        first = True
        for jj in range(8):
            q = g2 * 8 + jj
            for d in range(4):
                x = stv[q//4][4*(q%4) + d]
                st.append(f"v_dot2_f32_bf16 {sm}, {x}, {onesb}, {'0' if first else sm}")
                st.append(f"v_dot2_f32_bf16 {sq}, {x}, {x}, {'0' if first else sq}")
                first = False
    for mod in ["quad_perm:[1,0,3,2]", "quad_perm:[2,3,0,1]", "row_half_mirror"]:
        for x in (a1[0], a1[1], a2[0], a2[1]):
            st.append(f"v_add_f32_dpp {x}, {x}, {x} {mod} row_mask:0xf bank_mask:0xf")
    for g2, ab in enumerate((a1, a2)):
        st += [f"v_mul_f32 {ab[0]}, {hexf(1/512)}, {ab[0]}",
               f"v_mul_f32 {ab[1]}, {hexf(1/512)}, {ab[1]}",
               f"v_fma_f32 {ab[1]}, -{ab[0]}, {ab[0]}, {ab[1]}",
               f"v_max_f32 {ab[1]}, 0, {ab[1]}",
               f"v_add_f32 {ab[1]}, {hexf(1e-5)}, {ab[1]}",
               f"v_rsq_f32 {ab[1]}, {ab[1]}",
               f"v_mul_f32 {t1}, -{ab[0]}, {ab[1]}" if False else f"v_mul_f32 {t1}, {ab[0]}, {ab[1]}",
               f"v_sub_f32 {t1}, 0, {t1}",
               f"v_cmp_gt_u32 vcc, 125, {rowv[g2]}",
               f"v_cndmask_b32 {ab[0]}, 0, {ab[1]}, vcc",
               f"v_cndmask_b32 {ab[1]}, 0, {t1}, vcc",
               f"s_lshl_b32 s82, s{S_I}, 10", f"s_add_u32 s82, s82, {hex(XST)}",
               f"v_lshlrev_b32 {t0}, 3, {rowv[g2]}", f"v_add_u32 {t0}, s82, {t0}",
               f"v_and_b32 {t1}, 7, {l}", f"v_cmp_eq_u32 vcc, 0, {t1}", f"v_mov_b32 {t1}, {hex(OOB)}",
               f"v_cndmask_b32 {t0}, {t1}, {t0}, vcc",
               f"buffer_store_dwordx2 {ab}, {t0}, s[{SRD_WS}:{SRD_WS+3}], 0 offen sc1", "s_nop 1"]
    pub = [f"s_lshl_b32 s82, s{S_I}, 2", f"v_mov_b32 {t0}, s82", f"v_mov_b32 {t1}, 1",
           f"s_cmp_lg_u32 s{S_W}, 0", "s_cbranch_scc1 L_p1_nopub", "s_mov_b64 exec, 1",
           f"buffer_atomic_add {t1}, {t0}, s[{SRD_DBG}:{SRD_DBG+3}], 0 offen", "s_mov_b64 exec, -1", "L_p1_nopub:"]
    weights_loop(A, r, st, pub)
    A(f"s_lshr_b32 s82, s{J}, 4", "s_lshl_b32 s82, s82, 19", f"s_add_u32 s82, s82, {hex(WAMF)}")
    A(f"s_and_b32 s83, s{J}, 3", "s_lshl_b32 s83, s83, 2", f"s_lshl_b32 s84, s{S_WF}, 1", "s_add_u32 s83, s83, s84", "s_lshl_b32 s83, s83, 15")
    A("s_add_u32 s82, s82, s83")
    A(f"s_lshr_b32 s83, s{J}, 2", "s_and_b32 s83, s83, 3", "s_lshl_b32 s83, s83, 2", f"s_lshl_b32 s84, s{S_WT}, 1", "s_add_u32 s83, s83, s84", "s_lshl_b32 s83, s83, 11")
    A("s_add_u32 s82, s82, s83")
    A(f"v_lshlrev_b32 {r['vlin']}, 4, {l}")
    for k in range(2):
        for tb in range(2):
            d = pk[tb]
            A.ext(pack_lines(r['acc'][k][tb], d))
            A(f"s_add_u32 s{S_T}, s82, {k*32768 + tb*2048}")
            for hf in range(2):
                A(f"buffer_store_dwordx4 {d.sub(4*hf,4)}, {r['vlin']}, s[{SRD_WS}:{SRD_WS+3}], s{S_T} offen offset:{hf*1024} ; st:w")
    stamp_flush(A, 0, SRD_WS, r['ab'][0][0], r['ab'][0][1])
    A("L_EXIT_p1:")
    A("s_endpgm")
    return A, V.hi

def weights_loop(A, r, st, pub):
    vm = VM()
    for _ in range(16): vm.issue('stat')
    mid = lambda vm: [f"s_waitcnt vmcnt({vm.need('stat')})" if x == 'WAITSTAT' else x for x in st]
    pre = lambda vm: [f"s_waitcnt vmcnt({vm.need('mid')})", "s_barrier"] + list(pub)
    main_loop(A, r, 2, 2, False, False, {'mid': mid, 'pre': pre, 'vm': vm})
```

```python
from common import *
import common

S_W, S_WT, S_WF, S_T0 = 28, 29, 30, 31
SRD_X = 32; SRD_W = [36, 40, 44]; SRD_WS = 48; SRD_DBG = 52
S_KW = [56, 57, 58]; S_KSTEP = [59, 60, 61]; S_KX = 62; S_M0X = 63; S_M0W = 64
S_XM = 66
S_I = 68; S_CT = 69
S_DSTA = 70; S_DSTB = 71; S_SCA = 72
S_SH = [73, 74, 75]
S_T = 80
S_C2 = 90
S_CNT = 79
S_KMASK = [73, 74, 75]
S_ROT = 77
S_GST = 76

XREG, WREG = 0, 65536
XST_B, WST_B = 16384, 24576

def lane_setup(A, V, r):
    A(f"v_and_b32 {r['lane']}, 63, v0")
    A(f"v_lshrrev_b32 {r['t0']}, 6, v0")
    A("s_nop 0")
    A(f"v_readfirstlane_b32 s{S_W}, {r['t0']}")
    A(f"s_lshr_b32 s{S_WT}, s{S_W}, 1")
    A(f"s_and_b32 s{S_WF}, s{S_W}, 1")

def dma_addr_setup(A, r, nslots):
    l = r['lane']; t0, t1, t2, t3 = r['t0'], r['t1'], r['t2'], r['t3']
    A(f"v_lshrrev_b32 {t0}, 3, {l}")
    A(f"v_lshrrev_b32 {t1}, 4, {l}")
    A(f"v_and_b32 {t2}, 7, {l}")
    A(f"v_xor_b32 {t3}, {t2}, {t1}")
    A(f"s_lshl_b32 s{S_T}, s{S_W}, 5")
    A(f"v_add_u32 {t0}, s{S_T}, {t0}")
    for j in range(4):
        d = r['vx_dma'][j]
        A(f"v_add_u32 {d}, {8*j}, {t0}")
        A(f"v_lshlrev_b32 {d}, 10, {d}")
        if j % 2 == 0: A(f"v_lshl_add_u32 {d}, {t3}, 4, {d}")
        else:
            A(f"v_xor_b32 {t1}, 4, {t3}")
            A(f"v_lshl_add_u32 {d}, {t1}, 4, {d}")
    A(f"v_lshrrev_b32 {t0}, 3, {l}")
    A(f"s_lshl_b32 s{S_T}, s{S_W}, 4")
    A(f"v_add_u32 {t0}, s{S_T}, {t0}")
    A(f"v_lshrrev_b32 {t1}, 4, {l}")
    A(f"v_and_b32 {t1}, 1, {t1}")
    A(f"v_lshlrev_b32 {t1}, 2, {t1}")
    A(f"v_xor_b32 {t1}, {t1}, {t2}")
    A(f"v_lshlrev_b32 {t1}, 4, {t1}")
    for p in range(nslots):
        for j in range(2):
            d = r['vw_dma'][2*p+j]
            A(f"v_add_u32 {d}, {8*j}, {t0}")
            A(f"v_lshlrev_b32 {d}, s{S_SH[p]}, {d}")
            A(f"v_add_u32 {d}, {d}, {t1}")
    A(f"s_lshl_b32 s{S_M0X}, s{S_W}, 12")
    A(f"s_lshl_b32 s{S_M0W}, s{S_W}, 11")
    A(f"s_add_u32 s{S_M0W}, s{S_M0W}, {WREG}")
    for p in range(nslots):
        A(f"s_mov_b32 s{S_KW[p]}, 0")
        A(f"s_lshl_b32 s{S_KSTEP[p]}, 64, s{S_SH[p]}")

def read_addr_setup(A, r, frs):
    l = r['lane']; t0, t1, t2, t3 = r['t0'], r['t1'], r['t2'], r['t3']
    A(f"v_and_b32 {t0}, 31, {l}")
    A(f"v_lshrrev_b32 {t1}, 1, {t0}")
    A(f"v_and_b32 {t1}, 7, {t1}")
    A(f"v_lshrrev_b32 {t2}, 5, {l}")
    A(f"s_lshl_b32 s{S_T}, s{S_WT}, 6")
    A(f"v_add_u32 {t0}, s{S_T}, {t0}")
    A(f"v_lshlrev_b32 {t0}, 7, {t0}")
    for s_ in range(4):
        d = r['vx_rd'][s_]
        A(f"v_or_b32 {t3}, {2*s_}, {t2}")
        A(f"v_xor_b32 {t3}, {t3}, {t1}")
        A(f"v_lshl_add_u32 {d}, {t3}, 4, {t0}")
    A(f"v_and_b32 {t0}, 15, {l}")
    A(f"v_lshrrev_b32 {t1}, 2, {t0}")
    A(f"v_lshl_add_u32 {t1}, {t2}, 3, {t1}")
    A(f"v_lshlrev_b32 {t1}, 7, {t1}")
    A(f"v_and_b32 {t3}, 1, {t0}")
    A(f"v_lshl_add_u32 {t1}, {t3}, 3, {t1}")
    A(f"v_bfe_u32 {t3}, {l}, 4, 1")
    A(f"v_lshlrev_b32 {t3}, 1, {t3}")
    A(f"v_bfe_u32 {t2}, {t0}, 1, 1")
    A(f"v_or_b32 {t3}, {t3}, {t2}")
    A(f"v_bfe_u32 {t2}, {t0}, 3, 1")
    A(f"v_lshlrev_b32 {t2}, 2, {t2}")
    A(f"v_xor_b32 {t3}, {t3}, {t2}")
    for k, (slot, e) in enumerate(frs):
        for half in range(2):
            d = r['vw_rd'][2*k+half]
            if e == 'wf':
                A(f"s_lshl_b32 s{S_T}, s{S_WF}, 2")
                A(f"v_xor_b32 {d}, s{S_T}, {t3}")
            else:
                A(f"v_xor_b32 {d}, {4*e}, {t3}")
            A(f"v_lshl_add_u32 {d}, {d}, 4, {t1}")
            if slot == 'wf':
                A(f"s_lshl_b32 s{S_T}, s{S_WF}, 13")
                A(f"s_add_u32 s{S_T}, s{S_T}, {WREG + half * 2 * WST_B}")
                A(f"v_add_u32 {d}, s{S_T}, {d}")
            else:
                A(f"v_add_u32 {d}, {WREG + half * 2 * WST_B + slot * 8192}, {d}")

def dma_chunk(r, c, nslots, masked):
    st = c & 3; G = []
    if r.get('rot'):
        G.append([f"s_add_u32 s{S_KX}, s{S_KX}, 128", f"s_and_b32 s{S_KX}, s{S_KX}, 0x3ff"] if c else ["s_nop 0"])
    else:
        G.append([f"s_mov_b32 s{S_KX}, {c*128}"])
    for j in range(4):
        g = [f"s_add_u32 m0, s{S_M0X}, {st*XST_B + j*1024}"]
        if j == 3 and masked: g.append(f"s_mov_b64 exec, s[{S_XM}:{S_XM+1}]")
        else: g.append("s_nop 0")
        g.append(f"buffer_load_dwordx4 {r['vx_dma'][j]}, s[{SRD_X}:{SRD_X+3}], s{S_KX} offen lds")
        if j == 3 and masked: g.append("s_mov_b64 exec, -1")
        G.append(g)
    for p in range(nslots):
        for j in range(2):
            G.append([f"s_add_u32 m0, s{S_M0W}, {st*WST_B + p*8192 + j*1024}", "s_nop 0",
                      f"buffer_load_dwordx4 {r['vw_dma'][2*p+j]}, s[{SRD_W[p]}:{SRD_W[p]+3}], s{S_KW[p]} offen lds"])
        if r.get('rot'): G.append([f"s_add_u32 s{S_KW[p]}, s{S_KW[p]}, s{S_KSTEP[p]}", f"s_and_b32 s{S_KW[p]}, s{S_KW[p]}, s{S_KMASK[p]}"])
        else: G.append([f"s_add_u32 s{S_KW[p]}, s{S_KW[p]}, s{S_KSTEP[p]}"])
    return G

def frag_reads(r, g, nf):
    c, s_ = g >> 2, g & 3; st = c & 3; b = g & 1
    L = [f"ds_read_b128 {r['fx'][b][0]}, {r['vx_rd'][s_]} offset:{st*XST_B}"]
    for k in range(nf):
        for u in range(2):
            off = (st & 1) * WST_B + (16*s_ + 4*u) * 128
            L.append(f"ds_read_b64_tr_b16 {r['fw'][b][k].sub(2*u, 2)}, {r['vw_rd'][2*k + (st >> 1)]} offset:{off}")
        if k == 0:
            L.append(f"ds_read_b128 {r['fx'][b][1]}, {r['vx_rd'][s_]} offset:{st*XST_B + 4096}")
    return L

def main_loop(A, r, nf, nslots, masked, w_is_a, hooks):
    vm = hooks.get('vm') or VM()
    stamp(A, 'setup')
    def emit(lines, tag=None):
        for x in lines:
            A(x)
            if is_vmem(x): vm.issue(tag)
    PD = common.PD1
    for c in range(PD):
        for g in dma_chunk(r, c, nslots, masked): emit(g, ('c', c))
        if c == 0 and 'mid' in hooks: emit(hooks['mid'](vm), 'mid')
    stamp(A, 'issued')
    if 'pre' in hooks: emit(hooks['pre'](vm), 'cond')
    A(f"s_waitcnt vmcnt({vm.need(('c', 0))}) lgkmcnt(0)")
    A("s_barrier")
    stamp(A, 1)
    A.ext(frag_reads(r, 0, nf))
    for c in range(8):
        dm = dma_chunk(r, c + PD, nslots, masked) if c + PD < 8 else []
        extra = [[x] for x in hooks.get(('chunk', c), [])]
        share = [dm[(len(dm) * q) // 4:(len(dm) * (q + 1)) // 4] for q in range(4)]
        share[0] = extra + share[0]
        for s_ in range(4):
            g = 4 * c + s_; b = g & 1
            M = []
            for k in range(nf):
                for tb in range(2):
                    acc = r['acc'][k][tb]
                    x, w = r['fx'][b][tb], r['fw'][b][k]
                    M.append(mfma(acc, w if w_is_a else x, x if w_is_a else w, '0' if g == 0 else None))
            if ('step', g) in hooks: emit(hooks[('step', g)](vm), ('step', g))
            if ('post', g) in hooks: emit(hooks[('post', g)](), 'cond')
            A("s_waitcnt lgkmcnt(0)")
            rd = [[x] for x in frag_reads(r, g + 1, nf)] if g + 1 < 32 else []
            if s_ == 3 and c < 7:
                A(M[0]); A(M[1])
                A(f"s_waitcnt vmcnt({vm.need(('c', c + 1))})")
                A("s_barrier")
                seq = spread(M[2:], rd + share[3])
            else:
                nm = len(M)
                seq = spread(M, rd, 0, nm - 2)
                pos = [i for i, x in enumerate(seq) if x.startswith('v_mfma')]
                groups = share[s_]; out = []; k = 0
                for i, x in enumerate(seq):
                    out.append(x)
                    if i + 1 in pos or i == len(seq) - 1:
                        done = sum(1 for p in pos if p <= i)
                        tgt = (len(groups) * done + nm - 1) // nm
                        while k < tgt: out += groups[k]; k += 1
                for gq in groups[k:]: out += gq
                seq = out
            tagc = ('c', c + PD)
            for x in seq:
                A(x)
                if is_vmem(x): vm.issue(tagc if ' lds' in x else 'other')
    stamp(A, 2)

def cs_reads(r, k, dst):
    base = r['vcsA'] if k < 2 else r['vcsB']
    return [f"ds_read_b128 {dst.sub(4*q,4)}, {base} offset:{(128*k if k < 2 else 0) + 32*q}" for q in range(4)]

def correct_lines(acc, ab, cs):
    L = [f"v_pk_mul_f32 {acc.sub(2*i,2)}, {acc.sub(2*i,2)}, {ab} op_sel:[0,0] op_sel_hi:[1,0]" for i in range(8)]
    L += [f"v_pk_fma_f32 {acc.sub(2*i,2)}, {cs.sub(2*i,2)}, {ab}, {acc.sub(2*i,2)} op_sel:[0,1,0] op_sel_hi:[1,1,1]" for i in range(8)]
    return L

def gelu_lines(r, y):
    t = r['tmp']; one = r['one2']; c1 = r['c1']; P = range(8)
    L = [f"v_pk_mul_f32 {t.sub(2*i,2)}, {y.sub(2*i,2)}, {y.sub(2*i,2)}" for i in P]
    L += [f"v_pk_fma_f32 {t.sub(2*i,2)}, {t.sub(2*i,2)}, s[{S_C2}:{S_C2+1}], {c1}" for i in P]
    L += [f"v_pk_mul_f32 {t.sub(2*i,2)}, {t.sub(2*i,2)}, {y.sub(2*i,2)}" for i in P]
    L += [f"v_exp_f32 {t[i]}, {t[i]}" for i in range(16)]
    L += [f"v_pk_add_f32 {t.sub(2*i,2)}, {t.sub(2*i,2)}, {one}" for i in P]
    L += [f"v_rcp_f32 {t[i]}, {t[i]}" for i in range(16)]
    L += [f"v_pk_mul_f32 {y.sub(2*i,2)}, {y.sub(2*i,2)}, {t.sub(2*i,2)}" for i in P]
    return L

def pack_lines(acc, dst):
    return [f"v_cvt_pk_bf16_f32 {dst[i]}, {acc[2*i]}, {acc[2*i+1]}" for i in range(8)]

def gstat_lines(y, st, first):
    s1, s2 = st.sub(0, 2), st.sub(2, 2); L = []
    for i in range(8):
        p = y.sub(2*i, 2)
        if first and i == 0:
            L.append(f"v_pk_mul_f32 {s2}, {p}, {p}")
        elif first and i == 1:
            L += [f"v_pk_add_f32 {s1}, {y.sub(0,2)}, {p}", f"v_pk_fma_f32 {s2}, {p}, {p}, {s2}"]
        else:
            L += [f"v_pk_add_f32 {s1}, {s1}, {p}", f"v_pk_fma_f32 {s2}, {p}, {p}, {s2}"]
    return L

def gstat_store(r, st, tb):
    a, b = st.sub(0, 2), st.sub(2, 2)
    return [f"v_add_f32 {a[0]}, {a[0]}, {a[1]}", f"v_add_f32 {a[1]}, {b[0]}, {b[1]}",
            f"v_mov_b32 {b[0]}, {a[0]}", f"v_mov_b32 {b[1]}, {a[1]}",
            f"v_permlane32_swap_b32 {a[0]}, {b[0]}", f"v_permlane32_swap_b32 {a[1]}, {b[1]}",
            f"v_pk_add_f32 {a}, {a}, {b}",
            f"buffer_store_dwordx2 {a}, {r['vgst'][tb]}, s[{SRD_WS}:{SRD_WS+3}], s{S_GST} offen"]

def gel_stores(r, d, tb, sdst, extra):
    L = []
    for q in range(2):
        L += [f"v_permlane32_swap_b32 {d[4*q]}, {d[4*q+2]}", f"v_permlane32_swap_b32 {d[4*q+1]}, {d[4*q+3]}"]
    L.append(f"s_add_u32 s{S_T}, s{sdst}, {extra}")
    for q in range(2):
        L.append(f"buffer_store_dwordx4 {d.sub(4*q,4)}, {r['vgel'][tb]}, s[{SRD_WS}:{SRD_WS+3}], s{S_T} offen offset:{q*32} ; st:ug")
    return L

def epilogue_mixed(A, r, pk):
    pool = r['pool']; cs, tmp = r['cs'], r['tmp']
    A.ext(cs_reads(r, 0, cs)); A.ext(cs_reads(r, 1, tmp))
    deferred = []
    for k in range(2):
        A(f"s_waitcnt lgkmcnt({4 if k == 0 else 4})")
        for tb in range(2):
            acc = r['acc'][k][tb]; d = pool.sub(8 * (2*k + tb), 8)
            A.ext(correct_lines(acc, r['abs'][tb], cs if k == 0 else tmp))
            A.ext(pack_lines(acc, d))
            for hf in range(2):
                deferred.append([f"s_add_u32 s{S_T+2}, s{S_DSTA}, {k*2048 + tb*32768}",
                                 f"buffer_store_dwordx4 {d.sub(4*hf,4)}, {r['vlin']}, s[{SRD_WS}:{SRD_WS+3}], s{S_T+2} offen offset:{hf*1024} ; st:lin"])
        if k == 0: A.ext(cs_reads(r, 2, cs))
    stamp(A, 'lin')
    A("s_waitcnt lgkmcnt(0)")
    lab = A.label('nog')
    for tb in range(2):
        acc = r['acc'][2][tb]; d = pk[tb]
        body = correct_lines(acc, r['ab'][tb], cs) + gelu_lines(r, acc)
        A.ext(spread(body, deferred[4*tb:4*tb+4]))
        A.ext(pack_lines(acc, d))
        A.ext(gel_stores(r, d, tb, S_DSTB, 0))
    A(f"s_cmp_lt_u32 s{S_CT}, 8", f"s_cbranch_scc1 {lab}")
    for tb in range(2):
        st = r['gst'][tb]
        A.ext(gstat_lines(r['acc'][2][tb], st, True)); A.ext(gstat_store(r, st, tb))
    A(f"{lab}:")
    stamp(A, 'gel')

def epilogue_g(A, r, pk):
    cs, cs2 = r['cs'], r['pool'].sub(0, 16)
    A.ext(cs_reads(r, 0, cs)); A.ext(cs_reads(r, 1, cs2))
    for k in range(2):
        A(f"s_waitcnt lgkmcnt({4 if k == 0 else 0})")
        for tb in range(2):
            acc = r['acc'][k][tb]; d = pk[tb]
            A.ext(correct_lines(acc, r['ab'][tb], cs if k == 0 else cs2)); A.ext(gelu_lines(r, acc))
            A.ext(pack_lines(acc, d))
            A.ext(gel_stores(r, d, tb, S_DSTA, 64 * k))
            A.ext(gstat_lines(acc, r['gst'][tb], k == 0))
    for tb in range(2): A.ext(gstat_store(r, r['gst'][tb], tb))

def build(name='p1_kernel'):
    A = KAsm('p1')
    V = Alloc('v', 1, 256)
    r = {}
    for n in ['lane', 't0', 't1', 't2', 't3', 'vlin', 'vcsA', 'vcsB', 'vpoll', 'vz']: r[n] = V(1)
    r['vx_dma'] = V(4, 1); r['vw_dma'] = V(6, 1); r['vx_rd'] = V(4, 1); r['vw_rd'] = V(6, 1)
    r['vgel'] = V(2, 1)
    r['ab'] = [V(2), V(2)]; r['abs'] = [V(2), V(2)]
    r['one2'] = V(2); r['c1'] = V(2)
    r['acc'] = [[V(16, 4), V(16, 4)] for _ in range(3)]
    r['fx'] = [[V(4), V(4)] for _ in range(2)]
    r['fw'] = [[V(4) for _ in range(3)] for _ in range(2)]
    r['pool'] = R('v', r['fx'][0][0].idx, 40)
    assert r['fw'][1][2].idx + 4 == r['pool'].idx + 40
    r['gst'] = [r['pool'].sub(32, 4), r['pool'].sub(36, 4)]
    r['vgst'] = V(2, 1)
    r['cs'] = V(16, 4); r['tmp'] = V(16, 4)
    pk = [V(8, 4), V(8, 4)]
    st64 = V(0 + 16, 4)
    prologue(A, 256)
    stamp(A, 0)
    lane_setup(A, V, r)
    A("s_and_b32 s80, s2, 7")
    A("s_lshr_b32 s81, s2, 3")
    if common.WARMSELF:
        npc = (common.P1_BYTES + 1023) // 1024
        A("s_lshl_b32 s82, s81, 2", f"s_add_u32 s82, s82, s{S_W}", f"s_cmp_ge_u32 s82, {npc}", "s_cbranch_scc1 L_p1_selfwarm_done")
        A("s_getpc_b64 s[84:85]", "L_p1_self_pc:", "s_sub_u32 s84, s84, L_p1_self_pc-p1_kernel", "s_subb_u32 s85, s85, 0")
        A("s_lshl_b32 s82, s82, 10", f"v_lshlrev_b32 {r['t1']}, 4, {r['lane']}", f"v_add_u32 {r['t1']}, s82, {r['t1']}")
        A(f"v_min_u32 {r['t1']}, L_EXIT_p1-p1_kernel-16, {r['t1']}")
        A(f"global_load_dwordx4 {r['fx'][0][0]}, {r['t1']}, s[84:85]")
        A("L_p1_selfwarm_done:")
    A("s_cmp_lt_u32 s81, 4")
    A("s_cbranch_scc1 L_p1_weights")
    A("s_sub_u32 s81, s81, 4")
    A("s_and_b32 s82, s80, 3", "s_lshl_b32 s82, s82, 2", "s_and_b32 s83, s81, 3", f"s_add_u32 s{S_I}, s82, s83")
    A("s_lshr_b32 s82, s80, 2", "s_mul_i32 s82, s82, 7", "s_lshr_b32 s83, s81, 2", f"s_add_u32 s{S_CT}, s82, s83")
    A(f"s_cmp_lt_u32 s{S_CT}, 12", f"s_cselect_b32 s{S_SH[0]}, 10, 11", f"s_mov_b32 s{S_SH[1]}, s{S_SH[0]}", f"s_mov_b32 s{S_SH[2]}, 11")
    dma_addr_setup(A, r, 3)
    if common.ROT1:
        r['rot'] = True
        A("s_lshr_b32 s82, s81, 2", "s_and_b32 s83, s81, 3", f"s_mul_i32 s83, s83, {common.ROT1[1]}", f"s_mul_i32 s82, s82, {common.ROT1[0]}", "s_add_u32 s82, s82, s83", f"s_and_b32 s{S_ROT}, s82, 7")
        A(f"s_lshl_b32 s{S_KX}, s{S_ROT}, 7")
        for p in range(3):
            A(f"s_mul_i32 s{S_KW[p]}, s{S_KSTEP[p]}, s{S_ROT}", f"s_lshl_b32 s{S_KMASK[p]}, s{S_KSTEP[p]}, 3", f"s_sub_u32 s{S_KMASK[p]}, s{S_KMASK[p]}, 1")
    A(f"s_mov_b32 s{S_XM}, -1", f"s_cmp_eq_u32 s{S_W}, 3", f"s_cselect_b32 s{S_XM+1}, 0xff, -1")
    A(f"s_mul_i32 s82, s{S_I}, {125*1024}")
    A("s_waitcnt lgkmcnt(0)")
    stamp(A, 'karg')
    srd(A, SRD_X, 'x', 125*1024, off_sgpr='s82')
    A(f"s_cmp_ge_u32 s{S_CT}, 12")
    A("s_cbranch_scc1 L_p1_setup_g")
    for p in range(2):
        A(f"s_lshl_b32 s82, s{S_CT}, 1", f"s_add_u32 s82, s82, {p}")
        A("s_cmp_lt_u32 s82, 16", f"s_cselect_b64 s[84:85], s[{SP['wk']}:{SP['wk']+1}], s[{SP['wv']}:{SP['wv']+1}]")
        A("s_cmp_lt_u32 s82, 8", f"s_cselect_b64 s[84:85], s[{SP['wq']}:{SP['wq']+1}], s[84:85]")
        A("s_and_b32 s83, s82, 7", "s_lshl_b32 s83, s83, 7")
        A("s_sub_u32 s86, 0x80000, s83")
        srd(A, SRD_W[p], 84, 's86', off_sgpr='s83')
    A(f"s_lshl_b32 s83, s{S_CT}, 7", "s_sub_u32 s86, 0x100000, s83")
    srd(A, SRD_W[2], 'wup', 's86', off_sgpr='s83')
    A("s_branch L_p1_srd_done")
    A("L_p1_setup_g:")
    for p in range(3):
        pp = p if p < 2 else 0
        A(f"s_sub_u32 s82, s{S_CT}, 12", "s_lshl_b32 s82, s82, 1", f"s_add_u32 s82, s82, {12 + pp}", "s_lshl_b32 s83, s82, 7")
        A("s_sub_u32 s86, 0x100000, s83")
        srd(A, SRD_W[p], 'wup', 's86', off_sgpr='s83')
    A("L_p1_srd_done:")
    l = r['lane']; t0, t1, t2, t3 = r['t0'], r['t1'], r['t2'], r['t3']
    def late_setup():
        B = KAsm('p1x')
        srd(B, SRD_WS, 'ws', WS_END)
        srd(B, SRD_DBG, 'dbg', 256)
        B(f"s_cmp_ge_u32 s{S_CT}, 12", "s_cbranch_scc1 L_p1_dst_g")
        B(f"s_lshl_b32 s82, s{S_CT}, 1", f"s_add_u32 s82, s82, s{S_WF}")
        B("s_lshr_b32 s83, s82, 3", "s_lshl_b32 s83, s83, 21", "s_and_b32 s84, s82, 7", "s_lshl_b32 s84, s84, 12")
        B(f"s_add_u32 s{S_DSTA}, s83, s84")
        B("s_cmp_lt_u32 s82, 8", f"s_cselect_b32 s{S_SCA}, {hexf(QSCALE)}, 1.0")
        B(f"s_lshr_b32 s83, s{S_CT}, 3", f"s_mul_i32 s83, s83, {GB - UB}", f"s_and_b32 s84, s{S_CT}, 7", "s_lshl_b32 s84, s84, 7")
        B("s_add_u32 s83, s83, s84", f"s_lshl_b32 s84, s{S_WF}, 6", "s_add_u32 s83, s83, s84", f"s_add_u32 s{S_DSTB}, s83, {hex(UB)}")
        B(f"s_sub_u32 s83, s{S_CT}, 8", "s_lshl_b32 s83, s83, 1", f"s_add_u32 s83, s83, s{S_WF}", "s_lshl_b32 s83, s83, 14", f"s_add_u32 s{S_GST}, s83, {hex(GST)}")
        B("s_branch L_p1_dst_done")
        B("L_p1_dst_g:")
        B(f"s_sub_u32 s82, s{S_CT}, 12", "s_lshl_b32 s82, s82, 1", f"s_add_u32 s82, s82, s{S_WF}", "s_add_u32 s82, s82, 12")
        B("s_and_b32 s84, s82, 7", "s_lshl_b32 s84, s84, 7", f"s_add_u32 s{S_DSTA}, s84, {hex(GB)}")
        B(f"s_mov_b32 s{S_DSTB}, 0", f"s_mov_b32 s{S_SCA}, 1.0")
        B(f"s_sub_u32 s83, s{S_CT}, 12", "s_lshl_b32 s83, s83, 1", f"s_add_u32 s83, s83, s{S_WF}", "s_add_u32 s83, s83, 8", "s_lshl_b32 s83, s83, 14", f"s_add_u32 s{S_GST}, s83, {hex(GST)}")
        B("L_p1_dst_done:")
        B(f"v_lshrrev_b32 {t0}, 3, {l}", f"v_add_u32 {t0}, 125, {t0}", f"v_lshlrev_b32 {t0}, 7, {t0}")
        B(f"v_and_b32 {t1}, 7, {l}", f"v_lshl_add_u32 {t0}, {t1}, 4, {t0}")
        B(f"s_lshl_b32 s{S_T}, s{S_W}, 14", f"v_add_u32 {t0}, s{S_T}, {t0}")
        ones = r['tmp'].sub(0, 4)
        for q in range(4): B(f"v_mov_b32 {ones[q]}, 0x3f803f80")
        B(f"v_cmp_gt_u32 vcc, 24, {l}", "s_and_saveexec_b64 s[92:93], vcc", f"ds_write_b128 {t0}, {ones}", "s_mov_b64 exec, s[92:93]")
        read_addr_setup(B, r, [('wf', 0), ('wf', 1), (2, 'wf')])
        B(f"s_lshl_b32 s82, s{S_I}, 2", f"s_lshl_b32 s83, s{S_WT}, 1", "s_add_u32 s82, s82, s83", "s_lshl_b32 s82, s82, 15")
        B(f"v_lshlrev_b32 {r['vlin']}, 4, {l}", f"v_add_u32 {r['vlin']}, s82, {r['vlin']}")
        B(f"v_lshrrev_b32 {t2}, 5, {l}", f"v_lshlrev_b32 {t2}, 4, {t2}")
        B(f"s_lshl_b32 s82, s{S_WF}, 8", f"v_add_u32 {r['vcsA']}, s82, {t2}")
        B(f"s_lshl_b32 s82, s{S_WF}, 7", "s_add_u32 s82, s82, 512", f"v_add_u32 {r['vcsB']}, s82, {t2}")
        B(f"v_and_b32 {t0}, 31, {l}", f"s_lshl_b32 s82, s{S_WT}, 6", f"v_add_u32 {t0}, s82, {t0}")
        B(f"s_mul_i32 s83, s{S_I}, 125")
        for tb in range(2):
            B(f"v_add_u32 {t1}, {32*tb}, {t0}")
            B(f"v_add_u32 {t3}, s83, {t1}", f"v_lshlrev_b32 {t3}, 10, {t3}", f"v_add_u32 {t3}, {t3}, {t2}")
            B(f"v_cmp_gt_u32 vcc, 125, {t1}", f"v_mov_b32 {r['vgel'][tb]}, {hex(OOB)}", f"v_cndmask_b32 {r['vgel'][tb]}, {r['vgel'][tb]}, {t3}, vcc")
            B(f"v_add_u32 {t3}, s83, {t1}", f"v_lshlrev_b32 {t3}, 3, {t3}", f"v_cmp_eq_u32 s[84:85], 0, {t2}", "s_and_b64 vcc, vcc, s[84:85]")
            B(f"v_mov_b32 {r['vgst'][tb]}, {hex(OOB)}", f"v_cndmask_b32 {r['vgst'][tb]}, {r['vgst'][tb]}, {t3}, vcc")
        B(f"s_lshl_b32 s82, s{S_I}, 10", f"s_add_u32 s82, s82, {hex(XST)}", f"v_lshlrev_b32 {r['vz']}, 3, {t0}", f"v_add_u32 {r['vz']}, s82, {r['vz']}")
        B(f"s_lshl_b32 s82, s{S_I}, 2", f"v_mov_b32 {r['vpoll']}, s82")
        B(f"v_mov_b32 {r['one2'][0]}, 1.0", f"v_mov_b32 {r['one2'][1]}, 1.0")
        c1 = -2.0 * LOG2E * 0.7978845608028654
        B(f"v_mov_b32 {r['c1'][0]}, {hexf(c1)}", f"v_mov_b32 {r['c1'][1]}, {hexf(c1)}")
        B(f"s_mov_b32 s{S_C2}, {hexf(c1*0.044715)}", f"s_mov_b32 s{S_C2+1}, {hexf(c1*0.044715)}")
        return B.L
    pollv = r['t0']
    poll = [f"buffer_load_dword {pollv}, {r['vpoll']}, s[{SRD_DBG}:{SRD_DBG+3}], 0 offen sc1"]
    lp, lq = A.label('poll'), A.label('pollok')
    check = ["s_waitcnt vmcnt(0)", f"v_readfirstlane_b32 s{S_T+1}, {pollv}", "s_nop 3", f"s_cmp_ge_u32 s{S_T+1}, 2", f"s_cbranch_scc1 {lq}",
             f"s_mov_b32 s{S_CNT}, 0x40000", f"{lp}:", "s_sleep 4",
             f"buffer_load_dword {pollv}, {r['vpoll']}, s[{SRD_DBG}:{SRD_DBG+3}], 0 offen sc1", "s_waitcnt vmcnt(0)",
             f"v_readfirstlane_b32 s{S_T+1}, {pollv}", f"s_sub_u32 s{S_CNT}, s{S_CNT}, 1", "s_nop 2", f"s_cmp_eq_u32 s{S_CNT}, 0", f"s_cbranch_scc1 {lq}",
             f"s_cmp_ge_u32 s{S_T+1}, 2", f"s_cbranch_scc0 {lp}", f"{lq}:",
             f"buffer_load_dwordx2 {r['ab'][0]}, {r['vz']}, s[{SRD_WS}:{SRD_WS+3}], 0 offen sc1",
             f"buffer_load_dwordx2 {r['ab'][1]}, {r['vz']}, s[{SRD_WS}:{SRD_WS+3}], 0 offen offset:256 sc1"]
    def warm():
        B = KAsm('p1w')
        npc = (common.P2_BYTES + 1023) // 1024 if common.WARMCODE else 0
        B("s_lshr_b32 s82, s2, 3", "s_sub_u32 s82, s82, 4", "s_lshl_b32 s82, s82, 2", f"s_add_u32 s82, s82, s{S_W}")
        B(f"v_lshlrev_b32 {t1}, 4, {l}")
        if npc:
            B(f"s_cmp_ge_u32 s82, {npc}", "s_cbranch_scc1 L_p1_warm_dw")
            B("s_getpc_b64 s[84:85]", "L_p1_warm_pc:", "s_add_u32 s84, s84, p2_kernel-L_p1_warm_pc", "s_addc_u32 s85, s85, 0")
            B("s_lshl_b32 s82, s82, 10", f"v_add_u32 {t1}, s82, {t1}", f"v_min_u32 {t1}, L_EXIT_p2-p2_kernel-16, {t1}")
            B(f"global_load_dwordx4 {st64.sub(0,4)}, {t1}, s[84:85]")
            B("s_branch L_p1_warm_done")
        B("L_p1_warm_dw:")
        B(f"s_sub_u32 s82, s82, {npc}", "s_lshl_b32 s82, s82, 10", f"v_add_u32 {t1}, s82, {t1}", f"v_min_u32 {t1}, {31*1024-16}, {t1}")
        B(f"global_load_dwordx4 {st64.sub(0,4)}, {t1}, s[{SP['dw']}:{SP['dw']+1}]")
        B("L_p1_warm_done:")
        return B.L
    main_loop(A, r, 3, 3, True, True, {('post', 30): warm, ('chunk', 6): poll, ('step', 29): lambda vm: check, 'mid': lambda vm: late_setup()})
    A(f"s_cmp_eq_u32 s{S_WT}, 0", "s_cbranch_scc1 L_p1_nocs")
    A("s_mov_b32 exec_lo, 0x20000000", "s_mov_b32 exec_hi, 0x20000000", "s_nop 7")
    for k in range(3):
        base = r['vcsA'] if k < 2 else r['vcsB']
        for q in range(4):
            A(f"ds_write_b128 {base}, {r['acc'][k][1].sub(4*q,4)} offset:{(128*k if k < 2 else 0) + 32*q}")
    A("s_mov_b64 exec, -1")
    A("L_p1_nocs:")
    A("s_waitcnt lgkmcnt(0)", "s_barrier", "s_waitcnt vmcnt(1)")
    stamp(A, 'cs')
    for tb in range(2):
        A(f"v_pk_mul_f32 {r['abs'][tb]}, {r['ab'][tb]}, s[{S_SCA}:{S_SCA+1}] op_sel_hi:[1,0]")
    A(f"s_cmp_ge_u32 s{S_CT}, 12", "s_cbranch_scc1 L_p1_epi_g")
    epilogue_mixed(A, r, pk)
    stamp_flush(A, 0, SRD_WS, r['ab'][0][0], r['ab'][0][1])
    A("s_endpgm")
    A("L_p1_epi_g:")
    epilogue_g(A, r, pk)
    stamp_flush(A, 0, SRD_WS, r['ab'][0][0], r['ab'][0][1])
    A("s_endpgm")
    A("L_p1_weights:")
    r['rot'] = False
    A("s_waitcnt lgkmcnt(0)")
    stamp(A, 'karg')
    srd(A, SRD_WS, 'ws', WS_END)
    srd(A, SRD_DBG, 'dbg', 256)
    A("s_lshl_b32 s81, s81, 3", "s_add_u32 s81, s81, s80")
    J = 78
    A(f"s_mov_b32 s{J}, s81")
    A(f"s_lshr_b32 s82, s{J}, 1", f"s_mov_b32 s{S_I}, s82", f"s_mul_i32 s82, s82, {125*1024}")
    srd(A, SRD_W[2], 'x', 125*1024, off_sgpr='s82')
    stv = [r['cs'], r['tmp'], R('v', pk[0].idx, 16), st64]
    assert pk[1].idx == pk[0].idx + 8
    A(f"s_and_b32 s83, s{J}, 1", "s_lshl_b32 s83, s83, 6", f"s_lshl_b32 s84, s{S_W}, 4", "s_add_u32 s83, s83, s84")
    rowv = r['vgel']
    for g2 in range(2):
        A(f"v_lshrrev_b32 {rowv[g2]}, 3, {l}", f"v_add_u32 {rowv[g2]}, s83, {rowv[g2]}")
        if g2: A(f"v_add_u32 {rowv[g2]}, 8, {rowv[g2]}")
    for g2 in range(2):
        A(f"v_lshlrev_b32 {t0}, 10, {rowv[g2]}", f"v_and_b32 {t1}, 7, {l}", f"v_lshl_add_u32 {t0}, {t1}, 4, {t0}")
        for jj in range(8):
            q = g2 * 8 + jj
            A(f"buffer_load_dwordx4 {stv[q//4].sub(4*(q%4),4)}, {t0}, s[{SRD_W[2]}:{SRD_W[2]+3}], 0 offen offset:{jj*128}")
        A("s_nop 0")
    A(f"s_lshr_b32 s82, s{J}, 4")
    A("s_cmp_eq_u32 s82, 0", f"s_cselect_b64 s[84:85], s[{SP['wao']}:{SP['wao']+1}], s[{SP['wdn']}:{SP['wdn']+1}]")
    A(f"s_lshr_b32 s83, s{J}, 2", "s_and_b32 s83, s83, 3", "s_lshl_b32 s83, s83, 17")
    srd(A, SRD_X, 84, 131072, off_sgpr='s83')
    for p in range(2):
        A(f"s_lshr_b32 s82, s{J}, 4", "s_lshl_b32 s82, s82, 19", f"s_and_b32 s83, s{J}, 3", "s_lshl_b32 s83, s83, 8")
        A(f"s_add_u32 s83, s83, {128*p}", "s_sub_u32 s86, 0x80000, s83", "s_add_u32 s83, s83, s82")
        srd(A, SRD_W[p], 'wm', 's86', off_sgpr='s83')
        A(f"s_mov_b32 s{S_SH[p]}, 10")
    dma_addr_setup(A, r, 2)
    read_addr_setup(A, r, [('wf', 0), ('wf', 1)])
    st = []
    a1, a2 = r['ab'][0], r['ab'][1]
    onesb = r['one2'][0]
    st.append(f"v_mov_b32 {onesb}, 0x3f803f80")
    st.append("WAITSTAT")
    for g2 in range(2):
        sm, sq = (a1[0], a1[1]) if g2 == 0 else (a2[0], a2[1])
        first = True
        for jj in range(8):
            q = g2 * 8 + jj
            for d in range(4):
                x = stv[q//4][4*(q%4) + d]
                st.append(f"v_dot2_f32_bf16 {sm}, {x}, {onesb}, {'0' if first else sm}")
                st.append(f"v_dot2_f32_bf16 {sq}, {x}, {x}, {'0' if first else sq}")
                first = False
    for mod in ["quad_perm:[1,0,3,2]", "quad_perm:[2,3,0,1]", "row_half_mirror"]:
        for x in (a1[0], a1[1], a2[0], a2[1]):
            st.append(f"v_add_f32_dpp {x}, {x}, {x} {mod} row_mask:0xf bank_mask:0xf")
    for g2, ab in enumerate((a1, a2)):
        st += [f"v_mul_f32 {ab[0]}, {hexf(1/512)}, {ab[0]}",
               f"v_mul_f32 {ab[1]}, {hexf(1/512)}, {ab[1]}",
               f"v_fma_f32 {ab[1]}, -{ab[0]}, {ab[0]}, {ab[1]}",
               f"v_max_f32 {ab[1]}, 0, {ab[1]}",
               f"v_add_f32 {ab[1]}, {hexf(1e-5)}, {ab[1]}",
               f"v_rsq_f32 {ab[1]}, {ab[1]}",
               f"v_mul_f32 {t1}, -{ab[0]}, {ab[1]}" if False else f"v_mul_f32 {t1}, {ab[0]}, {ab[1]}",
               f"v_sub_f32 {t1}, 0, {t1}",
               f"v_cmp_gt_u32 vcc, 125, {rowv[g2]}",
               f"v_cndmask_b32 {ab[0]}, 0, {ab[1]}, vcc",
               f"v_cndmask_b32 {ab[1]}, 0, {t1}, vcc",
               f"s_lshl_b32 s82, s{S_I}, 10", f"s_add_u32 s82, s82, {hex(XST)}",
               f"v_lshlrev_b32 {t0}, 3, {rowv[g2]}", f"v_add_u32 {t0}, s82, {t0}",
               f"v_and_b32 {t1}, 7, {l}", f"v_cmp_eq_u32 vcc, 0, {t1}", f"v_mov_b32 {t1}, {hex(OOB)}",
               f"v_cndmask_b32 {t0}, {t1}, {t0}, vcc",
               f"buffer_store_dwordx2 {ab}, {t0}, s[{SRD_WS}:{SRD_WS+3}], 0 offen sc1", "s_nop 1"]
    pub = [f"s_lshl_b32 s82, s{S_I}, 2", f"v_mov_b32 {t0}, s82", f"v_mov_b32 {t1}, 1",
           f"s_cmp_lg_u32 s{S_W}, 0", "s_cbranch_scc1 L_p1_nopub", "s_mov_b64 exec, 1",
           f"buffer_atomic_add {t1}, {t0}, s[{SRD_DBG}:{SRD_DBG+3}], 0 offen", "s_mov_b64 exec, -1", "L_p1_nopub:"]
    weights_loop(A, r, st, pub)
    A(f"s_lshr_b32 s82, s{J}, 4", "s_lshl_b32 s82, s82, 19", f"s_add_u32 s82, s82, {hex(WAMF)}")
    A(f"s_and_b32 s83, s{J}, 3", "s_lshl_b32 s83, s83, 2", f"s_lshl_b32 s84, s{S_WF}, 1", "s_add_u32 s83, s83, s84", "s_lshl_b32 s83, s83, 15")
    A("s_add_u32 s82, s82, s83")
    A(f"s_lshr_b32 s83, s{J}, 2", "s_and_b32 s83, s83, 3", "s_lshl_b32 s83, s83, 2", f"s_lshl_b32 s84, s{S_WT}, 1", "s_add_u32 s83, s83, s84", "s_lshl_b32 s83, s83, 11")
    A("s_add_u32 s82, s82, s83")
    A(f"v_lshlrev_b32 {r['vlin']}, 4, {l}")
    for k in range(2):
        for tb in range(2):
            d = pk[tb]
            A.ext(pack_lines(r['acc'][k][tb], d))
            A(f"s_add_u32 s{S_T}, s82, {k*32768 + tb*2048}")
            for hf in range(2):
                A(f"buffer_store_dwordx4 {d.sub(4*hf,4)}, {r['vlin']}, s[{SRD_WS}:{SRD_WS+3}], s{S_T} offen offset:{hf*1024} ; st:w")
    stamp_flush(A, 0, SRD_WS, r['ab'][0][0], r['ab'][0][1])
    A("L_EXIT_p1:")
    A("s_endpgm")
    return A, V.hi

def weights_loop(A, r, st, pub):
    vm = VM()
    for _ in range(16): vm.issue('stat')
    mid = lambda vm: [f"s_waitcnt vmcnt({vm.need('stat')})" if x == 'WAITSTAT' else x for x in st]
    pre = lambda vm: [f"s_waitcnt vmcnt({vm.need('mid')})", "s_barrier"] + list(pub)
    main_loop(A, r, 2, 2, False, False, {'mid': mid, 'pre': pre, 'vm': vm})
```
